```python
import torch

def _softmax(x, axis=-1):
    return torch.softmax(x, dim=axis)
def _gelu(x):
    return torch.nn.functional.gelu(x, approximate="tanh")
def _silu(x):
    return torch.nn.functional.silu(x)
def _sigmoid(x):
    return torch.sigmoid(x)
def _layernorm(x, axis=-1, eps=1e-5):
    m = x.mean(dim=axis, keepdim=True)
    v = x.var(dim=axis, keepdim=True, unbiased=False)
    return (x - m) / torch.sqrt(v + eps)
def _scatter_add(tgt, idx, src, axis=0):
    return tgt.clone().index_add_(axis, idx, src)
def _segment_sum(src, seg, n):
    out = torch.zeros((n,) + src.shape[1:], dtype=src.dtype)
    return out.index_add_(0, seg, src)
def _pad(x, pw):
    flat = tuple(v for pair in reversed(pw) for v in pair)
    return torch.nn.functional.pad(x, flat)

kernel_name = 'parallel_sum__spectral_gfnet__dense_activation_gelu__prompt'

def setup_inputs():

    _w = (lambda a: (lambda t: t.to(torch.bfloat16) if t.is_floating_point() else t)(torch.as_tensor(a)))
    def _A_setup():
        B, S, D = 1, 2048, 448
        Df = D // 2 + 1
        return {
            "x": _w((lambda *s: torch.randn(*s, dtype=torch.bfloat16) * 0.05)(B, S, D)),
            "w_r": _w((lambda *s: torch.randn(*s, dtype=torch.bfloat16) * 0.8)(S, Df) * 0.02),
            "w_i": _w((lambda *s: torch.randn(*s, dtype=torch.bfloat16) * 0.8)(S, Df) * 0.02),
        }
    _A_in = _A_setup()

    def _B_setup():
        B, S, D, F = 1, 2048, 448, 1792
        return {
            "x": _w((lambda *s: torch.randn(*s, dtype=torch.bfloat16) * 0.05)(B, S, D)),
            "w1": _w((lambda *s: torch.randn(*s, dtype=torch.bfloat16) * 0.4)(D, F) * (D ** -0.5)),
            "b1": _w((lambda *s: torch.randn(*s, dtype=torch.bfloat16) * 12.8)(F) * 0.01),
            "w2": _w((lambda *s: torch.randn(*s, dtype=torch.bfloat16) * 0.2)(F, D) * (F ** -0.5)),
            "b2": _w((lambda *s: torch.randn(*s, dtype=torch.bfloat16) * 1.6)(D) * 0.01),
        }
    _B_in = _B_setup()

    return {
        "A_x": _A_in["x"],
        "A_w_r": _A_in["w_r"],
        "A_w_i": _A_in["w_i"],
        "B_x": _B_in["x"],
        "B_w1": _B_in["w1"],
        "B_b1": _B_in["b1"],
        "B_w2": _B_in["w2"],
        "B_b2": _B_in["b2"],
    }

def reference(A_x, A_w_r, A_w_i, B_x, B_w1, B_b1, B_w2, B_b2):
    def _A_ref(x, w_r, w_i):
        B, S, D = x.shape
        X = (lambda x, axes=(-2,-1): torch.fft.rfft2(x.float(), dim=axes))(x, axes=(-2, -1))
        W = w_r + 1j * w_i
        X = X * W
        y = (lambda x, s, axes=(-2,-1): torch.fft.irfft2(x, s=s, dim=axes).to(torch.bfloat16))(X, (S, D), axes=(-2, -1))
        return y

    def _B_ref(x, w1, b1, w2, b2):
        h = torch.einsum("bsd,df->bsf", x, w1) + b1
        h = _gelu(h)
        return torch.einsum("bsf,fd->bsd", h, w2) + b2

    x = A_x
    xn = _layernorm(x, axis=-1)
    return x + _A_ref(xn, A_w_r, A_w_i) + _B_ref(xn, B_w1, B_b1, B_w2, B_b2)
```

```python
import re

TRANS = ("v_exp_f32", "v_log_f32", "v_rcp_f32", "v_rsq_f32", "v_sqrt_f32", "v_sin_f32", "v_cos_f32")
_reg = re.compile(r"\b([vas])(\d+)\b|\b([vas])\[(\d+):(\d+)\]|\b(vcc|m0|exec|scc)\b")


def regs(op):
    out = []
    for m in _reg.finditer(op):
        if m.group(1):
            out.append(m.group(1) + m.group(2))
        elif m.group(3):
            out += [m.group(3) + str(i) for i in range(int(m.group(4)), int(m.group(5)) + 1)]
        else:
            out.append(m.group(6))
    return out


def split_ops(s):
    ops, depth, cur = [], 0, ""
    for ch in s:
        if ch == "[":
            depth += 1
        if ch == "]":
            depth -= 1
        if ch == "," and depth == 0:
            ops.append(cur.strip())
            cur = ""
        else:
            cur += ch
    if cur.strip():
        ops.append(cur.strip())
    return ops


class Ins:
    __slots__ = ("mn", "kind", "w", "r", "c", "ab", "passes", "wide", "pos")


def parse(text):
    t = text.split(";")[0].strip()
    mn, _, rest = t.partition(" ")
    ops = split_ops(rest)
    I = Ins()
    I.mn, I.w, I.r, I.c, I.ab, I.passes, I.wide = mn, [], [], [], [], 0, []
    if mn.startswith("v_mfma"):
        I.kind = "mfma"
        I.passes = 8 if "32x32" in mn else 4
        I.w = regs(ops[0])
        I.ab = regs(ops[1]) + regs(ops[2])
        I.c = regs(ops[3])
        I.r = I.ab + I.c
    elif mn.startswith("v_"):
        I.kind = "valu"
        I.w = regs(ops[0])
        srcs = ops[1:]
        if mn.startswith(("v_add_co", "v_sub_co", "v_addc_co", "v_subb_co")):
            I.w += regs(ops[1])
            srcs = ops[2:]
        for o in srcs:
            I.r += regs(o)
        if mn.startswith(("v_fmac", "v_dot2c", "v_permlane", "v_pk_fmac")) or "d16" in mn:
            I.r += regs(ops[0])
        if mn.startswith("v_permlane"):
            I.w += regs(ops[1])
    elif mn.startswith("ds_"):
        I.kind = "ds"
        if mn.startswith(("ds_read", "ds_bpermute", "ds_permute", "ds_swizzle")):
            I.w = regs(ops[0])
            for o in ops[1:]:
                I.r += regs(o)
        else:
            for o in ops:
                I.r += regs(o)
    elif mn.startswith(("buffer_", "global_")):
        I.kind = "vmem"
        lds = bool(re.search(r"\blds\b", t))
        if "load" in mn and not lds:
            I.w = regs(ops[0])
            for o in ops[1:]:
                I.r += regs(o)
        else:
            for o in ops:
                I.r += regs(o)
            if lds:
                I.r.append("m0")
            if "store" in mn and ("x4" in mn or "x3" in mn):
                I.wide = regs(ops[0]) if mn.startswith("buffer") else regs(ops[1])
    elif mn.startswith("s_"):
        I.kind = "salu"
        if mn.startswith(("s_cmp", "s_cbranch", "s_branch", "s_waitcnt", "s_barrier", "s_nop", "s_endpgm", "s_setprio", "s_sleep")):
            for o in ops:
                I.r += regs(o)
        else:
            I.w = regs(ops[0]) if ops else []
            for o in ops[1:]:
                I.r += regs(o)
    else:
        I.kind = "other"
    return I


class Asm:
    def __init__(self):
        self.lines = []
        self.hist = []
        self.pos = 0
        self.nvm = 0
        self.vm_done = 0
        self.nld = 0
        self.ld_done = 0
        self.nops = 0

    def raw(self, s):
        self.lines.append(s)

    def label(self, name):
        self.lines.append(name + ":")

    def reset_counts(self):
        self.nvm = self.vm_done = self.nld = self.ld_done = 0
        self.hist = []

    def need(self, I):
        n = 0
        W, R = set(I.w), set(I.r)
        for P in self.hist:
            d = self.pos - P.pos - 1
            req = 0
            PW = set(P.w)
            if P.kind == "valu":
                vw = {x for x in PW if x[0] in "va" and x != "vcc"}
                sw = {x for x in PW if x[0] == "s" or x == "vcc"}
                if I.kind == "mfma" and vw & R:
                    req = max(req, 2)
                if P.mn.startswith(TRANS) and I.kind in ("valu", "mfma") and vw & R:
                    req = max(req, 1)
                if P.mn.startswith("v_dot") and (vw & (R | W)) and not (I.mn == P.mn and not (vw & set(I.r[:-len(I.w)]))):
                    req = max(req, 3)
                if sw & R:
                    if I.kind == "valu":
                        req = max(req, 4 if I.mn.startswith(("v_readlane", "v_writelane")) else 2)
                    elif I.kind == "vmem":
                        req = max(req, 5)
                    elif I.kind == "salu":
                        req = max(req, 2)
                if vw & R:
                    if I.mn.startswith(("v_readfirstlane", "v_readlane")):
                        req = max(req, 1)
                    if I.mn.startswith("v_permlane") or "dpp" in I.mn:
                        req = max(req, 2)
                if "exec" in PW and I.kind == "mfma":
                    req = max(req, 4)
            elif P.kind == "mfma":
                big = 12 if P.passes == 8 else 8
                if I.kind == "mfma":
                    if PW & set(I.ab):
                        req = max(req, big)
                    if PW & set(I.c) and not (I.c == P.w and I.passes == P.passes):
                        req = max(req, big - 2)
                    if PW & W and not (I.c == P.w and I.passes == P.passes):
                        req = max(req, big)
                elif PW & (R | W):
                    req = max(req, big)
                if I.kind == "valu" and set(P.c) & W:
                    req = max(req, 7 if P.passes == 8 else 3)
            elif P.kind == "vmem":
                if P.wide and set(P.wide) & W:
                    req = max(req, 2)
            elif P.kind == "salu":
                if "m0" in PW and "m0" in R and I.kind in ("vmem", "ds"):
                    req = max(req, 1)
            n = max(n, req - d)
        return n

    def e(self, text):
        I = parse(text)
        n = self.need(I)
        while n > 0:
            k = min(n, 16)
            self.lines.append(f"    s_nop {k - 1}")
            self.pos += k
            self.nops += k
            n -= k
        I.pos = self.pos
        self.lines.append("    " + text)
        if I.mn == "s_nop":
            self.pos += int(text.split()[1]) + 1
        else:
            self.pos += 1
        self.hist.append(I)
        self.hist = [h for h in self.hist if self.pos - h.pos <= 24]
        if I.kind == "vmem":
            self.nvm += 1
            return self.nvm
        if I.kind == "ds":
            self.nld += 1
            return self.nld
        return None

    def wait_vm(self, tok):
        if tok is None or tok <= self.vm_done:
            return
        n = min(self.nvm - tok, 63)
        self.e(f"s_waitcnt vmcnt({n})")
        self.vm_done = self.nvm - n

    def wait_ld(self, tok):
        if tok is None or tok <= self.ld_done:
            return
        n = min(self.nld - tok, 15)
        self.e(f"s_waitcnt lgkmcnt({n})")
        self.ld_done = self.nld - n

    def wait_all_ld(self):
        self.wait_ld(self.nld)

    def wait_all_vm(self):
        self.wait_vm(self.nvm)

    def text(self):
        return "\n".join(self.lines) + "\n"


class Regs:
    def __init__(self, start=0, limit=256, pre="v"):
        self.n, self.limit, self.pre = start, limit, pre

    def alloc(self, k=1, align=None):
        a = align or (4 if k >= 4 else (2 if k == 2 else 1))
        self.n = (self.n + a - 1) // a * a
        b = self.n
        self.n += k
        assert self.n <= self.limit, f"out of {self.pre} regs"
        return b


def vr(b, k=1, pre="v"):
    return f"{pre}{b}" if k == 1 else f"{pre}[{b}:{b + k - 1}]"


def sr(b, k=1):
    return vr(b, k, "s")


def kd(name, vgpr, sgpr=102, accum=None):
    acc = accum if accum is not None else (vgpr + 3) // 4 * 4
    return f""".p2align 6
.amdhsa_kernel {name}
  .amdhsa_next_free_vgpr {vgpr}
  .amdhsa_next_free_sgpr {sgpr}
  .amdhsa_accum_offset {acc}
  .amdhsa_group_segment_fixed_size 0
  .amdhsa_kernarg_size 88
  .amdhsa_user_sgpr_count 2
  .amdhsa_user_sgpr_kernarg_segment_ptr 1
  .amdhsa_system_sgpr_workgroup_id_x 1
.end_amdhsa_kernel
"""
```

```python
from asmlib import *
import struct
def f32(x): return "0x%08x" % struct.unpack("<I", struct.pack("<f", x))[0]

HF = 0
X1F = HF + 64 * 112 * 1024
Y1T = X1F + 448 * 4096
WT = Y1T + 448 * 4096
IDF = WT + 225 * 8192
F1T = IDF + 14 * 28 * 1024
F2T = F1T + 16384
WS_END = F2T + 4096
WS_BYTES = 268435456
OOB = 0x10000000

def mk_srd(A, d, src, nbytes):
    A.e(f"s_mov_b32 s{d}, s{src}")
    A.e(f"s_and_b32 s{d+1}, s{src+1}, 0xffff")
    A.e(f"s_mov_b32 s{d+2}, {nbytes}")
    A.e(f"s_mov_b32 s{d+3}, 0x00020000")

def header(A, name):
    A.raw(f".globl {name}\n.p2align 8\n.type {name},@function\n{name}:")
    A.reset_counts()

def load_args(A):
    A.e("s_load_dwordx16 s[16:31], s[0:1], 0")
    A.e("s_load_dwordx2 s[32:33], s[0:1], 64")
    A.e("s_load_dwordx2 s[34:35], s[0:1], 80")

GC0 = -2.0 * 0.7978845608028654 * 1.4426950408889634
GC1 = GC0 * 0.044715

L_W1 = 0
L_DF = 114688
L_XT = L_DF + 28 * 1024
L_CSD = L_XT + 16384
L_RS = L_CSD + 1024
K1_LDS = L_RS + 512

def gen_k1(A, name, ST=""):
    header(A, name)
    e = A.e
    e("s_cmp_ge_u32 s2, 256")
    e(f"s_cbranch_scc1 {name}_end")
    load_args(A)
    R = Regs(1)
    lane = R.alloc()
    t0, t1, t2, t3 = [R.alloc() for _ in range(4)]
    e(f"v_lshrrev_b32 v{t0}, 6, v0")
    e(f"v_and_b32 v{lane}, 63, v0")
    e(f"v_readfirstlane_b32 s3, v{t0}")
    e("s_cmp_ge_u32 s2, 224")
    e(f"s_cbranch_scc1 {name}_misc")
    XF = R.alloc(112)
    acc = [R.alloc(16), R.alloc(16)]
    AF = [R.alloc(4) for _ in range(4)]
    CF = [R.alloc(4) for _ in range(4)]
    AX = [R.alloc(4) for _ in range(5)]
    BX = R.alloc(4)
    HP = R.alloc(8)
    CSR = HP
    b1r = R.alloc(4)
    xw0, xw1 = [R.alloc() for _ in range(2)]
    xr = [R.alloc() for _ in range(4)]
    ta = [R.alloc() for _ in range(4)]
    tc = [R.alloc() for _ in range(4)]
    l16 = R.alloc()
    ones = R.alloc()
    ssum, ssq, rstd = R.alloc(), R.alloc(), R.alloc()
    cs = [R.alloc() for _ in range(5)]
    jk = [acc[1] + i for i in range(8)]
    g = [R.alloc() for _ in range(8)]
    vxo, vwo = g[6], g[7]
    hh, t31, csw, csr_a = [R.alloc() for _ in range(4)]
    e("s_and_b32 s4, s2, 7")
    e("s_lshr_b32 s5, s2, 3")
    e("s_and_b32 s6, s5, 1")
    e("s_lshr_b32 s7, s5, 1")
    e("s_lshl_b32 s8, s4, 2")
    e("s_add_u32 s8, s8, s3")
    e("s_lshl_b32 s9, s6, 10")
    e("s_add_u32 s9, s9, s8")
    e("s_mul_i32 s52, s9, 896")
    for i in range(1, 4):
        e(f"s_add_u32 s{52+i}, s52, {i*229376}")
    e(f"v_lshrrev_b32 v{t0}, 3, v{lane}")
    e(f"v_and_b32 v{t1}, 7, v{lane}")
    e(f"v_mul_u32_u24 v{vxo}, 28672, v{t0}")
    e(f"v_lshl_add_u32 v{vxo}, v{t1}, 4, v{vxo}")
    e(f"v_lshlrev_b32 v{l16}, 4, v{lane}")
    e("s_waitcnt lgkmcnt(0)")
    mk_srd(A, 36, 16, 1835008)
    mk_srd(A, 40, 24, 1605632)
    mk_srd(A, 44, 34, WS_BYTES)
    mk_srd(A, 48, 26, 3584)
    xtok = []
    for c in range(7):
        for i in range(4):
            xtok.append(e(f"buffer_load_dwordx4 {vr(XF+16*c+4*i,4)}, v{vxo}, s[36:39], s{52+i} offen offset:{c*128}"))
    e(f"v_lshlrev_b32 v{t2}, 1, v{t0}")
    e(f"v_and_b32 v{t2}, 4, v{t2}")
    e(f"v_xor_b32 v{t2}, v{t2}, v{t1}")
    e(f"v_mul_u32_u24 v{vwo}, 3584, v{t0}")
    e(f"v_lshl_add_u32 v{vwo}, v{t2}, 4, v{vwo}")
    e("s_mul_i32 s56, s3, 28672")
    e("s_lshl_b32 s10, s7, 8")
    e("s_add_u32 s56, s56, s10")
    e("s_lshl_b32 s57, s3, 10")
    wtok = [None, None]
    for p in range(2):
        for it in range(14):
            e(f"s_add_u32 m0, s57, {L_W1 + p*57344 + it*4096}")
            e(f"s_add_u32 s58, s56, {it*4*28672 + p*128}")
            wtok[p] = e(f"buffer_load_dwordx4 v{vwo}, s[40:43], s58 offen lds")
    e(f"v_and_b32 v{t31}, 31, v{lane}")
    e(f"v_lshrrev_b32 v{hh}, 5, v{lane}")
    e(f"v_lshlrev_b32 v{t2}, 1, v{t31}")
    for b in range(4):
        btok = e(f"buffer_load_ushort v{b1r+b}, v{t2}, s[48:51], s10 offen offset:{b*64}")
    e("s_lshl_b32 s11, s3, 12")
    e(f"s_add_u32 s11, s11, {L_XT}")
    e(f"v_lshrrev_b32 v{t2}, 1, v{t0}")
    e(f"v_xor_b32 v{t2}, v{t2}, v{t1}")
    e(f"v_lshlrev_b32 v{t2}, 4, v{t2}")
    e(f"v_lshl_add_u32 v{xw0}, v{t0}, 7, v{t2}")
    e(f"v_add_u32 v{xw0}, s11, v{xw0}")
    e(f"v_xor_b32 v{xw1}, 64, v{xw0}")
    e(f"v_bfe_u32 v{t2}, v{lane}, 1, 3")
    e(f"v_xor_b32 v{t2}, v{t2}, v{hh}")
    e(f"v_lshlrev_b32 v{t2}, 4, v{t2}")
    e(f"v_lshl_add_u32 v{xr[0]}, v{t31}, 7, v{t2}")
    e(f"v_add_u32 v{xr[0]}, s11, v{xr[0]}")
    for q in range(1, 4):
        e(f"v_xor_b32 v{xr[q]}, {q*32}, v{xr[0]}")
    e(f"v_bfe_u32 v{t0}, v{lane}, 2, 2")
    e(f"v_lshl_add_u32 v{t1}, v{hh}, 3, v{t0}")
    e(f"v_lshlrev_b32 v{t1}, 7, v{t1}")
    e(f"v_bfe_u32 v{t2}, v{lane}, 3, 1")
    e(f"v_lshl_add_u32 v{t1}, v{t2}, 6, v{t1}")
    e(f"v_bfe_u32 v{t2}, v{lane}, 4, 1")
    e(f"v_lshl_add_u32 v{t1}, v{t2}, 5, v{t1}")
    e(f"v_and_b32 v{t2}, 3, v{lane}")
    e(f"v_lshl_add_u32 v{ta[0]}, v{t2}, 3, v{t1}")
    e(f"v_xor_b32 v{ta[1]}, 64, v{ta[0]}")
    e(f"v_add_u32 v{ta[2]}, 57344, v{ta[0]}")
    e(f"v_add_u32 v{ta[3]}, 57344, v{ta[1]}")
    e("s_mul_i32 s12, s3, 14336")
    for b in range(4):
        e(f"v_add_u32 v{tc[b]}, s12, v{ta[b]}")
    e(f"v_mov_b32 v{ones}, 0x3f803f80")
    for r_ in [ssum, ssq] + cs:
        e(f"v_mov_b32 v{r_}, 0")
    for a_ in AX + [BX]:
        e(f"v_mov_b32 v{a_+2}, 0")
        e(f"v_mov_b32 v{a_+3}, 0")
    e(f"v_lshlrev_b32 v{csr_a}, 5, v{t31}")
    e("s_lshl_b32 s13, s3, 3")
    e(f"v_lshl_add_u32 v{csw}, v{hh}, 2, v{csr_a}")
    e(f"v_add_u32 v{csw}, s13, v{csw}")
    e("s_lshl_b32 s14, s7, 5")
    e(f"v_add_u32 v{t0}, s14, v{t31}")
    e(f"v_lshrrev_b32 v{t1}, 1, v{t0}")
    e(f"v_and_b32 v{t2}, 1, v{t0}")
    e(f"v_cmp_eq_u32 vcc, 1, v{t0}")
    e(f"v_mov_b32 v{t3}, 224")
    e(f"v_cndmask_b32 v{t1}, v{t1}, v{t3}, vcc")
    e(f"v_cndmask_b32 v{t2}, v{t2}, 0, vcc")
    e(f"v_cvt_f32_u32 v{t1}, v{t1}")
    e(f"v_cvt_f32_u32 v{t2}, v{t2}")
    e(f"v_mul_f32 v{t2}, 0x3e800000, v{t2}")
    e(f"s_mov_b32 s15, {f32(1.0/448)}")
    for j_ in range(1, 8):
        e(f"v_mul_f32 v{jk[j_]}, {f32(j_/448.0)}, v{t1}")
    e("s_mul_i32 s59, s3, 112")
    e(f"v_lshlrev_b32 v{t0}, 3, v{hh}")
    e(f"v_add_u32 v{t0}, s59, v{t0}")
    e(f"v_cvt_f32_u32 v{t0}, v{t0}")
    e(f"v_mul_f32 v{t0}, v{t0}, v{t1}")
    e(f"v_mul_f32 v{t1}, {f32(16.0)}, v{t1}")
    e(f"s_mov_b32 s60, {f32(-448.0)}")
    e("s_mul_i32 s61, s3, 7168")
    e(f"s_add_u32 s61, s61, {L_DF}")
    e(f"v_add_u32 v{jk[0]}, s61, v{l16}")
    for i in range(7):
        fr = CF[i % 4]
        e(f"v_mul_f32 v{t3}, s15, v{t0}")
        e(f"v_floor_f32 v{t3}, v{t3}")
        e(f"v_fma_f32 v{t3}, v{t3}, s60, v{t0}")
        e(f"v_fma_f32 v{g[0]}, v{t3}, s15, v{t2}")
        for j_ in range(1, 8):
            e(f"v_add_f32 v{g[j_]}, v{g[0]}, v{jk[j_]}")
        for j_ in range(8):
            e(f"v_cos_f32 v{g[j_]}, v{g[j_]}")
        e(f"v_add_f32 v{t0}, v{t0}, v{t1}")
        for j_ in range(4):
            e(f"v_cvt_pk_bf16_f32 v{fr+j_}, v{g[2*j_]}, v{g[2*j_+1]}")
        for j_ in range(4):
            e(f"v_dot2c_f32_bf16 v{cs[4]}, v{fr+j_}, v{ones}")
        e(f"ds_write_b128 v{jk[0]}, {vr(fr,4)} offset:{i*1024}")
    e(f"v_add_u32 v{t0}, {L_CSD}, v{csw}")
    e(f"ds_write_b32 v{t0}, v{cs[4]}")
    prev = None
    def stats(c):
        for r_ in range(16):
            e(f"v_dot2c_f32_bf16 v{ssum}, v{XF+16*c+r_}, v{ones}")
            e(f"v_dot2c_f32_bf16 v{ssq}, v{XF+16*c+r_}, v{XF+16*c+r_}")
    for c in range(7):
        for i in range(4):
            A.wait_vm(xtok[4*c+i])
            e(f"ds_write_b128 v{xw1 if i&1 else xw0}, {vr(XF+16*c+4*i,4)} offset:{i*1024}")
        for q in range(4):
            tk = e(f"ds_read_b128 {vr(XF+16*c+4*q,4)}, v{xr[q]}")
        if prev is not None:
            A.wait_ld(prev[1])
            stats(prev[0])
        prev = (c, tk)
    A.wait_ld(prev[1])
    stats(prev[0])
    e(f"v_mov_b32 v{t0}, v{ssum}")
    e(f"v_mov_b32 v{t1}, v{ssq}")
    e(f"v_permlane32_swap_b32 v{ssum}, v{t0}")
    e(f"v_permlane32_swap_b32 v{ssq}, v{t1}")
    e(f"v_add_f32 v{ssum}, v{ssum}, v{t0}")
    e(f"v_add_f32 v{ssq}, v{ssq}, v{t1}")
    e(f"v_mul_f32 v{ssum}, s15, v{ssum}")
    e(f"v_mul_f32 v{ssq}, s15, v{ssq}")
    e(f"v_fma_f32 v{ssq}, -v{ssum}, v{ssum}, v{ssq}")
    e(f"v_max_f32 v{ssq}, 0, v{ssq}")
    e(f"v_cvt_pk_bf16_f32 v{t0}, v{ssq}, v{ssq}")
    e(f"v_lshlrev_b32 v{t0}, 16, v{t0}")
    e(f"v_add_f32 v{t0}, {f32(1e-5)}, v{t0}")
    e(f"v_cvt_pk_bf16_f32 v{t0}, v{t0}, v{t0}")
    e(f"v_lshlrev_b32 v{t0}, 16, v{t0}")
    e(f"v_sqrt_f32 v{t0}, v{t0}")
    e(f"v_cvt_pk_bf16_f32 v{BX}, -v{ssum}, -v{ssum}")
    e(f"v_cvt_pk_bf16_f32 v{BX+1}, -v{ssum}, v{t0}")
    e(f"v_and_b32 v{t0}, 0xffff0000, v{BX+1}")
    e(f"v_rcp_f32 v{rstd}, v{t0}")
    e(f"v_cmp_gt_u32 vcc, 32, v{lane}")
    e("s_lshl_b32 s62, s3, 7")
    e(f"s_add_u32 s62, s62, {L_RS}")
    e(f"v_cndmask_b32 v{BX}, 0, v{BX}, vcc")
    e(f"v_cndmask_b32 v{BX+1}, 0, v{BX+1}, vcc")
    e(f"v_lshl_add_u32 v{t0}, v{t31}, 2, s62")
    e(f"ds_write_b32 v{t0}, v{rstd}")
    e(f"v_lshl_add_u32 v{xw0}, v{hh}, 4, s62")
    e(f"v_add_u32 v{xw1}, {L_DF}, v{l16}")
    e(f"v_add_u32 v{csw}, {L_XT}, v{csw}")
    e("s_lshl_b32 s63, s8, 1")
    e("s_add_u32 s63, s63, s6")
    e("s_mul_i32 s63, s63, 114688")
    e("s_lshl_b32 s64, s7, 13")
    e("s_add_u32 s63, s63, s64")
    e("s_add_u32 s64, s63, 4096")
    e(f"s_mov_b32 s65, {f32(GC0)}")
    e(f"s_mov_b32 s66, {f32(GC1)}")
    e(f"v_mov_b32 v{xr[0]}, s65")
    e(f"v_lshlrev_b32 v{xr[1]}, 12, v{t31}")
    e(f"v_lshl_add_u32 v{xr[1]}, v{hh}, 9, v{xr[1]}")
    e("s_lshl_b32 s67, s7, 17")
    e("s_lshl_b32 s68, s6, 11")
    e("s_add_u32 s67, s67, s68")
    e("s_lshl_b32 s68, s8, 4")
    e("s_add_u32 s67, s67, s68")
    e(f"s_add_u32 s67, s67, {X1F}")
    A.wait_vm(wtok[0])
    A.wait_all_ld()
    e("s_barrier")

    steps = [(b, ks) for b in range(5) for ks in range(28)]
    rtok = {}
    def issue_read(n):
        if n >= len(steps): return
        b, ks = steps[n]
        f = AF[n % 4]
        if b < 4:
            e(f"ds_read_b64_tr_b16 {vr(f,2)}, v{ta[b]} offset:{ks*2048}")
            rtok[n] = e(f"ds_read_b64_tr_b16 {vr(f+2,2)}, v{ta[b]} offset:{ks*2048+512}")
        else:
            rtok[n] = e(f"ds_read_b128 {vr(f,4)}, v{xw1} offset:{ks*1024}")
    def cs_fill(b):
        F = []
        tk = {}
        def rd(i):
            def f():
                c_ = CF[i % 4]
                e(f"ds_read_b64_tr_b16 {vr(c_,2)}, v{tc[b]} offset:{i*2048}")
                tk[i] = e(f"ds_read_b64_tr_b16 {vr(c_+2,2)}, v{tc[b]} offset:{i*2048+512}")
            return f
        def dt(i):
            def f():
                A.wait_ld(tk[i])
                for j_ in range(4):
                    e(f"v_dot2c_f32_bf16 v{cs[b]}, v{CF[i%4]+j_}, v{ones}")
            return f
        F += [rd(0), rd(1)]
        for i in range(7):
            if i + 2 < 7: F.append(rd(i + 2))
            F.append(dt(i))
        F.append(lambda: e(f"ds_write_b32 v{csw}, v{cs[b]} offset:{b*1024}"))
        return F
    def ax_build(b):
        F = []
        tk = {}
        base = (L_XT + b * 1024) if b < 4 else L_CSD
        def rd():
            e(f"v_add_u32 v{t3}, {base}, v{csr_a}")
            e(f"ds_read_b128 {vr(CSR,4)}, v{t3}")
            tk[0] = e(f"ds_read_b128 {vr(CSR+4,4)}, v{t3} offset:16")
        F.append(rd)
        def s1():
            A.wait_ld(tk[0])
            for i in range(4):
                e(f"v_add_f32 v{CSR+i}, v{CSR+i}, v{CSR+4+i}")
        F.append(None); F.append(None)
        F.append(s1)
        a = AX[b]
        seq = [f"v_add_f32 v{CSR}, v{CSR}, v{CSR+1}", f"v_add_f32 v{CSR+2}, v{CSR+2}, v{CSR+3}",
               f"v_add_f32 v{CSR}, v{CSR}, v{CSR+2}",
               f"v_cvt_pk_bf16_f32 v{CSR+1}, v{CSR}, v{CSR}",
               f"v_lshlrev_b32 v{CSR+2}, 16, v{CSR+1}",
               f"v_sub_f32 v{CSR+3}, v{CSR}, v{CSR+2}",
               f"v_cvt_pk_bf16_f32 v{a}, v{CSR}, v{CSR+3}",
               f"v_and_b32 v{CSR+2}, 0xffff0000, v{a}",
               f"v_sub_f32 v{CSR+3}, v{CSR+3}, v{CSR+2}",
               f"v_cvt_pk_bf16_f32 v{a+1}, v{CSR+3}, 0"]
        if b < 4:
            seq.append(f"v_lshl_or_b32 v{a+1}, v{b1r+b}, 16, v{a+1}")
        F += [(lambda s=s: e(s)) for s in seq]
        return F
    def gelu_fill(b):
        a = acc[b & 1]
        S = []
        for q in range(4):
            ix = [a + 4 * q + i for i in range(4)]
            tm = g[(q & 1) * 4:(q & 1) * 4 + 4]
            S += [f"v_mul_f32 v{x}, v{x}, v{rstd}" for x in ix]
            S += [f"v_mul_f32 v{t}, v{x}, v{x}" for x, t in zip(ix, tm)]
            S += [f"v_fma_f32 v{t}, v{t}, s66, v{xr[0]}" for t in tm]
            S += [f"v_mul_f32 v{t}, v{t}, v{x}" for x, t in zip(ix, tm)]
            S += [f"v_exp_f32 v{t}, v{t}" for t in tm]
            S += [f"v_add_f32 v{t}, 1.0, v{t}" for t in tm]
            S += [f"v_rcp_f32 v{t}, v{t}" for t in tm]
            S += [f"v_mul_f32 v{t}, v{t}, v{x}" for x, t in zip(ix, tm)]
            S += [f"v_cvt_pk_bf16_f32 v{HP+2*q}, v{tm[0]}, v{tm[1]}", f"v_cvt_pk_bf16_f32 v{HP+2*q+1}, v{tm[2]}, v{tm[3]}"]
            if q & 1:
                o = (2 * b + (q >> 1)) * 1024
                S.append(f"buffer_store_dwordx4 {vr(HP+4*(q>>1),4)}, v{l16}, s[44:47], s{63 if o < 4096 else 64} offen offset:{o % 4096}{ST}")
        return [(lambda s=s: e(s)) for s in S]
    def bar1():
        A.wait_vm(btok)
        e("s_barrier")
    def bar2():
        A.wait_all_ld()
        e("s_barrier")
    PF = 3
    for n in range(PF):
        issue_read(n)
    n = 0
    for b in range(5):
        if b == 0:
            fill = cs_fill(0) + cs_fill(1) + [bar1] + cs_fill(2) + cs_fill(3) + [bar2] + ax_build(0)
            skip = 0
        else:
            fill = ax_build(b) + gelu_fill(b - 1)
            skip = 0
        nf = len(fill)
        fi = 0
        for ks in range(28):
            issue_read(n + PF)
            A.wait_ld(rtok[n])
            f = AF[n % 4]
            c_ = "0" if ks == 0 else vr(acc[b & 1], 16)
            if b < 4:
                e(f"v_mfma_f32_32x32x16_bf16 {vr(acc[b&1],16)}, {vr(f,4)}, {vr(XF+4*ks,4)}, {c_}")
            else:
                e(f"v_mfma_f32_32x32x16_bf16 {vr(acc[b&1],16)}, {vr(XF+4*ks,4)}, {vr(f,4)}, {c_}")
            tgt = (nf * (ks + 1) + 27) // 28
            while fi < tgt:
                if fill[fi]: fill[fi]()
                fi += 1
            n += 1
        if b < 4:
            e(f"v_mfma_f32_32x32x16_bf16 {vr(acc[b&1],16)}, {vr(AX[b],4)}, {vr(BX,4)}, {vr(acc[b&1],16)}")
        else:
            e(f"v_mfma_f32_32x32x16_bf16 {vr(acc[b&1],16)}, {vr(BX,4)}, {vr(AX[b],4)}, {vr(acc[b&1],16)}")
    rs = acc[1]
    for q in range(4):
        tk = e(f"ds_read_b128 {vr(rs+4*q,4)}, v{xw0} offset:{q*32}")
    A.wait_ld(tk)
    for r_ in range(16):
        e(f"v_mul_f32 v{acc[0]+r_}, v{acc[0]+r_}, v{rs+r_}")
    for r_ in range(8):
        e(f"v_cvt_pk_bf16_f32 v{HP+r_}, v{acc[0]+2*r_}, v{acc[0]+2*r_+1}")
    e(f"buffer_store_dwordx4 {vr(HP,4)}, v{xr[1]}, s[44:47], s67 offen{ST}")
    e(f"buffer_store_dwordx4 {vr(HP+4,4)}, v{xr[1]}, s[44:47], s67 offen offset:1024{ST}")
    e("s_endpgm")
    nv = R.n
    A.label(f"{name}_misc")
    A.reset_counts()
    e("s_nop 4")
    R = Regs(6)
    l16, i15, kk, va, vo, vk = [R.alloc() for _ in range(6)]
    P = R.alloc(4)
    ra = [R.alloc() for _ in range(16)]
    q_ = [R.alloc() for _ in range(12)]
    e("s_sub_u32 s4, s2, 224")
    e("s_and_b32 s5, s4, 3")
    e("s_lshr_b32 s6, s4, 2")
    e(f"v_lshlrev_b32 v{l16}, 4, v{lane}")
    e("s_waitcnt lgkmcnt(0)")
    mk_srd(A, 36, 18, 921600)
    mk_srd(A, 40, 20, 921600)
    mk_srd(A, 44, 34, WS_BYTES)
    e("s_lshl_b32 s7, s6, 2")
    e("s_add_u32 s7, s7, s3")
    e("s_lshl_b32 s7, s7, 2")
    e("s_add_u32 s7, s7, s5")
    e("s_mul_i32 s7, s7, 7200")
    e("s_lshl_b32 s8, s3, 13")
    for arr in range(2):
        for it in range(8):
            e(f"s_add_u32 m0, s8, {arr*32768 + it*1024}")
            e(f"s_add_u32 s9, s7, {it*1024}")
            e(f"buffer_load_dwordx4 v{l16}, s[{36+4*arr}:{39+4*arr}], s9 offen lds")
    e("s_lshl_b32 s10, s4, 2")
    e("s_add_u32 s10, s10, s3")
    e(f"v_and_b32 v{t0}, 31, v{lane}")
    e(f"v_lshrrev_b32 v{t1}, 5, v{lane}")
    e(f"s_mov_b32 s15, {f32(1.0/448)}")
    e(f"s_mov_b32 s60, {f32(-448.0)}")
    SC = 2.0 / (2048 * 448)
    e(f"s_mov_b32 s61, {f32(SC)}")
    e(f"s_mov_b32 s62, {f32(-SC)}")
    e(f"v_mov_b32 v{t2}, {f32(SC/2)}")
    e(f"v_lshlrev_b32 v{t3}, 31, v{lane}")
    e(f"v_xor_b32 v{t3}, v{t3}, v{t2}")
    e(f"v_cvt_pk_bf16_f32 v{vk}, v{t2}, v{t3}")
    for it in range(4):
        e(f"s_add_u32 s11, s10, {it*128}")
        e("s_mul_i32 s12, s11, 2341")
        e("s_lshr_b32 s12, s12, 16")
        e("s_mul_i32 s13, s12, 28")
        e("s_sub_u32 s13, s11, s13")
        e("s_lshl_b32 s12, s12, 5")
        e("s_lshl_b32 s14, s13, 3")
        e(f"v_add_u32 v{t2}, s12, v{t0}")
        e(f"v_cvt_f32_u32 v{t2}, v{t2}")
        e(f"v_lshl_add_u32 v{t3}, v{t1}, 1, s14")
        e(f"v_cmp_eq_u32 vcc, 0, v{t3}")
        e(f"v_cvt_f32_u32 v{t3}, v{t3}")
        for z, off in enumerate((0.0, 1.0, 4.0, 5.0)):
            e(f"v_add_f32 v{q_[z]}, {f32(off)}, v{t3}")
            e(f"v_mul_f32 v{q_[z]}, v{q_[z]}, v{t2}")
            e(f"v_mul_f32 v{q_[4+z]}, s15, v{q_[z]}")
            e(f"v_floor_f32 v{q_[4+z]}, v{q_[4+z]}")
            e(f"v_fma_f32 v{q_[z]}, v{q_[4+z]}, s60, v{q_[z]}")
            e(f"v_mul_f32 v{q_[z]}, s15, v{q_[z]}")
            e(f"v_cos_f32 v{q_[4+z]}, v{q_[z]}")
            e(f"v_sin_f32 v{q_[8+z]}, v{q_[z]}")
            e(f"v_mul_f32 v{q_[4+z]}, s61, v{q_[4+z]}")
            e(f"v_mul_f32 v{q_[8+z]}, s62, v{q_[8+z]}")
            e(f"v_cvt_pk_bf16_f32 v{P+z}, v{q_[4+z]}, v{q_[8+z]}")
        e(f"v_cndmask_b32 v{P}, v{P}, v{vk}, vcc")
        e("s_lshl_b32 s12, s11, 10")
        e(f"s_add_u32 s12, s12, {IDF}")
        e("s_cmp_lt_u32 s11, 392")
        e(f"s_cselect_b32 s12, s12, {OOB}")
        e(f"buffer_store_dwordx4 {vr(P,4)}, v{l16}, s[44:47], s12 offen")
    e(f"v_and_b32 v{i15}, 15, v{lane}")
    e(f"v_lshrrev_b32 v{kk}, 4, v{lane}")
    e("s_cmp_lt_u32 s10, 118")
    e(f"s_cbranch_scc1 {name}_notab")
    e("s_sub_u32 s11, s10, 118")
    e("s_cmp_lt_u32 s11, 8")
    e("s_cselect_b32 s12, 1, 0")
    e("s_lshr_b32 s13, s11, 1")
    e("s_and_b32 s14, s11, 1")
    e("s_cmp_eq_u32 s12, 1")
    e("s_cselect_b32 s13, s13, s14")
    e("s_cselect_b32 s14, s14, 0")
    e(f"s_mov_b32 s63, {f32(1/32)}")
    e(f"s_mov_b32 s64, {f32(16.0)}")
    e(f"s_cselect_b32 s63, {f32(1/64)}, s63")
    e(f"s_cselect_b32 s64, {f32(8.0)}, s64")
    e("s_cselect_b32 s65, 16, 8")
    e("s_lshl_b32 s13, s13, 4")
    e("s_lshl_b32 s14, s14, 5")
    e(f"v_add_u32 v{t2}, s13, v{i15}")
    e(f"v_cvt_f32_u32 v{t2}, v{t2}")
    e(f"v_mul_f32 v{t2}, s63, v{t2}")
    e(f"v_lshrrev_b32 v{t3}, 1, v{kk}")
    e(f"v_mul_u32_u24 v{t3}, s65, v{t3}")
    e(f"v_and_b32 v{t0}, 1, v{kk}")
    e(f"v_lshl_add_u32 v{t3}, v{t0}, 2, v{t3}")
    e(f"v_add_u32 v{t3}, s14, v{t3}")
    e(f"v_cvt_f32_u32 v{t3}, v{t3}")
    for j_ in range(8):
        e(f"v_add_f32 v{ra[j_]}, {f32(float(j_ & 3))}, v{t3}")
        if j_ >= 4:
            e(f"v_add_f32 v{ra[j_]}, s64, v{ra[j_]}")
        e(f"v_mul_f32 v{ra[j_]}, v{ra[j_]}, v{t2}")
        e(f"v_sin_f32 v{ra[8+j_]}, v{ra[j_]}")
        e(f"v_cos_f32 v{ra[j_]}, v{ra[j_]}")
    e("s_lshl_b32 s11, s11, 11")
    e(f"s_add_u32 s11, s11, {F1T}")
    for cs_ in range(2):
        for z in range(4):
            e(f"v_cvt_pk_bf16_f32 v{P+z}, v{ra[8*cs_+2*z]}, v{ra[8*cs_+2*z+1]}")
        e(f"buffer_store_dwordx4 {vr(P,4)}, v{l16}, s[44:47], s11 offen offset:{cs_*1024}")
    A.label(f"{name}_notab")
    e("s_nop 4")
    e(f"v_mul_u32_u24 v{va}, 450, v{i15}")
    e("s_lshl_b32 s11, s3, 2")
    e(f"v_add_u32 v{t0}, s11, v{kk}")
    e(f"v_lshl_add_u32 v{va}, v{t0}, 1, v{va}")
    e(f"v_lshlrev_b32 v{vo}, 13, v{t0}")
    e(f"v_lshl_add_u32 v{vo}, v{i15}, 4, v{vo}")
    e("s_lshl_b32 s12, s5, 11")
    e("s_lshl_b32 s13, s6, 8")
    e("s_add_u32 s12, s12, s13")
    e(f"s_add_u32 s12, s12, {WT}")
    e(f"v_cmp_eq_u32 vcc, 0, v{t0}")
    e(f"v_mov_b32 v{t1}, {OOB}")
    e("s_waitcnt vmcnt(0)")
    e("s_barrier")
    A.reset_counts()
    P2 = [P, R.alloc(4)]
    toks = {}
    def rdw(n_):
        o = (n_ & 1) * 8
        for r_ in range(4):
            e(f"ds_read_u16 v{ra[o+r_]}, v{va} offset:{r_*8192 + n_*32}")
            toks[n_] = e(f"ds_read_u16 v{ra[o+4+r_]}, v{va} offset:{32768 + r_*8192 + n_*32}")
    rdw(0)
    for n_ in range(15):
        A.wait_ld(toks[n_])
        if n_ + 1 < 15: rdw(n_ + 1)
        o = (n_ & 1) * 8
        for r_ in range(4):
            e(f"v_lshl_or_b32 v{P2[n_&1]+r_}, v{ra[o+4+r_]}, 16, v{ra[o+r_]}")
        if n_ == 14:
            e(f"v_cndmask_b32 v{vo}, v{t1}, v{vo}, vcc")
        e(f"buffer_store_dwordx4 {vr(P2[n_&1],4)}, v{vo}, s[44:47], s12 offen")
        e(f"s_add_u32 s12, s12, {16*8192}")
    A.label(f"{name}_end")
    e("s_endpgm")
    return max(nv, R.n)
```

```python
from asmlib import *
from k1 import *

def fft_block(A, lane, LB, barrier, LD="", ST=""):
    e = A.e
    R = Regs(lane + 1)
    i15, g, l16, va, t0, t1, t2, vst, vw = [R.alloc() for _ in range(9)]
    XA = [[[R.alloc(4) for Q in range(2)] for T in range(2)] for c in range(2)]
    F1 = [[R.alloc(4) for cs in range(3)] for Q in range(2)]
    F2 = [[R.alloc(4) for cs in range(3)] for T in range(2)]
    W = [R.alloc(4) for T in range(2)]
    WR = R.alloc(8); WI = R.alloc(8)
    C1 = R.alloc(8); S1 = R.alloc(8); C2 = R.alloc(8); S2 = R.alloc(8)
    DR = R.alloc(8); DI = R.alloc(8)
    TR = R.alloc(8); TI = R.alloc(8)
    ZR = R.alloc(4); ZI = R.alloc(4)
    e(f"v_and_b32 v{i15}, 15, v{lane}")
    e(f"v_lshrrev_b32 v{g}, 4, v{lane}")
    e(f"v_lshlrev_b32 v{l16}, 4, v{lane}")
    e(f"v_lshlrev_b32 v{va}, 4, v{i15}")
    e(f"v_lshl_add_u32 v{va}, v{g}, 9, v{va}")
    e("s_lshl_b32 s4, s2, 13")
    e("s_add_u32 s5, s4, 4096")
    e("s_cmp_eq_u32 s2, 224")
    e("s_cselect_b32 s4, 4096, s4")
    e(f"s_cselect_b32 s5, {OOB}, s5")
    e("s_cmp_eq_u32 s2, 0")
    e(f"s_cselect_b32 s5, {OOB}, s5")
    e(f"s_add_u32 s6, s4, {X1F}")
    e(f"s_add_u32 s7, s5, {X1F}")
    e(f"s_add_u32 s8, s4, {Y1T}")
    e(f"s_add_u32 s9, s5, {Y1T}")
    e("s_lshl_b32 s10, s3, 12")
    e(f"s_add_u32 s10, s10, {F1T}")
    e("s_lshl_b32 s11, s2, 13")
    e("s_lshl_b32 s12, s3, 11")
    e("s_add_u32 s11, s11, s12")
    e(f"s_add_u32 s11, s11, {WT}")
    e(f"s_mov_b32 s12, {F2T}")
    e("s_waitcnt lgkmcnt(0)")
    mk_srd(A, 44, 34, WS_BYTES)
    tk = {}
    for Q in range(2):
        for cs in range(2):
            tk['f1', Q, cs] = e(f"buffer_load_dwordx4 {vr(F1[Q][cs],4)}, v{l16}, s[44:47], s10 offen offset:{Q*2048+cs*1024}{LD}")
        for T in range(2):
            for c in range(2):
                tk['x', c, T, Q] = e(f"buffer_load_dwordx4 {vr(XA[c][T][Q],4)}, v{va}, s[44:47], s{6+c} offen offset:{Q*2048+T*256}{LD}")
    for T in range(2):
        for cs in range(2):
            tk['f2'] = e(f"buffer_load_dwordx4 {vr(F2[T][cs],4)}, v{l16}, s[44:47], s12 offen offset:{T*2048+cs*1024}{LD}")
    for T in range(2):
        tk['w'] = e(f"buffer_load_dwordx4 {vr(W[T],4)}, v{l16}, s[44:47], s11 offen offset:{T*1024}{LD}")
    e("s_lshl_b32 s13, s3, 4")
    e(f"v_add_u32 v{t0}, s13, v{i15}")
    e(f"v_cvt_f32_u32 v{t0}, v{t0}")
    e(f"v_mul_f32 v{t0}, {f32(1/2048)}, v{t0}")
    e(f"v_lshlrev_b32 v{t1}, 2, v{g}")
    e(f"v_add_u32 v{vst}, s13, v{t1}")
    e(f"v_cvt_f32_u32 v{t1}, v{t1}")
    e(f"v_mul_f32 v{t1}, v{t1}, v{t0}")
    for j in range(8):
        e(f"v_fma_f32 v{C1+j}, v{t0}, {f32(float(16*(j>>2)+(j&3)))}, v{t1}" if False else
          f"v_fmamk_f32 v{C1+j}, v{t0}, {f32(float(16*(j>>2)+(j&3)))}, v{t1}")
    for j in range(8):
        e(f"v_sin_f32 v{S1+j}, v{C1+j}")
        e(f"v_cos_f32 v{C1+j}, v{C1+j}")
    e(f"v_cvt_f32_u32 v{t0}, v{i15}")
    e(f"v_mul_f32 v{t0}, {f32(1/2048)}, v{t0}")
    e(f"v_add_f32 v{t2}, {f32(16/2048)}, v{t0}")
    e(f"v_cvt_f32_u32 v{t1}, v{vst}")
    for j in range(8):
        tt = t2 if j >> 2 else t0
        e(f"v_add_f32 v{C2+j}, {f32(float(j&3))}, v{t1}")
        e(f"v_mul_f32 v{C2+j}, v{C2+j}, v{tt}")
    for j in range(8):
        e(f"v_sin_f32 v{S2+j}, v{C2+j}")
        e(f"v_cos_f32 v{C2+j}, v{C2+j}")
    e(f"v_lshlrev_b32 v{vst}, 1, v{vst}")
    e(f"v_lshl_add_u32 v{vst}, v{i15}, 7, v{vst}")
    e(f"v_and_b32 v{t0}, 1, v{g}")
    e(f"v_lshlrev_b32 v{t0}, 8, v{t0}")
    e(f"v_lshl_add_u32 v{t0}, v{i15}, 4, v{t0}")
    e(f"v_lshrrev_b32 v{t1}, 1, v{g}")
    e(f"v_lshl_add_u32 v{t0}, v{t1}, 3, v{t0}")
    e("s_lshl_b32 s14, s3, 9")
    e(f"s_add_u32 s14, s14, {LB}")
    e(f"v_add_u32 v{vw}, s14, v{t0}")
    e(f"v_add_u32 v{va}, {LB}, v{l16}")
    e("s_mov_b32 s15, 0x80008000")
    M = "v_mfma_f32_16x16x32_bf16"
    def mm(d, a, b, first):
        e(f"{M} {vr(d,4)}, {vr(a,4)}, {vr(b,4)}, {'0' if first else vr(d,4)}")
    def cmul(c, s, sgn):
        n1 = " neg_lo:[0,1,0] neg_hi:[0,1,0]"
        for p in range(4):
            e(f"v_pk_mul_f32 {vr(TR+2*p,2)}, {vr(DR+2*p,2)}, {vr(c+2*p,2)}")
            e(f"v_pk_mul_f32 {vr(TI+2*p,2)}, {vr(DI+2*p,2)}, {vr(c+2*p,2)}")
        for p in range(4):
            e(f"v_pk_fma_f32 {vr(TR+2*p,2)}, {vr(DI+2*p,2)}, {vr(s+2*p,2)}, {vr(TR+2*p,2)}" + (n1 if sgn > 0 else ""))
            e(f"v_pk_fma_f32 {vr(TI+2*p,2)}, {vr(DR+2*p,2)}, {vr(s+2*p,2)}, {vr(TI+2*p,2)}" + (n1 if sgn < 0 else ""))
        for p in range(4):
            e(f"v_cvt_pk_bf16_f32 v{ZR+p}, v{TR+2*p}, v{TR+2*p+1}")
            e(f"v_cvt_pk_bf16_f32 v{ZI+p}, v{TI+2*p}, v{TI+2*p+1}")
    for Q in range(2):
        A.wait_vm(tk['f1', Q, 1])
        for z in range(4):
            e(f"v_xor_b32 v{F1[Q][2]+z}, s15, v{F1[Q][1]+z}")
        for T in range(2):
            A.wait_vm(tk['x', 0, T, Q])
            mm(DR+4*T, XA[0][T][Q], F1[Q][0], Q == 0)
            mm(DI+4*T, XA[0][T][Q], F1[Q][2], Q == 0)
        for T in range(2):
            A.wait_vm(tk['x', 1, T, Q])
            mm(DR+4*T, XA[1][T][Q], F1[Q][1], False)
            mm(DI+4*T, XA[1][T][Q], F1[Q][0], False)
    A.wait_vm(tk['f2'])
    for T in range(2):
        for z in range(4):
            e(f"v_xor_b32 v{F2[T][2]+z}, s15, v{F2[T][1]+z}")
    cmul(C1, S1, -1)
    for T in range(2):
        mm(DR+4*T, F2[T][0], ZR, True)
        mm(DI+4*T, F2[T][0], ZI, True)
    for T in range(2):
        mm(DR+4*T, F2[T][1], ZI, False)
        mm(DI+4*T, F2[T][2], ZR, False)
    A.wait_vm(tk['w'])
    for j in range(8):
        e(f"v_lshlrev_b32 v{WR+j}, 16, v{W[j>>2]+(j&3)}")
        e(f"v_and_b32 v{WI+j}, 0xffff0000, v{W[j>>2]+(j&3)}")
    cmul(WR, WI, +1)
    for T in range(2):
        mm(DR+4*T, ZR, F2[T][0], True)
        mm(DI+4*T, ZI, F2[T][0], True)
    for T in range(2):
        mm(DR+4*T, ZI, F2[T][2], False)
        mm(DI+4*T, ZR, F2[T][1], False)
    cmul(C2, S2, +1)
    for T in range(2):
        e(f"ds_write_b64 v{vw}, {vr(ZR+2*T,2)} offset:{T*2048}")
        e(f"ds_write_b64 v{vw}, {vr(ZI+2*T,2)} offset:{4096+T*2048}")
    A.wait_all_ld()
    barrier()
    for Q in range(2):
        for c in range(2):
            for T in range(2):
                tk['u', c, T, Q] = e(f"ds_read_b128 {vr(XA[c][T][Q],4)}, v{va} offset:{(c*2+T)*2048+Q*1024}")
    for Q in range(2):
        for T in range(2):
            A.wait_ld(tk['u', 0, T, Q])
            mm(DR+4*T, F1[Q][0], XA[0][T][Q], Q == 0)
            mm(DI+4*T, F1[Q][1], XA[0][T][Q], Q == 0)
        for T in range(2):
            A.wait_ld(tk['u', 1, T, Q])
            mm(DR+4*T, F1[Q][2], XA[1][T][Q], False)
            mm(DI+4*T, F1[Q][0], XA[1][T][Q], False)
    for p in range(4):
        e(f"v_cvt_pk_bf16_f32 v{ZR+p}, v{DR+2*p}, v{DR+2*p+1}")
        e(f"v_cvt_pk_bf16_f32 v{ZI+p}, v{DI+2*p}, v{DI+2*p+1}")
    for T in range(2):
        e(f"buffer_store_dwordx2 {vr(ZR+2*T,2)}, v{vst}, s[44:47], s8 offen offset:{T*2048}{ST}")
        e(f"buffer_store_dwordx2 {vr(ZI+2*T,2)}, v{vst}, s[44:47], s9 offen offset:{T*2048}{ST}")
    e("s_endpgm")
    return R.n

PB = WS_END

def gemm_block(A, lane, nf, ni, epi, PD, bar_at=None, LD="", ST=""):
    e = A.e
    R = Regs(lane + 1)
    t0, t1, t2, l16, vw2, vy, tid = [R.alloc() for _ in range(7)]
    ta = [R.alloc(), R.alloc()]
    acc = [[R.alloc(16) for u in range(2)] for h in range(2)]
    LF = [[R.alloc(4) for h in range(2)] for p in range(2)]
    GF = [[R.alloc(4) for h in range(2)] for p in range(PD)]
    XR = R.alloc(8)
    BR = R.alloc(8)
    e("s_and_b32 s4, s2, 7")
    e("s_lshr_b32 s5, s2, 3")
    e("s_and_b32 s6, s5, 3")
    e("s_lshr_b32 s7, s5, 2")
    e("s_lshl_b32 s8, s4, 2")
    e("s_add_u32 s8, s8, s6")
    e(f"v_lshrrev_b32 v{t0}, 3, v{lane}")
    e(f"v_and_b32 v{t1}, 7, v{lane}")
    e(f"v_lshlrev_b32 v{t2}, 1, v{t0}")
    e(f"v_and_b32 v{t2}, 4, v{t2}")
    e(f"v_xor_b32 v{t2}, v{t2}, v{t1}")
    e(f"v_lshlrev_b32 v{t2}, 4, v{t2}")
    e(f"v_mad_u32_u24 v{vw2}, v{t0}, 896, v{t2}" if False else f"v_mul_u32_u24 v{vw2}, 896, v{t0}")
    e(f"v_add_u32 v{vw2}, v{vw2}, v{t2}")
    e(f"v_lshl_add_u32 v{vy}, v{t0}, 12, v{t2}")
    e(f"v_lshlrev_b32 v{l16}, 4, v{lane}")
    e("s_lshl_b32 s9, s7, 7")
    e(f"s_mul_i32 s10, s3, {28*16*896}")
    e("s_add_u32 s10, s10, s9")
    e("s_mul_i32 s11, s8, 229376")
    e("s_mul_i32 s12, s3, 28672")
    e("s_add_u32 s11, s11, s12")
    e("s_add_u32 s12, s11, 114688")
    e(f"s_mul_i32 s13, s3, {7*16*4096}")
    e("s_lshl_b32 s14, s8, 7")
    e("s_add_u32 s13, s13, s14")
    e(f"s_add_u32 s13, s13, {Y1T}")
    e("s_mul_i32 s14, s7, 57344")
    e("s_mul_i32 s15, s3, 7168")
    e("s_add_u32 s14, s14, s15")
    e(f"s_add_u32 s14, s14, {IDF}")
    e("s_add_u32 s15, s14, 28672")
    e(f"s_mul_i32 s57, s3, {PD*2048}")
    e("s_waitcnt lgkmcnt(0)")
    mk_srd(A, 44, 34, WS_BYTES)
    mk_srd(A, 40, 28, 1605632)
    mk_srd(A, 36, 16, 1835008)
    mk_srd(A, 48, 30, 896)
    mk_srd(A, 52, 32, 1835008)
    steps = [('i', k) for k in range(ni)] + [('f', k) for k in range(nf)]
    if epi == 'full':
        steps = [('f', k) for k in range(nf)] + [('i', k) for k in range(ni)]
    N = len(steps)
    tok = {}
    def issue(n):
        if n >= N: return
        kind, k = steps[n]
        sl = n % PD
        for hf in range(2):
            e(f"s_add_u32 m0, s57, {sl*2048 + hf*1024}")
            if kind == 'f':
                e(f"s_add_u32 s58, s10, {(k*16+hf*8)*896}")
                e(f"buffer_load_dwordx4 v{vw2}, s[40:43], s58 offen lds")
            else:
                e(f"s_add_u32 s58, s13, {(k*16+hf*8)*4096}")
                e(f"buffer_load_dwordx4 v{vy}, s[44:47], s58 offen lds{LD}")
        for hf in range(2):
            sb = (11 + hf) if kind == 'f' else (14 + hf)
            if k % 4 == 0 and k:
                e(f"s_add_u32 s{sb}, s{sb}, 4096")
            tok[n] = e(f"buffer_load_dwordx4 {vr(GF[sl][hf],4)}, v{l16}, s[44:47], s{sb} offen offset:{(k%4)*1024}{LD}")
    for n in range(PD):
        issue(n)
    e(f"v_and_b32 v{tid}, 255, v0")
    e(f"v_lshrrev_b32 v{t0}, 2, v{tid}")
    e(f"v_and_b32 v{t1}, 3, v{tid}")
    e(f"v_mul_u32_u24 v{t2}, 28672, v{t0}")
    e(f"v_lshl_add_u32 v{t2}, v{t1}, 5, v{t2}")
    e("s_mul_i32 s59, s8, 896")
    e("s_add_u32 s59, s59, s9")
    e(f"s_add_u32 s60, s59, {PB}")
    e(f"v_mul_u32_u24 v{tid}, 272, v{t0}")
    e(f"v_lshl_add_u32 v{tid}, v{t1}, 6, v{tid}")
    e(f"v_lshlrev_b32 v{t1}, 5, v{t1}")
    def epi_loads():
        for hf in range(2):
            if epi == 'final':
                tok['x'] = e(f"buffer_load_dwordx4 {vr(XR+4*hf,4)}, v{t2}, s[44:47], s60 offen offset:{hf*16}{LD}")
            else:
                e(f"buffer_load_dwordx4 {vr(XR+4*hf,4)}, v{t2}, s[36:39], s59 offen offset:{hf*16}")
                tok['x'] = e(f"buffer_load_dwordx4 {vr(BR+4*hf,4)}, v{t1}, s[48:51], s9 offen offset:{hf*16}")
    e(f"v_bfe_u32 v{t0}, v{lane}, 2, 2")
    e(f"v_lshrrev_b32 v{ta[1]}, 5, v{lane}")
    e(f"v_lshl_add_u32 v{t0}, v{ta[1]}, 2, v{t0}")
    e(f"v_lshlrev_b32 v{t0}, 7, v{t0}")
    e(f"v_bfe_u32 v{ta[1]}, v{lane}, 3, 1")
    e(f"v_lshl_add_u32 v{t0}, v{ta[1]}, 6, v{t0}")
    e(f"v_bfe_u32 v{ta[1]}, v{lane}, 4, 1")
    e(f"v_lshl_add_u32 v{t0}, v{ta[1]}, 5, v{t0}")
    e(f"v_and_b32 v{ta[1]}, 3, v{lane}")
    e(f"v_lshl_add_u32 v{t0}, v{ta[1]}, 3, v{t0}")
    e(f"v_add_u32 v{ta[0]}, s57, v{t0}")
    e(f"v_xor_b32 v{ta[1]}, 64, v{ta[0]}")
    rt = {}
    def rd(n):
        if n >= N: return
        A.wait_vm(tok[n])
        sl = n % PD
        for h in range(2):
            f = LF[n & 1][h]
            e(f"ds_read_b64_tr_b16 {vr(f,2)}, v{ta[h]} offset:{sl*2048}")
            rt[n] = e(f"ds_read_b64_tr_b16 {vr(f+2,2)}, v{ta[h]} offset:{sl*2048+1024}")
    rd(0)
    for n in range(N):
        kind, k = steps[n]
        A.wait_ld(rt[n])
        rd(n + 1)
        L = LF[n & 1]; G = GF[n % PD]
        for h in range(2):
            for u in range(2):
                a, b = (L[h], G[u]) if kind == 'f' else (G[h], L[u])
                c = '0' if n == 0 else vr(acc[h][u], 16)
                e(f"v_mfma_f32_32x32x16_bf16 {vr(acc[h][u],16)}, {vr(a,4)}, {vr(b,4)}, {c}")
        issue(n + PD)
        if n == max(N - PD, 0): epi_loads()
        if bar_at is not None and n == bar_at: e("s_barrier")
    e(f"v_and_b32 v{t0}, 31, v{lane}")
    e(f"v_mul_u32_u24 v{t0}, 272, v{t0}")
    e(f"v_lshrrev_b32 v{t1}, 5, v{lane}")
    e(f"v_lshl_add_u32 v{t0}, v{t1}, 4, v{t0}")
    e(f"s_mul_i32 s61, s3, {64*272}")
    e(f"v_add_u32 v{t0}, s61, v{t0}")
    e("s_barrier")
    for h in range(2):
        for u in range(2):
            for q in range(4):
                e(f"ds_write_b128 v{t0}, {vr(acc[h][u]+4*q,4)} offset:{u*32*272 + h*128 + q*32}")
    A.wait_all_ld()
    e("s_barrier")
    S = acc
    flat = [acc[0][0], acc[0][1], acc[1][0], acc[1][1]]
    tkk = []
    for q in range(4):
        for w in range(4):
            tkk.append(e(f"ds_read_b128 {vr(flat[w]+4*q,4)}, v{tid} offset:{w*64*272 + q*16}"))
    A.wait_vm(tok['x'])
    O = LF[0][0]
    assert LF[0][1] == O + 4
    for q in range(4):
        A.wait_ld(tkk[4*q+3])
        for p in range(2):
            a = [f + 4*q + 2*p for f in flat]
            e(f"v_pk_add_f32 {vr(a[0],2)}, {vr(a[0],2)}, {vr(a[1],2)}")
            e(f"v_pk_add_f32 {vr(a[2],2)}, {vr(a[2],2)}, {vr(a[3],2)}")
            xr = XR + 2*q + p
            e(f"v_lshlrev_b32 v{a[1]}, 16, v{xr}")
            e(f"v_and_b32 v{a[1]+1}, 0xffff0000, v{xr}")
            e(f"v_pk_add_f32 {vr(a[0],2)}, {vr(a[0],2)}, {vr(a[2],2)}")
            if epi != 'final':
                br = BR + 2*q + p
                e(f"v_lshlrev_b32 v{a[3]}, 16, v{br}")
                e(f"v_and_b32 v{a[3]+1}, 0xffff0000, v{br}")
                e(f"v_pk_add_f32 {vr(a[0],2)}, {vr(a[0],2)}, {vr(a[3],2)}")
            e(f"v_pk_add_f32 {vr(a[0],2)}, {vr(a[0],2)}, {vr(a[1],2)}")
            e(f"v_cvt_pk_bf16_f32 v{O+2*q+p}, v{a[0]}, v{a[0]+1}")
    for hf in range(2):
        if epi == 'part':
            e(f"buffer_store_dwordx4 {vr(O+4*hf,4)}, v{t2}, s[44:47], s60 offen offset:{hf*16}{ST}")
        else:
            e(f"buffer_store_dwordx4 {vr(O+4*hf,4)}, v{t2}, s[52:55], s59 offen offset:{hf*16}")
    e("s_endpgm")
    return R.n

def prolog(A, name, nwg):
    header(A, name)
    A.e(f"s_cmp_ge_u32 s2, {nwg}")
    A.e(f"s_cbranch_scc1 {name}_end")
    load_args(A)
    A.e("v_lshrrev_b32 v2, 6, v0")
    A.e("v_and_b32 v1, 63, v0")
    A.e("v_readfirstlane_b32 s3, v2")
    A.e("s_nop 3")

def epilog(A, name):
    A.label(f"{name}_end")
    A.e("s_endpgm")
```

```python
import sys
from asmlib import *
from k1 import *
from k2 import *

def build(mode="v1", PD=12, bar_at=17, LD="", ST=""):
    A = Asm()
    L = []
    K = []
    A.raw('.amdgcn_target "amdgcn-amd-amdhsa--gfx950"\n.text')
    nv = gen_k1(A, "k1_kernel", ST)
    L.append(("k1_kernel", 256, 256, K1_LDS)); K.append(kd("k1_kernel", nv, 96))
    if mode == "v1":
        prolog(A, "k2_kernel", 225)
        nv = fft_block(A, 1, 0, lambda: A.e("s_barrier"), LD, ST)
        epilog(A, "k2_kernel")
        L.append(("k2_kernel", 225, 256, 8192)); K.append(kd("k2_kernel", nv, 96))
        prolog(A, "k3_kernel", 224)
        nv = gemm_block(A, 1, 28, 7, 'full', PD, None, LD, ST)
        epilog(A, "k3_kernel")
        L.append(("k3_kernel", 224, 256, max(PD*8192, 69632))); K.append(kd("k3_kernel", nv, 96))
    else:
        gl = max(PD*8192, 69632)
        prolog(A, "k2_kernel", 225)
        A.e("s_cmp_ge_u32 s3, 4")
        A.e("s_cbranch_scc1 k2_fft")
        A.e("s_cmp_ge_u32 s2, 224")
        A.e("s_cbranch_scc1 k2_kernel_end")
        nv = gemm_block(A, 1, 28, 0, 'part', PD, bar_at, LD, ST)
        A.label("k2_fft"); A.reset_counts()
        A.e("s_sub_u32 s3, s3, 4")
        nv = max(nv, fft_block(A, 1, gl, lambda: A.e("s_barrier"), LD, ST))
        epilog(A, "k2_kernel")
        L.append(("k2_kernel", 225, 512, gl + 8192)); K.append(kd("k2_kernel", nv, 96))
        prolog(A, "k3_kernel", 224)
        nv = gemm_block(A, 1, 0, 7, 'final', 7, None, LD, ST)
        epilog(A, "k3_kernel")
        L.append(("k3_kernel", 224, 256, 69632)); K.append(kd("k3_kernel", nv, 96))
    hdr = "".join(f"; @launch kernel={n} grid=({g},1,1) block=({b},1,1) lds={l}\n" for n, g, b, l in L)
    return hdr + A.text() + '.section .rodata,"a"\n' + "".join(K)

if __name__ == "__main__":
    out = sys.argv[1]
    kw = {}
    for a in sys.argv[2:]:
        k, v = a.split("=")
        kw[k] = int(v) if v.lstrip("-").isdigit() else v.replace("_", " ")
    open(out, "w").write(build(**kw))
```

```python
import re

TRANS = ("v_exp_f32", "v_log_f32", "v_rcp_f32", "v_rsq_f32", "v_sqrt_f32", "v_sin_f32", "v_cos_f32")
_reg = re.compile(r"\b([vas])(\d+)\b|\b([vas])\[(\d+):(\d+)\]|\b(vcc|m0|exec|scc)\b")


def regs(op):
    out = []
    for m in _reg.finditer(op):
        if m.group(1):
            out.append(m.group(1) + m.group(2))
        elif m.group(3):
            out += [m.group(3) + str(i) for i in range(int(m.group(4)), int(m.group(5)) + 1)]
        else:
            out.append(m.group(6))
    return out


def split_ops(s):
    ops, depth, cur = [], 0, ""
    for ch in s:
        if ch == "[":
            depth += 1
        if ch == "]":
            depth -= 1
        if ch == "," and depth == 0:
            ops.append(cur.strip())
            cur = ""
        else:
            cur += ch
    if cur.strip():
        ops.append(cur.strip())
    return ops


class Ins:
    __slots__ = ("mn", "kind", "w", "r", "c", "ab", "passes", "wide", "pos")


def parse(text):
    t = text.split(";")[0].strip()
    mn, _, rest = t.partition(" ")
    ops = split_ops(rest)
    I = Ins()
    I.mn, I.w, I.r, I.c, I.ab, I.passes, I.wide = mn, [], [], [], [], 0, []
    if mn.startswith("v_mfma"):
        I.kind = "mfma"
        I.passes = 8 if "32x32" in mn else 4
        I.w = regs(ops[0])
        I.ab = regs(ops[1]) + regs(ops[2])
        I.c = regs(ops[3])
        I.r = I.ab + I.c
    elif mn.startswith("v_"):
        I.kind = "valu"
        I.w = regs(ops[0])
        srcs = ops[1:]
        if mn.startswith(("v_add_co", "v_sub_co", "v_addc_co", "v_subb_co")):
            I.w += regs(ops[1])
            srcs = ops[2:]
        for o in srcs:
            I.r += regs(o)
        if mn.startswith(("v_fmac", "v_dot2c", "v_permlane", "v_pk_fmac")) or "d16" in mn:
            I.r += regs(ops[0])
        if mn.startswith("v_permlane"):
            I.w += regs(ops[1])
    elif mn.startswith("ds_"):
        I.kind = "ds"
        if mn.startswith(("ds_read", "ds_bpermute", "ds_permute", "ds_swizzle")):
            I.w = regs(ops[0])
            for o in ops[1:]:
                I.r += regs(o)
        else:
            for o in ops:
                I.r += regs(o)
    elif mn.startswith(("buffer_", "global_")):
        I.kind = "vmem"
        lds = bool(re.search(r"\blds\b", t))
        if "load" in mn and not lds:
            I.w = regs(ops[0])
            for o in ops[1:]:
                I.r += regs(o)
        else:
            for o in ops:
                I.r += regs(o)
            if lds:
                I.r.append("m0")
            if "store" in mn and ("x4" in mn or "x3" in mn):
                I.wide = regs(ops[0]) if mn.startswith("buffer") else regs(ops[1])
    elif mn.startswith("s_"):
        I.kind = "salu"
        if mn.startswith(("s_cmp", "s_cbranch", "s_branch", "s_waitcnt", "s_barrier", "s_nop", "s_endpgm", "s_setprio", "s_sleep")):
            for o in ops:
                I.r += regs(o)
        else:
            I.w = regs(ops[0]) if ops else []
            for o in ops[1:]:
                I.r += regs(o)
    else:
        I.kind = "other"
    return I


class Asm:
    def __init__(self):
        self.lines = []
        self.hist = []
        self.pos = 0
        self.nvm = 0
        self.vm_done = 0
        self.nld = 0
        self.ld_done = 0
        self.nops = 0

    def raw(self, s):
        self.lines.append(s)

    def label(self, name):
        self.lines.append(name + ":")

    def reset_counts(self):
        self.nvm = self.vm_done = self.nld = self.ld_done = 0
        self.hist = []

    def need(self, I):
        n = 0
        W, R = set(I.w), set(I.r)
        for P in self.hist:
            d = self.pos - P.pos - 1
            req = 0
            PW = set(P.w)
            if P.kind == "valu":
                vw = {x for x in PW if x[0] in "va" and x != "vcc"}
                sw = {x for x in PW if x[0] == "s" or x == "vcc"}
                if I.kind == "mfma" and vw & R:
                    req = max(req, 2)
                if P.mn.startswith(TRANS) and I.kind in ("valu", "mfma") and vw & R:
                    req = max(req, 1)
                if P.mn.startswith("v_dot") and (vw & (R | W)) and not (I.mn == P.mn and not (vw & set(I.r[:-len(I.w)]))):
                    req = max(req, 3)
                if sw & R:
                    if I.kind == "valu":
                        req = max(req, 4 if I.mn.startswith(("v_readlane", "v_writelane")) else 2)
                    elif I.kind == "vmem":
                        req = max(req, 5)
                    elif I.kind == "salu":
                        req = max(req, 2)
                if vw & R:
                    if I.mn.startswith(("v_readfirstlane", "v_readlane")):
                        req = max(req, 1)
                    if I.mn.startswith("v_permlane") or "dpp" in I.mn:
                        req = max(req, 2)
                if "exec" in PW and I.kind == "mfma":
                    req = max(req, 4)
            elif P.kind == "mfma":
                big = 12 if P.passes == 8 else 8
                if I.kind == "mfma":
                    if PW & set(I.ab):
                        req = max(req, big)
                    if PW & set(I.c) and not (I.c == P.w and I.passes == P.passes):
                        req = max(req, big - 2)
                    if PW & W and not (I.c == P.w and I.passes == P.passes):
                        req = max(req, big)
                elif PW & (R | W):
                    req = max(req, big)
                if I.kind == "valu" and set(P.c) & W:
                    req = max(req, 7 if P.passes == 8 else 3)
            elif P.kind == "vmem":
                if P.wide and set(P.wide) & W:
                    req = max(req, 2)
            elif P.kind == "salu":
                if "m0" in PW and "m0" in R and I.kind in ("vmem", "ds"):
                    req = max(req, 1)
            n = max(n, req - d)
        return n

    def e(self, text):
        I = parse(text)
        n = self.need(I)
        while n > 0:
            k = min(n, 16)
            self.lines.append(f"    s_nop {k - 1}")
            self.pos += k
            self.nops += k
            n -= k
        I.pos = self.pos
        self.lines.append("    " + text)
        if I.mn == "s_nop":
            self.pos += int(text.split()[1]) + 1
        else:
            self.pos += 1
        self.hist.append(I)
        self.hist = [h for h in self.hist if self.pos - h.pos <= 24]
        if I.kind == "vmem":
            self.nvm += 1
            return self.nvm
        if I.kind == "ds":
            self.nld += 1
            return self.nld
        return None

    def wait_vm(self, tok):
        if tok is None or tok <= self.vm_done:
            return
        n = min(self.nvm - tok, 63)
        self.e(f"s_waitcnt vmcnt({n})")
        self.vm_done = self.nvm - n

    def wait_ld(self, tok):
        if tok is None or tok <= self.ld_done:
            return
        n = min(self.nld - tok, 15)
        self.e(f"s_waitcnt lgkmcnt({n})")
        self.ld_done = self.nld - n

    def wait_all_ld(self):
        self.wait_ld(self.nld)

    def wait_all_vm(self):
        self.wait_vm(self.nvm)

    dbg = False
    nts = 0
    TSB = 32 << 20
    def ts(self, real=False):
        if not self.dbg: return
        assert self.nts < 14
        r = 70 + 2 * self.nts
        self.lines.append(f"    {'s_memrealtime' if real else 's_memtime'} s[{r}:{r+1}]")
        self.nts += 1

    def ts_flush(self, kidx, wave="s3", wofs=0):
        if not self.dbg: return
        self.ts(); n = self.nts
        r = 70 + 2 * n
        self.lines.append(f"    s_memrealtime s[{r}:{r+1}]")
        self.e("s_waitcnt lgkmcnt(0)")
        self.e("s_nop 7"); self.e("s_nop 7")
        self.e("v_mov_b32 v1, 0")
        for i in range(n + 1):
            self.e(f"v_writelane_b32 v1, s{70+2*i}, {i}")
        self.e("s_getreg_b32 s70, hwreg(HW_REG_XCC_ID)")
        self.e("s_getreg_b32 s71, hwreg(HW_REG_HW_ID)")
        self.e("s_lshl_b32 s70, s70, 24")
        self.e("s_and_b32 s71, s71, 0xffffff")
        self.e("s_or_b32 s70, s70, s71")
        self.e("v_writelane_b32 v1, s70, 15")
        self.e("v_and_b32 v0, 63, v0")
        self.e("v_lshlrev_b32 v0, 2, v0")
        self.e("s_lshl_b32 s70, s2, 3")
        self.e(f"s_add_u32 s70, s70, {wave}")
        self.e("s_lshl_b32 s70, s70, 6")
        self.e(f"s_add_u32 s70, s70, {self.TSB + kidx * (1 << 20) + wofs * 64}")
        self.e("s_mov_b64 exec, 0xffff")
        self.e("buffer_store_dword v1, v0, s[44:47], s70 offen")

    def text(self):
        return "\n".join(self.lines) + "\n"


class Regs:
    def __init__(self, start=0, limit=256, pre="v"):
        self.n, self.limit, self.pre = start, limit, pre

    def alloc(self, k=1, align=None):
        a = align or (4 if k >= 4 else (2 if k == 2 else 1))
        self.n = (self.n + a - 1) // a * a
        b = self.n
        self.n += k
        assert self.n <= self.limit, f"out of {self.pre} regs"
        return b


def vr(b, k=1, pre="v"):
    return f"{pre}{b}" if k == 1 else f"{pre}[{b}:{b + k - 1}]"


def sr(b, k=1):
    return vr(b, k, "s")


def kd(name, vgpr, sgpr=102, accum=None):
    acc = accum if accum is not None else (vgpr + 3) // 4 * 4
    return f""".p2align 6
.amdhsa_kernel {name}
  .amdhsa_next_free_vgpr {vgpr}
  .amdhsa_next_free_sgpr {sgpr}
  .amdhsa_accum_offset {acc}
  .amdhsa_group_segment_fixed_size 0
  .amdhsa_kernarg_size 88
  .amdhsa_user_sgpr_count 2
  .amdhsa_user_sgpr_kernarg_segment_ptr 1
  .amdhsa_system_sgpr_workgroup_id_x 1
.end_amdhsa_kernel
"""
```

```python
from asmlib import *
import struct
def f32(x): return "0x%08x" % struct.unpack("<I", struct.pack("<f", x))[0]

HF = 0
X1F = HF + 64 * 112 * 1024
Y1T = X1F + 448 * 4096
WT = Y1T + 448 * 4096
IDF = WT + 225 * 8192
F1T = IDF + 14 * 28 * 1024
F2T = F1T + 16384
WS_END = F2T + 4096
WS_BYTES = 268435456
OOB = 0x10000000

def mk_srd(A, d, src, nbytes):
    A.e(f"s_mov_b32 s{d}, s{src}")
    A.e(f"s_and_b32 s{d+1}, s{src+1}, 0xffff")
    A.e(f"s_mov_b32 s{d+2}, {nbytes}")
    A.e(f"s_mov_b32 s{d+3}, 0x00020000")

def header(A, name):
    A.raw(f".globl {name}\n.p2align 8\n.type {name},@function\n{name}:")
    A.reset_counts()

def load_args(A):
    A.e("s_load_dwordx16 s[16:31], s[0:1], 0")
    A.e("s_load_dwordx2 s[32:33], s[0:1], 64")
    A.e("s_load_dwordx2 s[34:35], s[0:1], 80")

GC0 = -2.0 * 0.7978845608028654 * 1.4426950408889634
GC1 = GC0 * 0.044715

L_W1 = 0
L_DF = 114688
L_XT = L_DF + 28 * 1024
L_CS = L_XT + 16384
L_RS = L_CS + 2048
K1_LDS = L_RS + 1024

def gen_k1(A, name, ST="", NX0=4, NQ1=1, PFW2=1, PRIO=0, HPK=0):
    header(A, name)
    e = A.e
    e("s_cmp_ge_u32 s2, 256")
    e(f"s_cbranch_scc1 {name}_end")
    load_args(A)
    A.nts = 0; A.ts(True); A.ts()
    R = Regs(1)
    lane = R.alloc()
    t0, t1, t2, t3 = [R.alloc() for _ in range(4)]
    e(f"v_lshrrev_b32 v{t0}, 6, v0")
    e(f"v_and_b32 v{lane}, 63, v0")
    e(f"v_readfirstlane_b32 s3, v{t0}")
    e("s_cmp_ge_u32 s2, 224")
    e(f"s_cbranch_scc1 {name}_misc")
    MF = "v_mfma_f32_32x32x16_bf16"
    MS = "v_mfma_f32_16x16x32_bf16"
    def mix(x, y):
        o = []
        nx, ny = len(x), len(y)
        i = j_ = 0
        while i < nx or j_ < ny:
            if j_ >= ny or (i < nx and i * ny <= j_ * nx): o.append(x[i]); i += 1
            else: o.append(y[j_]); j_ += 1
        return o
    l16, hh, t31 = [R.alloc() for _ in range(3)]
    SEL = R.alloc(4); HP = R.alloc(8); g8 = R.alloc(8); PC = R.alloc(2); PS = R.alloc(2)
    g = [g8 + i for i in range(8)]
    ta = [R.alloc() for _ in range(4)]
    e("s_and_b32 s69, s3, 3")
    e("s_and_b32 s4, s2, 7")
    e("s_lshr_b32 s5, s2, 3")
    e("s_and_b32 s6, s5, 1")
    e("s_bfe_u32 s12, s5, 0x10001")
    e("s_lshr_b32 s13, s5, 2")
    e("s_and_b32 s7, s4, 1")
    e("s_mul_i32 s7, s7, 7")
    e("s_add_u32 s7, s7, s13")
    e("s_lshr_b32 s8, s4, 1")
    e("s_lshl_b32 s8, s8, 1")
    e("s_add_u32 s8, s8, s12")
    e("s_lshl_b32 s8, s8, 2")
    e("s_add_u32 s8, s8, s69")
    e(f"v_lshrrev_b32 v{t0}, 3, v{lane}")
    e(f"v_and_b32 v{t1}, 7, v{lane}")
    def common2():
        e(f"v_lshlrev_b32 v{l16}, 4, v{lane}")
        e(f"v_and_b32 v{t31}, 31, v{lane}")
        e(f"v_lshrrev_b32 v{hh}, 5, v{lane}")
        e(f"s_mov_b32 s15, {f32(1.0/448)}")
        e("s_lshl_b32 s9, s69, 12")
        e(f"s_add_u32 s9, s9, {L_XT}")
        e("s_lshl_b32 s63, s8, 1")
        e("s_add_u32 s63, s63, s6")
        e("s_mul_i32 s63, s63, 114688")
        e("s_lshl_b32 s64, s7, 13")
        e("s_add_u32 s63, s63, s64")
        e("s_lshl_b32 s64, s6, 12")
        e("s_add_u32 s63, s63, s64")
        e("s_xor_b32 s64, s63, 4096")
        e("s_lshl_b32 s62, s69, 8")
        e(f"s_add_u32 s62, s62, {L_RS}")
    def common3():
        e(f"v_bfe_u32 v{t0}, v{lane}, 2, 2")
        e(f"v_lshl_add_u32 v{t1}, v{hh}, 3, v{t0}")
        e(f"v_lshlrev_b32 v{t1}, 7, v{t1}")
        e(f"v_bfe_u32 v{t2}, v{lane}, 3, 1")
        e(f"v_lshl_add_u32 v{t1}, v{t2}, 6, v{t1}")
        e(f"v_bfe_u32 v{t2}, v{lane}, 4, 1")
        e(f"v_lshl_add_u32 v{t1}, v{t2}, 5, v{t1}")
        e(f"v_and_b32 v{t2}, 3, v{lane}")
        e(f"v_lshl_add_u32 v{ta[0]}, v{t2}, 3, v{t1}")
        e(f"v_lshrrev_b32 v{t0}, 2, v{lane}")
        e(f"v_xor_b32 v{t0}, v{t0}, v{lane}")
        e(f"v_and_b32 v{t0}, 4, v{t0}")
        e(f"v_cmp_eq_u32 vcc, 0, v{t0}")
        e(f"v_mov_b32 v{t0}, 0x3f803f80")
        for i in range(4):
            e(f"v_cndmask_b32 v{SEL+i}, 0, v{t0}, vcc")
    def gelu(b, a, pk, qs):
        S = []
        for q in qs:
            if pk:
                ix = [a + 4 * q, a + 4 * q + 2]
                tm = [g[(q & 1) * 4], g[(q & 1) * 4 + 2]]
                S += [f"v_pk_mul_f32 {vr(t,2)}, {vr(x,2)}, {vr(x,2)}" for x, t in zip(ix, tm)]
                S += [f"v_pk_fma_f32 {vr(t,2)}, {vr(t,2)}, {vr(PC,2)}, {vr(PC,2)} op_sel:[0,0,1] op_sel_hi:[1,0,1]" for t in tm]
                S += [f"v_pk_mul_f32 {vr(t,2)}, {vr(t,2)}, {vr(x,2)}" for x, t in zip(ix, tm)]
                for t in tm: S += [f"v_exp_f32 v{t}, v{t}", f"v_exp_f32 v{t+1}, v{t+1}"]
                S += [f"v_pk_fma_f32 {vr(t,2)}, {vr(t,2)}, {vr(PS,2)}, {vr(PS,2)} op_sel_hi:[1,0,0]" for t in tm]
                for t in tm: S += [f"v_rcp_f32 v{t}, v{t}", f"v_rcp_f32 v{t+1}, v{t+1}"]
                S += [f"v_pk_mul_f32 {vr(t,2)}, {vr(t,2)}, {vr(x,2)}" for x, t in zip(ix, tm)]
            else:
                ix = [a + 4 * q + i for i in range(4)]
                tt = g[(q & 1) * 4:(q & 1) * 4 + 4]
                tm = [tt[0], tt[2]]
                Z = list(zip(ix, tt))
                S += [f"v_mul_f32 v{t}, v{x}, v{x}" for x, t in Z]
                S += [f"v_fma_f32 v{t}, v{t}, v{PC}, v{PC+1}" for x, t in Z]
                S += [f"v_mul_f32 v{t}, v{t}, v{x}" for x, t in Z]
                S += [f"v_exp_f32 v{t}, v{t}" for x, t in Z]
                S += [f"v_fma_f32 v{t}, v{t}, v{PS}, v{PS}" for x, t in Z]
                S += [f"v_rcp_f32 v{t}, v{t}" for x, t in Z]
                S += [f"v_mul_f32 v{t}, v{t}, v{x}" for x, t in Z]
            S += [f"v_cvt_pk_bf16_f32 v{HP+2*q+i}, v{tm[i]}, v{tm[i]+1}" for i in range(2)]
            if q & 1:
                o = (2 * b + (q >> 1)) * 1024
                S.append(f"buffer_store_dwordx4 {vr(HP+4*(q>>1),4)}, v{l16}, s[44:47], s{63 if o < 4096 else 64} offen offset:{o % 4096}{ST}")
        return S
    def gelu8(b, a, h_):
        Z = [(a + 8 * h_ + i, g[i]) for i in range(8)]
        S = [f"v_mul_f32 v{t}, v{x}, v{x}" for x, t in Z]
        S += [f"v_fma_f32 v{t}, v{t}, v{PC}, v{PC+1}" for x, t in Z]
        for x, t in Z: S += [f"v_mul_f32 v{t}, v{t}, v{x}"]
        S2 = []
        for x, t in Z: S2 += [f"v_exp_f32 v{t}, v{t}"]
        S3 = [f"v_fma_f32 v{t}, v{t}, v{PS}, v{PS}" for x, t in Z]
        S4 = [f"v_rcp_f32 v{t}, v{t}" for x, t in Z]
        S5 = [f"v_mul_f32 v{t}, v{t}, v{x}" for x, t in Z]
        S = S[:18] + mix(S2[:6], S[18:]) + S2[6:] if False else S + S2
        S += S3[:2] + mix(S4[:6], S3[2:]) + mix(S4[6:], S5[:2]) + S5[2:]
        S += [f"v_cvt_pk_bf16_f32 v{HP+4*h_+i}, v{g[2*i]}, v{g[2*i+1]}" for i in range(4)]
        o = (2 * b + h_) * 1024
        S.append(f"buffer_store_dwordx4 {vr(HP+4*h_,4)}, v{l16}, s[44:47], s{63 if o < 4096 else 64} offen offset:{o % 4096}{ST}")
        return S
    pcs = [f"v_mul_f32 v{PC+1}, {f32(GC0)}, v{PS+1}", f"v_mul_f32 v{PC}, v{PS+1}, v{PS+1}",
           f"v_mul_f32 v{PC}, v{PC}, v{PC+1}", f"v_mul_f32 v{PC}, {f32(0.044715)}, v{PC}"]
    XOFF = [0, L_DF - L_XT]
    Rsave = R.n
    e("s_cmp_ge_u32 s3, 4")
    e(f"s_cbranch_scc1 {name}_help")
    XF = R.alloc(112)
    acc = [R.alloc(16), R.alloc(16)]
    GR = R.alloc(16); SM = R.alloc(4)
    NB = 8
    AF = [R.alloc(4) for _ in range(NB)]
    AX = R.alloc(4); BX = R.alloc(4)
    xw0, xw1, vdf = HP, HP + 1, HP + 2
    xr = [acc[0] + i for i in range(4)]
    vxo, vxc = acc[0] + 4, acc[0] + 5
    vst, vrs, vgr, vax, vxa, vxb = [R.alloc() for _ in range(6)]
    if PRIO: e(f"s_setprio {PRIO}")
    e("s_lshl_b32 s9, s6, 10")
    e("s_add_u32 s9, s9, s8")
    e("s_mul_i32 s52, s9, 896")
    for i in range(1, 4):
        e(f"s_add_u32 s{52+i}, s52, {i*229376}")
    e("s_lshl_b32 s59, s13, 7")
    e(f"v_mul_u32_u24 v{vxo}, 28672, v{t0}")
    e(f"v_lshl_add_u32 v{vxo}, v{t1}, 4, v{vxo}")
    e("s_waitcnt lgkmcnt(0)")
    mk_srd(A, 36, 16, 1835008)
    mk_srd(A, 44, 34, WS_BYTES)
    xtok = {}
    def xload(c):
        e(f"v_add_u32 v{vxc}, s59, v{vxo}")
        for i in range(4):
            xtok[c, i] = e(f"buffer_load_dwordx4 {vr(XF+16*c+4*i,4)}, v{vxc}, s[36:39], s{52+i} offen")
        e("s_add_u32 s59, s59, 128")
        e("s_cmp_eq_u32 s59, 896")
        e("s_cselect_b32 s59, 0, s59")
    for c in range(NX0): xload(c)
    A.ts()
    common2()
    e(f"v_lshrrev_b32 v{t2}, 1, v{t0}")
    e(f"v_xor_b32 v{t2}, v{t2}, v{t1}")
    e(f"v_lshlrev_b32 v{t2}, 4, v{t2}")
    e(f"v_lshl_add_u32 v{xw0}, v{t0}, 7, v{t2}")
    e(f"v_add_u32 v{xw0}, s9, v{xw0}")
    e(f"v_xor_b32 v{xw1}, 64, v{xw0}")
    e(f"v_bfe_u32 v{t2}, v{lane}, 1, 3")
    e(f"v_xor_b32 v{t2}, v{t2}, v{hh}")
    e(f"v_lshlrev_b32 v{t2}, 4, v{t2}")
    e(f"v_lshl_add_u32 v{xr[0]}, v{t31}, 7, v{t2}")
    e(f"v_add_u32 v{xr[0]}, s9, v{xr[0]}")
    for q in range(1, 4):
        e(f"v_xor_b32 v{xr[q]}, {q*32}, v{xr[0]}")
    common3()
    e(f"v_xor_b32 v{ta[1]}, 64, v{ta[0]}")
    e(f"v_add_u32 v{ta[2]}, 57344, v{ta[0]}")
    e(f"v_add_u32 v{ta[3]}, 57344, v{ta[1]}")
    e(f"v_lshrrev_b32 v{t0}, 3, v{t31}")
    e(f"v_lshlrev_b32 v{t0}, 10, v{t0}")
    e(f"v_lshl_add_u32 v{t0}, v{t31}, 4, v{t0}")
    e(f"v_bfe_u32 v{t1}, v{t31}, 2, 1")
    e(f"v_lshl_add_u32 v{t0}, v{t1}, 9, v{t0}")
    e(f"v_and_b32 v{t1}, 3, v{t31}")
    e(f"v_lshl_add_u32 v{t0}, v{t1}, 2, v{t0}")
    e(f"v_add_u32 v{vgr}, s9, v{t0}")
    for a_ in (AX, BX):
        e(f"v_mov_b32 v{a_+2}, 0")
        e(f"v_mov_b32 v{a_+3}, 0")
    e("s_lshl_b32 s14, s7, 5")
    e(f"v_add_u32 v{t0}, s14, v{t31}")
    e(f"v_cmp_eq_u32 vcc, 0, v{t0}")
    e(f"v_mov_b32 v{t3}, 0x43e0")
    e(f"v_mov_b32 v{AX+1}, 0")
    e(f"v_cndmask_b32 v{AX}, 0, v{t3}, vcc")
    e(f"v_add_u32 v{vdf}, {L_DF}, v{l16}")
    e(f"v_lshlrev_b32 v{vax}, 3, v{t31}")
    e(f"v_add_u32 v{vax}, {L_CS}, v{vax}")
    e(f"v_add_u32 v{vxa}, s9, v{l16}")
    e(f"v_add_u32 v{vxb}, {XOFF[1]}, v{vxa}")
    e(f"v_lshlrev_b32 v{vst}, 12, v{t31}")
    e(f"v_lshl_add_u32 v{vst}, v{hh}, 9, v{vst}")
    e("s_lshl_b32 s67, s7, 17")
    e("s_lshl_b32 s68, s6, 11")
    e("s_add_u32 s67, s67, s68")
    e("s_lshl_b32 s68, s8, 4")
    e("s_add_u32 s67, s67, s68")
    e(f"s_add_u32 s67, s67, {X1F}")
    e(f"v_lshl_add_u32 v{vrs}, v{hh}, 4, s62")
    D = acc[1]
    xt = {}; ft = {}
    def trw(c, i):
        A.wait_vm(xtok[c, i])
        e(f"ds_write_b128 v{xw1 if i&1 else xw0}, {vr(XF+16*c+4*i,4)} offset:{i*1024}")
    def trr(c, q): xt[4*c+q] = e(f"ds_read_b128 {vr(XF+16*c+4*q,4)}, v{xr[q]}")
    def dfr(c, q): ft[4*c+q] = e(f"ds_read_b128 {vr(AF[(4*c+q)%8],4)}, v{vdf} offset:{(4*c+q)*1024}")
    A.ts()
    e("s_barrier")
    A.ts()
    for q in range(4): dfr(0, q)
    for i in range(4): trw(0, i)
    for q in range(4): trr(0, q)
    A.ts()
    for c in range(7):
        ops = []
        if c < 6:
            ops = [(lambda i=i: trw(c + 1, i)) for i in range(4)] + [(lambda q=q: trr(c + 1, q)) for q in range(4)] + [(lambda q=q: dfr(c + 1, q)) for q in range(4)]
        if c + NX0 < 7: xload(c + NX0)
        for q in range(4):
            ks = 4 * c + q
            x_ = vr(XF+4*ks, 4)
            A.wait_ld(xt[ks])
            e(f"{MF} {vr(GR,16)}, {x_}, {x_}, {'0' if ks == 0 else vr(GR,16)}")
            if ops: ops.pop(0)()
            if ops: ops.pop(0)()
            e(f"{MS} {vr(SM,4)}, {vr(SEL,4)}, {x_}, {'0' if ks == 0 else vr(SM,4)}")
        for q in range(4):
            ks = 4 * c + q
            A.wait_ld(ft[ks])
            e(f"{MF} {vr(D,16)}, {vr(XF+4*ks,4)}, {vr(AF[ks%8],4)}, {'0' if ks == 0 else vr(D,16)}")
            if ops: ops.pop(0)()
    A.ts()
    e("s_barrier")
    def stats():
        ssum, ssq = g[0], g[1]
        F = [(lambda q=q: e(f"ds_write_b128 v{vxa}, {vr(GR+4*q,4)} offset:{q*1024}")) for q in range(4)]
        tk = {}
        def rd(): tk[0] = e(f"ds_read_b32 v{ssq}, v{vgr}")
        F += [rd, lambda: e(f"v_mul_f32 v{ssum}, s15, v{SM}"),
              lambda: e(f"v_cmp_gt_u32 vcc, 32, v{lane}"), lambda: e(f"v_lshl_add_u32 v{t1}, v{t31}, 2, s62"),
              lambda: e(f"v_cvt_pk_bf16_f32 v{BX}, -v{ssum}, -v{ssum}"), None, None, None, None, None, None,
              lambda: A.wait_ld(tk[0])]
        seq = [f"v_mul_f32 v{ssq}, s15, v{ssq}",
            f"v_fma_f32 v{ssq}, -v{ssum}, v{ssum}, v{ssq}",
            f"v_max_f32 v{ssq}, 0, v{ssq}",
            f"v_cvt_pk_bf16_f32 v{t0}, v{ssq}, v{ssq}",
            f"v_lshlrev_b32 v{t0}, 16, v{t0}",
            f"v_add_f32 v{t0}, {f32(1e-5)}, v{t0}",
            f"v_cvt_pk_bf16_f32 v{t0}, v{t0}, v{t0}",
            f"v_lshlrev_b32 v{t0}, 16, v{t0}",
            f"v_sqrt_f32 v{t0}, v{t0}",
            f"v_cndmask_b32 v{BX}, 0, v{BX}, vcc",
            f"v_cvt_pk_bf16_f32 v{BX+1}, -v{ssum}, v{t0}",
            f"v_and_b32 v{PS}, 0xffff0000, v{BX+1}",
            f"v_rcp_f32 v{PS+1}, v{PS}",
            f"v_cndmask_b32 v{BX+1}, 0, v{BX+1}, vcc",
            f"ds_write_b32 v{t1}, v{PS} offset:128",
            f"ds_write_b32 v{t1}, v{PS+1}",
            f"{MF} {vr(D,16)}, {vr(BX,4)}, {vr(AX,4)}, {vr(D,16)}"]
        return F + [(lambda s=s: e(s)) for s in seq]
    def dft_epi():
        F = []
        tk = {}
        for h_ in range(2):
            def rd(h_=h_):
                e(f"ds_read_b128 {vr(g8,4)}, v{vrs} offset:{h_*64}")
                tk[h_] = e(f"ds_read_b128 {vr(g8+4,4)}, v{vrs} offset:{h_*64+32}")
            F += [rd, None, None, None, None]
            def ml(i, h_=h_):
                def f():
                    A.wait_ld(tk[h_])
                    e(f"v_mul_f32 v{g8+i}, v{g8+i}, v{D+8*h_+i}")
                return f
            F += [ml(i) for i in range(8)]
            F += [(lambda i=i, h_=h_: e(f"v_cvt_pk_bf16_f32 v{HP+4*h_+i}, v{g8+2*i}, v{g8+2*i+1}")) for i in range(4)]
            F.append(lambda h_=h_: e(f"buffer_store_dwordx4 {vr(HP+4*h_,4)}, v{vst}, s[44:47], s67 offen offset:{h_*1024}{ST}"))
        return F
    steps = [(b, ks) for b in range(4) for ks in range(28)]
    rtok = {}
    def issue_read(n):
        if n >= len(steps): return
        b, ks = steps[n]
        f = AF[n % NB]
        e(f"ds_read_b64_tr_b16 {vr(f,2)}, v{ta[b]} offset:{ks*2048}")
        rtok[n] = e(f"ds_read_b64_tr_b16 {vr(f+2,2)}, v{ta[b]} offset:{ks*2048+512}")
    PF = 4
    for n in range(PF):
        issue_read(n)
    n = 0
    axt = {}
    for b in range(4):
        A.ts()
        def axr(b=b): axt[b] = e(f"ds_read_b64 {vr(AX,2)}, v{vax} offset:{b*512}")
        if b == 0:
            fill = stats() + dft_epi() + [lambda: e("s_barrier"), axr] + [(lambda s=s: e(s)) for s in pcs] + [None] * 4
        else:
            wt = {}
            def aw(q, b=b): wt[0] = e(f"ds_write_b128 v{vxb if (b-1)&1 else vxa}, {vr(acc[(b-1)&1]+4*q,4)} offset:{q*1024}")
            def bar():
                A.wait_ld(wt[0]); e("s_barrier")
            gl = []
            for s_ in gelu8(b - 1, acc[(b-1)&1], 1): gl += [(lambda s_=s_: e(s_))] + ([None] if s_.startswith(TRANS) else [])
            fill = [None] * 5 + [(lambda q=q: aw(q)) for q in range(2)] + gl[:6] + [bar, axr] + gl[6:] + [None] * 4
        nf = len(fill)
        fi = 0
        for ks in range(28):
            issue_read(n + PF)
            if n % 2 == 0: A.wait_ld(rtok[n + 1])
            f = AF[n % NB]
            c_ = "0" if ks == 0 else vr(acc[b & 1], 16)
            e(f"{MF} {vr(acc[b&1],16)}, {vr(f,4)}, {vr(XF+4*ks,4)}, {c_}")
            tgt = (nf * (ks + 1) + 27) // 28
            while fi < tgt:
                if fill[fi]: fill[fi]()
                fi += 1
            n += 1
        A.wait_ld(axt[b])
        e(f"{MF} {vr(acc[b&1],16)}, {vr(AX,4)}, {vr(BX,4)}, {vr(acc[b&1],16)}")
    A.ts()
    for q in range(2): wt3 = e(f"ds_write_b128 v{vxb}, {vr(acc[1]+4*q,4)} offset:{q*1024}")
    gl = gelu(3, acc[1], True, (2, 3))
    for s_ in gl[:6]: e(s_)
    A.wait_ld(wt3)
    e("s_barrier")
    for s_ in gl[6:]: e(s_)
    A.ts_flush(0)
    e("s_endpgm")
    nv0 = R.n
    A.label(f"{name}_help")
    A.reset_counts()
    A.nts = 2
    R.n = Rsave
    CF = [R.alloc(4) for _ in range(8)]
    if HPK: e(f"s_setprio {HPK}")
    CA = R.alloc(4); HA = R.alloc(16)
    jk = [R.alloc() for _ in range(8)]
    vwA, vwB, b1r, vxa, vax = [R.alloc() for _ in range(5)]
    e(f"v_lshlrev_b32 v{t2}, 1, v{t0}")
    e(f"v_and_b32 v{t2}, 4, v{t2}")
    e(f"v_xor_b32 v{t2}, v{t2}, v{t1}")
    e(f"v_mul_u32_u24 v{vwA}, 3584, v{t0}")
    e(f"v_lshl_add_u32 v{vwA}, v{t2}, 4, v{vwA}")
    e("s_lshl_b32 s14, s6, 7")
    e(f"v_add_u32 v{vwA}, s14, v{vwA}")
    e(f"v_xor_b32 v{vwB}, 128, v{vwA}")
    e("s_mul_i32 s56, s69, 28672")
    e("s_lshl_b32 s10, s7, 8")
    e("s_add_u32 s56, s56, s10")
    e("s_add_u32 s10, s10, s14")
    e("s_lshl_b32 s11, s69, 6")
    e("s_xor_b32 s10, s10, s11")
    e("s_mul_i32 s57, s12, 28672")
    e("s_lshl_b32 s58, s69, 10")
    e("s_add_u32 s57, s57, s58")
    e("s_xor_b32 s58, s57, 28672")
    e("s_mul_i32 s60, s12, 7")
    e("s_lshl_b32 s61, s13, 1")
    e("s_add_u32 s60, s60, s61")
    e("s_cmp_ge_u32 s60, 14")
    e("s_cselect_b32 s61, 14, 0")
    e("s_sub_u32 s60, s60, s61")
    e("s_mul_i32 s60, s60, 114688")
    e("s_add_u32 s60, s60, s56")
    e(f"s_add_u32 s61, s56, {14*114688}")
    common2()
    e("s_lshl_b32 s14, s7, 5")
    e(f"v_add_u32 v{t0}, s14, v{t31}")
    e(f"v_lshrrev_b32 v{t1}, 1, v{t0}")
    e(f"v_and_b32 v{t2}, 1, v{t0}")
    e(f"v_cmp_eq_u32 vcc, 1, v{t0}")
    e(f"v_mov_b32 v{t3}, 224")
    e(f"v_cndmask_b32 v{t1}, v{t1}, v{t3}, vcc")
    e(f"v_cndmask_b32 v{t2}, v{t2}, 0, vcc")
    e(f"v_cvt_f32_u32 v{t1}, v{t1}")
    e(f"v_cvt_f32_u32 v{t2}, v{t2}")
    e(f"v_mul_f32 v{t2}, 0x3e800000, v{t2}")
    for j_ in range(1, 8):
        e(f"v_mul_f32 v{jk[j_]}, {f32(j_/448.0)}, v{t1}")
    e("s_mul_i32 s12, s69, 112")
    e("s_lshl_b32 s13, s13, 6")
    e("s_add_u32 s12, s12, s13")
    e(f"v_lshlrev_b32 v{t0}, 3, v{hh}")
    e(f"v_add_u32 v{t0}, s12, v{t0}")
    e(f"v_cvt_f32_u32 v{t0}, v{t0}")
    e(f"v_mul_f32 v{t0}, v{t0}, v{t1}")
    e(f"v_mul_f32 v{t1}, {f32(16.0)}, v{t1}")
    e(f"s_mov_b32 s65, {f32(-448.0)}")
    e("s_mul_i32 s66, s69, 7168")
    e(f"s_add_u32 s66, s66, {L_DF}")
    e(f"v_add_u32 v{jk[0]}, s66, v{l16}")
    for i in range(7):
        fr = CF[i % 4]
        e(f"v_mul_f32 v{t3}, s15, v{t0}")
        e(f"v_floor_f32 v{t3}, v{t3}")
        e(f"v_fma_f32 v{t3}, v{t3}, s65, v{t0}")
        e(f"v_fma_f32 v{g[0]}, v{t3}, s15, v{t2}")
        for j_ in range(1, 8):
            e(f"v_add_f32 v{g[j_]}, v{g[0]}, v{jk[j_]}")
        for j_ in range(8):
            e(f"v_cos_f32 v{g[j_]}, v{g[j_]}")
        e(f"v_add_f32 v{t0}, v{t0}, v{t1}")
        for j_ in range(4):
            e(f"v_cvt_pk_bf16_f32 v{fr+j_}, v{g[2*j_]}, v{g[2*j_+1]}")
        e(f"ds_write_b128 v{jk[0]}, {vr(fr,4)} offset:{i*1024}")
    A.ts()
    e("s_waitcnt lgkmcnt(0)")
    A.ld_done = A.nld
    e("s_barrier")
    mk_srd(A, 40, 24, 1605632)
    mk_srd(A, 44, 34, WS_BYTES)
    mk_srd(A, 48, 26, 3584)
    wtok = {}
    def wload(p, i):
        if p == 0:
            if i == 0:
                e("s_mov_b32 s16, s60")
            else:
                e(f"s_add_u32 s{16+i}, s{15+i}, 114688")
                e(f"s_cmp_eq_u32 s{16+i}, s61")
                e(f"s_cselect_b32 s{16+i}, s56, s{16+i}")
        e(f"s_add_u32 m0, s{57 if i < 7 else 58}, {L_W1 + p*57344 + (i%7)*4096}")
        wtok[p] = e(f"buffer_load_dwordx4 v{vwB if p else vwA}, s[40:43], s{16+i} offen lds")
    e(f"v_lshlrev_b32 v{t2}, 1, v{t31}")
    e(f"buffer_load_ushort v{b1r}, v{t2}, s[48:51], s10 offen")
    for p_ in range(2):
        for i in range(14): wload(p_, i)
    A.ts()
    common3()
    e(f"v_mul_u32_u24 v{t0}, {28672-1024}, v{hh}")
    e("s_lshl_b32 s12, s69, 10")
    e(f"v_add3_u32 v{ta[0]}, v{ta[0]}, v{t0}, s12")
    e(f"v_xor_b32 v{ta[1]}, 64, v{ta[0]}")
    e(f"v_add_u32 v{ta[2]}, 57344, v{ta[0]}")
    e(f"v_add_u32 v{ta[3]}, 57344, v{ta[1]}")
    e(f"v_add_u32 v{vxa}, s9, v{l16}")
    e("s_lshl_b32 s12, s69, 2")
    e(f"s_add_u32 s12, s12, {L_CS}")
    e(f"v_lshl_add_u32 v{vwA}, v{t31}, 4, s12")
    e("s_lshl_b32 s12, s69, 9")
    e(f"s_add_u32 s12, s12, {L_CS}")
    e(f"v_lshl_add_u32 v{vwB}, v{t31}, 4, s12")
    e(f"v_lshl_add_u32 v{vax}, v{t31}, 3, s12")
    e(f"v_lshl_add_u32 v{t3}, v{t31}, 2, s62")
    tk = {}
    def rdc(n_):
        if n_ >= 28: return
        b_, i = n_ // 7, n_ % 7
        if n_ % 14 == 0:
            A.wait_vm(wtok[n_ // 14]); A.ts()
        c_ = CF[n_ % 8]
        e(f"ds_read_b64_tr_b16 {vr(c_,2)}, v{ta[b_]} offset:{i*4096}")
        tk[n_] = e(f"ds_read_b64_tr_b16 {vr(c_+2,2)}, v{ta[b_]} offset:{i*4096+512}")
    for hf in range(2):
        for i in range(6): rdc(14 * hf + i)
        for i in range(14):
            n_ = 14 * hf + i
            A.wait_ld(tk[n_])
            ca = vr(HA + 4 * (n_ // 7), 4)
            e(f"{MS} {ca}, {vr(SEL,4)}, {vr(CF[n_%8],4)}, {'0' if n_ % 7 == 0 else ca}")
            if i + 6 < 14: rdc(n_ + 6)
    for b_ in range(4):
        e(f"ds_write_b32 v{vwA}, v{HA+4*b_} offset:{b_*512}")
    A.wait_all_ld()
    A.ts()
    e("s_barrier")
    A.ts()
    e(f"ds_read_b128 {vr(CA,4)}, v{vwB}")
    A.wait_all_ld()
    for s_ in [f"v_add_f32 v{CA}, v{CA}, v{CA+1}", f"v_add_f32 v{CA+2}, v{CA+2}, v{CA+3}", f"v_add_f32 v{CA}, v{CA}, v{CA+2}",
               f"v_cvt_pk_bf16_f32 v{CA+1}, v{CA}, v{CA}",
               f"v_lshlrev_b32 v{CA+2}, 16, v{CA+1}",
               f"v_sub_f32 v{CA+3}, v{CA}, v{CA+2}",
               f"v_cvt_pk_bf16_f32 v{g8}, v{CA}, v{CA+3}",
               f"v_and_b32 v{CA+2}, 0xffff0000, v{g8}",
               f"v_sub_f32 v{CA+3}, v{CA+3}, v{CA+2}",
               f"v_cvt_pk_bf16_f32 v{g8+1}, v{CA+3}, 0",
               f"v_lshl_or_b32 v{g8+1}, v{b1r}, 16, v{g8+1}",
               f"ds_write_b64 v{vax}, {vr(g8,2)}"]: e(s_)
    A.wait_all_ld()
    e("s_barrier")
    e(f"ds_read_b32 v{PS}, v{t3} offset:128")
    e(f"ds_read_b32 v{PS+1}, v{t3}")
    e(f"v_add_u32 v{t0}, {XOFF[1]}, v{vxa}")
    A.wait_all_ld()
    for s_ in pcs: e(s_)
    for b in range(4):
        e("s_barrier")
        A.ts()
        for q in range(2): e(f"ds_read_b128 {vr(HA+4*q,4)}, v{t0 if b&1 else vxa} offset:{q*1024}")
        A.wait_all_ld()
        for s_ in (gelu(b, HA, True, (0, 1)) if b == 3 else gelu8(b, HA, 0)): e(s_)
    A.ts_flush(0)
    e("s_endpgm")
    A.nts = 2
    R.n = nv0
    nv = R.n
    A.label(f"{name}_misc")
    A.reset_counts()
    e("s_nop 4")
    R = Regs(6)
    l16, i15, kk, va, vo, vk = [R.alloc() for _ in range(6)]
    P = R.alloc(4)
    ra = [R.alloc() for _ in range(16)]
    q_ = [R.alloc() for _ in range(12)]
    e("s_cmp_ge_u32 s3, 4")
    e(f"s_cbranch_scc1 {name}_end")
    e("s_sub_u32 s4, s2, 224")
    e("s_and_b32 s5, s4, 3")
    e("s_lshr_b32 s6, s4, 2")
    e(f"v_lshlrev_b32 v{l16}, 4, v{lane}")
    e("s_waitcnt lgkmcnt(0)")
    mk_srd(A, 36, 18, 921600)
    mk_srd(A, 40, 20, 921600)
    mk_srd(A, 44, 34, WS_BYTES)
    e("s_lshl_b32 s7, s6, 2")
    e("s_add_u32 s7, s7, s3")
    e("s_lshl_b32 s7, s7, 2")
    e("s_add_u32 s7, s7, s5")
    e("s_mul_i32 s7, s7, 7200")
    e("s_lshl_b32 s8, s3, 13")
    for arr in range(2):
        for it in range(8):
            e(f"s_add_u32 m0, s8, {arr*32768 + it*1024}")
            e(f"s_add_u32 s9, s7, {it*1024}")
            e(f"buffer_load_dwordx4 v{l16}, s[{36+4*arr}:{39+4*arr}], s9 offen lds")
    e("s_lshl_b32 s10, s4, 2")
    e("s_add_u32 s10, s10, s3")
    e(f"v_and_b32 v{t0}, 31, v{lane}")
    e(f"v_lshrrev_b32 v{t1}, 5, v{lane}")
    e(f"s_mov_b32 s15, {f32(1.0/448)}")
    e(f"s_mov_b32 s60, {f32(-448.0)}")
    SC = 2.0 / (2048 * 448)
    e(f"s_mov_b32 s61, {f32(SC)}")
    e(f"s_mov_b32 s62, {f32(-SC)}")
    e(f"v_mov_b32 v{t2}, {f32(SC/2)}")
    e(f"v_lshlrev_b32 v{t3}, 31, v{lane}")
    e(f"v_xor_b32 v{t3}, v{t3}, v{t2}")
    e(f"v_cvt_pk_bf16_f32 v{vk}, v{t2}, v{t3}")
    for it in range(4):
        e(f"s_add_u32 s11, s10, {it*128}")
        e("s_mul_i32 s12, s11, 2341")
        e("s_lshr_b32 s12, s12, 16")
        e("s_mul_i32 s13, s12, 28")
        e("s_sub_u32 s13, s11, s13")
        e("s_lshl_b32 s12, s12, 5")
        e("s_lshl_b32 s14, s13, 3")
        e(f"v_add_u32 v{t2}, s12, v{t0}")
        e(f"v_cvt_f32_u32 v{t2}, v{t2}")
        e(f"v_lshl_add_u32 v{t3}, v{t1}, 1, s14")
        e(f"v_cmp_eq_u32 vcc, 0, v{t3}")
        e(f"v_cvt_f32_u32 v{t3}, v{t3}")
        for z, off in enumerate((0.0, 1.0, 4.0, 5.0)):
            e(f"v_add_f32 v{q_[z]}, {f32(off)}, v{t3}")
            e(f"v_mul_f32 v{q_[z]}, v{q_[z]}, v{t2}")
            e(f"v_mul_f32 v{q_[4+z]}, s15, v{q_[z]}")
            e(f"v_floor_f32 v{q_[4+z]}, v{q_[4+z]}")
            e(f"v_fma_f32 v{q_[z]}, v{q_[4+z]}, s60, v{q_[z]}")
            e(f"v_mul_f32 v{q_[z]}, s15, v{q_[z]}")
            e(f"v_cos_f32 v{q_[4+z]}, v{q_[z]}")
            e(f"v_sin_f32 v{q_[8+z]}, v{q_[z]}")
            e(f"v_mul_f32 v{q_[4+z]}, s61, v{q_[4+z]}")
            e(f"v_mul_f32 v{q_[8+z]}, s62, v{q_[8+z]}")
            e(f"v_cvt_pk_bf16_f32 v{P+z}, v{q_[4+z]}, v{q_[8+z]}")
        e(f"v_cndmask_b32 v{P}, v{P}, v{vk}, vcc")
        e("s_lshl_b32 s12, s11, 10")
        e(f"s_add_u32 s12, s12, {IDF}")
        e("s_cmp_lt_u32 s11, 392")
        e(f"s_cselect_b32 s12, s12, {OOB}")
        e(f"buffer_store_dwordx4 {vr(P,4)}, v{l16}, s[44:47], s12 offen")
    A.ts()
    e(f"v_and_b32 v{i15}, 15, v{lane}")
    e(f"v_lshrrev_b32 v{kk}, 4, v{lane}")
    e("s_cmp_lt_u32 s10, 118")
    e(f"s_cbranch_scc1 {name}_notab")
    e("s_sub_u32 s11, s10, 118")
    e("s_cmp_lt_u32 s11, 8")
    e("s_cselect_b32 s12, 1, 0")
    e("s_lshr_b32 s13, s11, 1")
    e("s_and_b32 s14, s11, 1")
    e("s_cmp_eq_u32 s12, 1")
    e("s_cselect_b32 s13, s13, s14")
    e("s_cselect_b32 s14, s14, 0")
    e(f"s_mov_b32 s63, {f32(1/32)}")
    e(f"s_mov_b32 s64, {f32(16.0)}")
    e(f"s_cselect_b32 s63, {f32(1/64)}, s63")
    e(f"s_cselect_b32 s64, {f32(8.0)}, s64")
    e("s_cselect_b32 s65, 16, 8")
    e("s_lshl_b32 s13, s13, 4")
    e("s_lshl_b32 s14, s14, 5")
    e(f"v_add_u32 v{t2}, s13, v{i15}")
    e(f"v_cvt_f32_u32 v{t2}, v{t2}")
    e(f"v_mul_f32 v{t2}, s63, v{t2}")
    e(f"v_lshrrev_b32 v{t3}, 1, v{kk}")
    e(f"v_mul_u32_u24 v{t3}, s65, v{t3}")
    e(f"v_and_b32 v{t0}, 1, v{kk}")
    e(f"v_lshl_add_u32 v{t3}, v{t0}, 2, v{t3}")
    e(f"v_add_u32 v{t3}, s14, v{t3}")
    e(f"v_cvt_f32_u32 v{t3}, v{t3}")
    for j_ in range(8):
        e(f"v_add_f32 v{ra[j_]}, {f32(float(j_ & 3))}, v{t3}")
        if j_ >= 4:
            e(f"v_add_f32 v{ra[j_]}, s64, v{ra[j_]}")
        e(f"v_mul_f32 v{ra[j_]}, v{ra[j_]}, v{t2}")
        e(f"v_sin_f32 v{ra[8+j_]}, v{ra[j_]}")
        e(f"v_cos_f32 v{ra[j_]}, v{ra[j_]}")
    e("s_lshl_b32 s11, s11, 11")
    e(f"s_add_u32 s11, s11, {F1T}")
    for cs_ in range(2):
        for z in range(4):
            e(f"v_cvt_pk_bf16_f32 v{P+z}, v{ra[8*cs_+2*z]}, v{ra[8*cs_+2*z+1]}")
        e(f"buffer_store_dwordx4 {vr(P,4)}, v{l16}, s[44:47], s11 offen offset:{cs_*1024}")
    A.label(f"{name}_notab")
    e("s_nop 4")
    e(f"v_mul_u32_u24 v{va}, 450, v{i15}")
    e("s_lshl_b32 s11, s3, 2")
    e(f"v_add_u32 v{t0}, s11, v{kk}")
    e(f"v_lshl_add_u32 v{va}, v{t0}, 1, v{va}")
    e(f"v_lshlrev_b32 v{vo}, 13, v{t0}")
    e(f"v_lshl_add_u32 v{vo}, v{i15}, 4, v{vo}")
    e("s_lshl_b32 s12, s5, 11")
    e("s_lshl_b32 s13, s6, 8")
    e("s_add_u32 s12, s12, s13")
    e(f"s_add_u32 s12, s12, {WT}")
    e(f"v_cmp_eq_u32 vcc, 0, v{t0}")
    e(f"v_mov_b32 v{t1}, {OOB}")
    A.ts()
    e("s_waitcnt vmcnt(0)")
    e("s_barrier")
    A.ts()
    A.reset_counts()
    P2 = [P, R.alloc(4)]
    toks = {}
    def rdw(n_):
        o = (n_ & 1) * 8
        for r_ in range(4):
            e(f"ds_read_u16 v{ra[o+r_]}, v{va} offset:{r_*8192 + n_*32}")
            toks[n_] = e(f"ds_read_u16 v{ra[o+4+r_]}, v{va} offset:{32768 + r_*8192 + n_*32}")
    rdw(0)
    for n_ in range(15):
        A.wait_ld(toks[n_])
        if n_ + 1 < 15: rdw(n_ + 1)
        o = (n_ & 1) * 8
        for r_ in range(4):
            e(f"v_lshl_or_b32 v{P2[n_&1]+r_}, v{ra[o+4+r_]}, 16, v{ra[o+r_]}")
        if n_ == 14:
            e(f"v_cndmask_b32 v{vo}, v{t1}, v{vo}, vcc")
        e(f"buffer_store_dwordx4 {vr(P2[n_&1],4)}, v{vo}, s[44:47], s12 offen")
        e(f"s_add_u32 s12, s12, {16*8192}")
    if PFW2:
        mk_srd(A, 36, 28, 1605632)
        e("s_mul_i32 s11, s10, 13312")
        for it in range(13):
            e(f"buffer_load_dwordx4 {vr(P2[it&1],4)}, v{l16}, s[36:39], s11 offen")
            e("s_add_u32 s11, s11, 1024")
        e("s_waitcnt vmcnt(0)")
    A.ts_flush(0)
    A.label(f"{name}_end")
    e("s_endpgm")
    return max(nv, R.n)
```

```python
from asmlib import *
from k1 import *

def fft_block(A, lane, LB, barrier, LD="", ST="", kidx=1, wofs=0, bar0=False):
    e = A.e
    R = Regs(lane + 1)
    i15, g, l16, va, t0, t1, t2, vst, vw = [R.alloc() for _ in range(9)]
    XA = [[[R.alloc(4) for Q in range(2)] for T in range(2)] for c in range(2)]
    F1 = [[R.alloc(4) for cs in range(3)] for Q in range(2)]
    F2 = [[R.alloc(4) for cs in range(3)] for T in range(2)]
    W = [R.alloc(4) for T in range(2)]
    WR = R.alloc(8); WI = R.alloc(8)
    C1 = R.alloc(8); S1 = R.alloc(8); C2 = R.alloc(8); S2 = R.alloc(8)
    DR = R.alloc(8); DI = R.alloc(8)
    TR = R.alloc(8); TI = R.alloc(8)
    ZR = R.alloc(4); ZI = R.alloc(4)
    e(f"v_and_b32 v{i15}, 15, v{lane}")
    e(f"v_lshrrev_b32 v{g}, 4, v{lane}")
    e(f"v_lshlrev_b32 v{l16}, 4, v{lane}")
    e(f"v_lshlrev_b32 v{va}, 4, v{i15}")
    e(f"v_lshl_add_u32 v{va}, v{g}, 9, v{va}")
    e("s_lshl_b32 s4, s2, 13")
    e("s_add_u32 s5, s4, 4096")
    e("s_cmp_eq_u32 s2, 224")
    e("s_cselect_b32 s4, 4096, s4")
    e(f"s_cselect_b32 s5, {OOB}, s5")
    e("s_cmp_eq_u32 s2, 0")
    e(f"s_cselect_b32 s5, {OOB}, s5")
    e(f"s_add_u32 s6, s4, {X1F}")
    e(f"s_add_u32 s7, s5, {X1F}")
    e(f"s_add_u32 s8, s4, {Y1T}")
    e(f"s_add_u32 s9, s5, {Y1T}")
    e("s_lshl_b32 s10, s3, 12")
    e(f"s_add_u32 s10, s10, {F1T}")
    e("s_lshl_b32 s11, s2, 13")
    e("s_lshl_b32 s12, s3, 11")
    e("s_add_u32 s11, s11, s12")
    e(f"s_add_u32 s11, s11, {WT}")
    e(f"s_mov_b32 s12, {F2T}")
    e("s_waitcnt lgkmcnt(0)")
    mk_srd(A, 44, 34, WS_BYTES)
    tk = {}
    for Q in range(2):
        for cs in range(2):
            tk['f1', Q, cs] = e(f"buffer_load_dwordx4 {vr(F1[Q][cs],4)}, v{l16}, s[44:47], s10 offen offset:{Q*2048+cs*1024}{LD}")
        for T in range(2):
            for c in range(2):
                tk['x', c, T, Q] = e(f"buffer_load_dwordx4 {vr(XA[c][T][Q],4)}, v{va}, s[44:47], s{6+c} offen offset:{Q*2048+T*256}{LD}")
    for T in range(2):
        for cs in range(2):
            tk['f2'] = e(f"buffer_load_dwordx4 {vr(F2[T][cs],4)}, v{l16}, s[44:47], s12 offen offset:{T*2048+cs*1024}{LD}")
    for T in range(2):
        tk['w'] = e(f"buffer_load_dwordx4 {vr(W[T],4)}, v{l16}, s[44:47], s11 offen offset:{T*1024}{LD}")
    if bar0: e("s_barrier")
    A.nts = 2; A.ts()
    e("s_lshl_b32 s13, s3, 4")
    e(f"v_add_u32 v{t0}, s13, v{i15}")
    e(f"v_cvt_f32_u32 v{t0}, v{t0}")
    e(f"v_mul_f32 v{t0}, {f32(1/2048)}, v{t0}")
    e(f"v_lshlrev_b32 v{t1}, 2, v{g}")
    e(f"v_add_u32 v{vst}, s13, v{t1}")
    e(f"v_cvt_f32_u32 v{t1}, v{t1}")
    e(f"v_mul_f32 v{t1}, v{t1}, v{t0}")
    for j in range(8):
        e(f"v_fma_f32 v{C1+j}, v{t0}, {f32(float(16*(j>>2)+(j&3)))}, v{t1}" if False else
          f"v_fmamk_f32 v{C1+j}, v{t0}, {f32(float(16*(j>>2)+(j&3)))}, v{t1}")
    for j in range(8):
        e(f"v_sin_f32 v{S1+j}, v{C1+j}")
        e(f"v_cos_f32 v{C1+j}, v{C1+j}")
    e(f"v_cvt_f32_u32 v{t0}, v{i15}")
    e(f"v_mul_f32 v{t0}, {f32(1/2048)}, v{t0}")
    e(f"v_add_f32 v{t2}, {f32(16/2048)}, v{t0}")
    e(f"v_cvt_f32_u32 v{t1}, v{vst}")
    for j in range(8):
        tt = t2 if j >> 2 else t0
        e(f"v_add_f32 v{C2+j}, {f32(float(j&3))}, v{t1}")
        e(f"v_mul_f32 v{C2+j}, v{C2+j}, v{tt}")
    for j in range(8):
        e(f"v_sin_f32 v{S2+j}, v{C2+j}")
        e(f"v_cos_f32 v{C2+j}, v{C2+j}")
    e(f"v_lshlrev_b32 v{vst}, 1, v{vst}")
    e(f"v_lshl_add_u32 v{vst}, v{i15}, 7, v{vst}")
    e(f"v_and_b32 v{t0}, 1, v{g}")
    e(f"v_lshlrev_b32 v{t0}, 8, v{t0}")
    e(f"v_lshl_add_u32 v{t0}, v{i15}, 4, v{t0}")
    e(f"v_lshrrev_b32 v{t1}, 1, v{g}")
    e(f"v_lshl_add_u32 v{t0}, v{t1}, 3, v{t0}")
    e("s_lshl_b32 s14, s3, 9")
    e(f"s_add_u32 s14, s14, {LB}")
    e(f"v_add_u32 v{vw}, s14, v{t0}")
    e(f"v_add_u32 v{va}, {LB}, v{l16}")
    e("s_mov_b32 s15, 0x80008000")
    M = "v_mfma_f32_16x16x32_bf16"
    def mm(d, a, b, first):
        e(f"{M} {vr(d,4)}, {vr(a,4)}, {vr(b,4)}, {'0' if first else vr(d,4)}")
    def cmul(c, s, sgn):
        n1 = " neg_lo:[0,1,0] neg_hi:[0,1,0]"
        for p in range(4):
            e(f"v_pk_mul_f32 {vr(TR+2*p,2)}, {vr(DR+2*p,2)}, {vr(c+2*p,2)}")
            e(f"v_pk_mul_f32 {vr(TI+2*p,2)}, {vr(DI+2*p,2)}, {vr(c+2*p,2)}")
        for p in range(4):
            e(f"v_pk_fma_f32 {vr(TR+2*p,2)}, {vr(DI+2*p,2)}, {vr(s+2*p,2)}, {vr(TR+2*p,2)}" + (n1 if sgn > 0 else ""))
            e(f"v_pk_fma_f32 {vr(TI+2*p,2)}, {vr(DR+2*p,2)}, {vr(s+2*p,2)}, {vr(TI+2*p,2)}" + (n1 if sgn < 0 else ""))
        for p in range(4):
            e(f"v_cvt_pk_bf16_f32 v{ZR+p}, v{TR+2*p}, v{TR+2*p+1}")
            e(f"v_cvt_pk_bf16_f32 v{ZI+p}, v{TI+2*p}, v{TI+2*p+1}")
    A.ts()
    for Q in range(2):
        A.wait_vm(tk['f1', Q, 1])
        for z in range(4):
            e(f"v_xor_b32 v{F1[Q][2]+z}, s15, v{F1[Q][1]+z}")
        for T in range(2):
            A.wait_vm(tk['x', 0, T, Q])
            mm(DR+4*T, XA[0][T][Q], F1[Q][0], Q == 0)
            mm(DI+4*T, XA[0][T][Q], F1[Q][2], Q == 0)
        for T in range(2):
            A.wait_vm(tk['x', 1, T, Q])
            mm(DR+4*T, XA[1][T][Q], F1[Q][1], False)
            mm(DI+4*T, XA[1][T][Q], F1[Q][0], False)
    A.ts()
    A.wait_vm(tk['f2'])
    for T in range(2):
        for z in range(4):
            e(f"v_xor_b32 v{F2[T][2]+z}, s15, v{F2[T][1]+z}")
    cmul(C1, S1, -1)
    for T in range(2):
        mm(DR+4*T, F2[T][0], ZR, True)
        mm(DI+4*T, F2[T][0], ZI, True)
    for T in range(2):
        mm(DR+4*T, F2[T][1], ZI, False)
        mm(DI+4*T, F2[T][2], ZR, False)
    A.wait_vm(tk['w'])
    for j in range(8):
        e(f"v_lshlrev_b32 v{WR+j}, 16, v{W[j>>2]+(j&3)}")
        e(f"v_and_b32 v{WI+j}, 0xffff0000, v{W[j>>2]+(j&3)}")
    cmul(WR, WI, +1)
    for T in range(2):
        mm(DR+4*T, ZR, F2[T][0], True)
        mm(DI+4*T, ZI, F2[T][0], True)
    for T in range(2):
        mm(DR+4*T, ZI, F2[T][2], False)
        mm(DI+4*T, ZR, F2[T][1], False)
    cmul(C2, S2, +1)
    for T in range(2):
        e(f"ds_write_b64 v{vw}, {vr(ZR+2*T,2)} offset:{T*2048}")
        e(f"ds_write_b64 v{vw}, {vr(ZI+2*T,2)} offset:{4096+T*2048}")
    A.wait_all_ld()
    A.ts()
    barrier()
    A.ts()
    for Q in range(2):
        for c in range(2):
            for T in range(2):
                tk['u', c, T, Q] = e(f"ds_read_b128 {vr(XA[c][T][Q],4)}, v{va} offset:{(c*2+T)*2048+Q*1024}")
    for Q in range(2):
        for T in range(2):
            A.wait_ld(tk['u', 0, T, Q])
            mm(DR+4*T, F1[Q][0], XA[0][T][Q], Q == 0)
            mm(DI+4*T, F1[Q][1], XA[0][T][Q], Q == 0)
        for T in range(2):
            A.wait_ld(tk['u', 1, T, Q])
            mm(DR+4*T, F1[Q][2], XA[1][T][Q], False)
            mm(DI+4*T, F1[Q][0], XA[1][T][Q], False)
    for p in range(4):
        e(f"v_cvt_pk_bf16_f32 v{ZR+p}, v{DR+2*p}, v{DR+2*p+1}")
        e(f"v_cvt_pk_bf16_f32 v{ZI+p}, v{DI+2*p}, v{DI+2*p+1}")
    for T in range(2):
        e(f"buffer_store_dwordx2 {vr(ZR+2*T,2)}, v{vst}, s[44:47], s8 offen offset:{T*2048}{ST}")
        e(f"buffer_store_dwordx2 {vr(ZI+2*T,2)}, v{vst}, s[44:47], s9 offen offset:{T*2048}{ST}")
    A.ts_flush(kidx, "s3", wofs)
    e("s_endpgm")
    return R.n

PB = WS_END

def gemm_block(A, lane, nf, ni, epi, PD, bar_at=None, LD="", ST="", kidx=2, ROT=(7, 4), bar0=False):
    e = A.e
    R = Regs(lane + 1)
    t0, t1, t2, l16, vw2, vy, tid = [R.alloc() for _ in range(7)]
    ta = [R.alloc(), R.alloc()]
    acc = [[R.alloc(16) for u in range(2)] for h in range(2)]
    LF = [[R.alloc(4) for h in range(2)] for p in range(2)]
    GF = [[R.alloc(4) for h in range(2)] for p in range(PD)]
    XR = R.alloc(8)
    BR = R.alloc(8)
    e("s_and_b32 s4, s2, 7")
    e("s_lshr_b32 s5, s2, 3")
    e("s_and_b32 s6, s5, 3")
    e("s_lshr_b32 s7, s5, 2")
    e("s_lshl_b32 s8, s4, 2")
    e("s_add_u32 s8, s8, s6")
    e(f"v_lshrrev_b32 v{t0}, 3, v{lane}")
    e(f"v_and_b32 v{t1}, 7, v{lane}")
    e(f"v_lshlrev_b32 v{t2}, 1, v{t0}")
    e(f"v_and_b32 v{t2}, 4, v{t2}")
    e(f"v_xor_b32 v{t2}, v{t2}, v{t1}")
    e(f"v_lshlrev_b32 v{t2}, 4, v{t2}")
    e(f"v_mad_u32_u24 v{vw2}, v{t0}, 896, v{t2}" if False else f"v_mul_u32_u24 v{vw2}, 896, v{t0}")
    e(f"v_add_u32 v{vw2}, v{vw2}, v{t2}")
    e(f"v_lshl_add_u32 v{vy}, v{t0}, 12, v{t2}")
    e(f"v_lshlrev_b32 v{l16}, 4, v{lane}")
    e("s_lshl_b32 s9, s7, 7")
    e(f"s_mul_i32 s10, s3, {28*16*896}")
    e("s_add_u32 s10, s10, s9")
    e("s_mul_i32 s11, s8, 229376")
    e("s_mul_i32 s12, s3, 28672")
    e("s_add_u32 s11, s11, s12")
    e("s_add_u32 s12, s11, 114688")
    e(f"s_mul_i32 s13, s3, {7*16*4096}")
    e("s_lshl_b32 s14, s8, 7")
    e("s_add_u32 s13, s13, s14")
    e(f"s_add_u32 s13, s13, {Y1T}")
    e("s_mul_i32 s14, s7, 57344")
    e("s_mul_i32 s15, s3, 7168")
    e("s_add_u32 s14, s14, s15")
    e(f"s_add_u32 s14, s14, {IDF}")
    e("s_add_u32 s15, s14, 28672")
    e(f"s_mul_i32 s57, s3, {PD*2048}")
    e(f"s_mul_i32 s62, s6, {ROT[0]}")
    e(f"s_mul_i32 s63, s7, {ROT[1]}")
    e("s_add_u32 s62, s62, s63")
    e("s_cmp_ge_u32 s62, 28")
    e("s_cselect_b32 s63, 28, 0")
    e("s_sub_u32 s62, s62, s63")
    e("s_mul_i32 s63, s62, 14336")
    e("s_add_u32 s63, s63, s10")
    e("s_lshl_b32 s64, s62, 10")
    e("s_add_u32 s64, s64, s11")
    e("s_waitcnt lgkmcnt(0)")
    mk_srd(A, 44, 34, WS_BYTES)
    mk_srd(A, 40, 28, 1605632)
    mk_srd(A, 36, 16, 1835008)
    mk_srd(A, 48, 30, 896)
    mk_srd(A, 52, 32, 1835008)
    steps = [('i', k) for k in range(ni)] + [('f', k) for k in range(nf)]
    if epi == 'full':
        steps = [('f', k) for k in range(nf)] + [('i', k) for k in range(ni)]
    N = len(steps)
    tok = {}
    def issue(n):
        if n >= N: return
        kind, k = steps[n]
        sl = n % PD
        for hf in range(2):
            e(f"s_add_u32 m0, s57, {sl*2048 + hf*1024}")
            if kind == 'f':
                if hf: e(f"s_add_u32 s58, s63, {8*896}")
                e(f"buffer_load_dwordx4 v{vw2}, s[40:43], s{58 if hf else 63} offen lds")
            else:
                e(f"s_add_u32 s58, s13, {(k*16+hf*8)*4096}")
                e(f"buffer_load_dwordx4 v{vy}, s[44:47], s58 offen lds{LD}")
        if kind == 'f':
            e("s_add_u32 s58, s64, 114688")
            for hf in range(2):
                tok[n] = e(f"buffer_load_dwordx4 {vr(GF[sl][hf],4)}, v{l16}, s[44:47], s{58 if hf else 64} offen{LD}")
            e("s_add_u32 s62, s62, 1")
            e("s_add_u32 s63, s63, 14336")
            e("s_add_u32 s64, s64, 1024")
            e("s_cmp_eq_u32 s62, 28")
            e("s_cselect_b32 s62, 0, s62")
            e("s_cselect_b32 s63, s10, s63")
            e("s_cselect_b32 s64, s11, s64")
            return
        for hf in range(2):
            sb = (11 + hf) if kind == 'f' else (14 + hf)
            if k % 4 == 0 and k:
                e(f"s_add_u32 s{sb}, s{sb}, 4096")
            tok[n] = e(f"buffer_load_dwordx4 {vr(GF[sl][hf],4)}, v{l16}, s[44:47], s{sb} offen offset:{(k%4)*1024}{LD}")
    if bar0: e("s_barrier")
    for n in range(PD):
        issue(n)
    A.nts = 2; A.ts()
    e(f"v_and_b32 v{tid}, 255, v0")
    e(f"v_lshrrev_b32 v{t0}, 2, v{tid}")
    e(f"v_and_b32 v{t1}, 3, v{tid}")
    e(f"v_mul_u32_u24 v{t2}, 28672, v{t0}")
    e(f"v_lshl_add_u32 v{t2}, v{t1}, 5, v{t2}")
    e("s_mul_i32 s59, s8, 896")
    e("s_add_u32 s59, s59, s9")
    e(f"s_add_u32 s60, s59, {PB}")
    e(f"v_mul_u32_u24 v{tid}, 272, v{t0}")
    e(f"v_lshl_add_u32 v{tid}, v{t1}, 6, v{tid}")
    e(f"v_lshlrev_b32 v{t1}, 5, v{t1}")
    def epi_loads():
        for hf in range(2):
            if epi == 'final':
                tok['x'] = e(f"buffer_load_dwordx4 {vr(XR+4*hf,4)}, v{t2}, s[44:47], s60 offen offset:{hf*16}{LD}")
            else:
                e(f"buffer_load_dwordx4 {vr(XR+4*hf,4)}, v{t2}, s[36:39], s59 offen offset:{hf*16}")
                tok['x'] = e(f"buffer_load_dwordx4 {vr(BR+4*hf,4)}, v{t1}, s[48:51], s9 offen offset:{hf*16}")
    e(f"v_bfe_u32 v{t0}, v{lane}, 2, 2")
    e(f"v_lshrrev_b32 v{ta[1]}, 5, v{lane}")
    e(f"v_lshl_add_u32 v{t0}, v{ta[1]}, 2, v{t0}")
    e(f"v_lshlrev_b32 v{t0}, 7, v{t0}")
    e(f"v_bfe_u32 v{ta[1]}, v{lane}, 3, 1")
    e(f"v_lshl_add_u32 v{t0}, v{ta[1]}, 6, v{t0}")
    e(f"v_bfe_u32 v{ta[1]}, v{lane}, 4, 1")
    e(f"v_lshl_add_u32 v{t0}, v{ta[1]}, 5, v{t0}")
    e(f"v_and_b32 v{ta[1]}, 3, v{lane}")
    e(f"v_lshl_add_u32 v{t0}, v{ta[1]}, 3, v{t0}")
    e(f"v_add_u32 v{ta[0]}, s57, v{t0}")
    e(f"v_xor_b32 v{ta[1]}, 64, v{ta[0]}")
    rt = {}
    def rd(n):
        if n >= N: return
        A.wait_vm(tok[n])
        sl = n % PD
        for h in range(2):
            f = LF[n & 1][h]
            e(f"ds_read_b64_tr_b16 {vr(f,2)}, v{ta[h]} offset:{sl*2048}")
            rt[n] = e(f"ds_read_b64_tr_b16 {vr(f+2,2)}, v{ta[h]} offset:{sl*2048+1024}")
    rd(0)
    for n in range(N):
        kind, k = steps[n]
        A.wait_ld(rt[n])
        if n % 7 == 0: A.ts()
        rd(n + 1)
        L = LF[n & 1]; G = GF[n % PD]
        for h in range(2):
            for u in range(2):
                a, b = (L[h], G[u]) if kind == 'f' else (G[h], L[u])
                c = '0' if n == 0 else vr(acc[h][u], 16)
                e(f"v_mfma_f32_32x32x16_bf16 {vr(acc[h][u],16)}, {vr(a,4)}, {vr(b,4)}, {c}")
        issue(n + PD)
        if n == max(N - PD, 0): epi_loads()
        if bar_at is not None and n == bar_at: e("s_barrier")
    e(f"v_and_b32 v{t0}, 31, v{lane}")
    e(f"v_mul_u32_u24 v{t0}, 272, v{t0}")
    e(f"v_lshrrev_b32 v{t1}, 5, v{lane}")
    e(f"v_lshl_add_u32 v{t0}, v{t1}, 4, v{t0}")
    e(f"s_mul_i32 s61, s3, {64*272}")
    e(f"v_add_u32 v{t0}, s61, v{t0}")
    A.ts()
    e("s_barrier")
    A.ts()
    for h in range(2):
        for u in range(2):
            for q in range(4):
                e(f"ds_write_b128 v{t0}, {vr(acc[h][u]+4*q,4)} offset:{u*32*272 + h*128 + q*32}")
    A.wait_all_ld()
    e("s_barrier")
    A.ts()
    flat = [acc[0][0], acc[0][1], acc[1][0], acc[1][1]]
    tkk = []
    for q in range(4):
        for w in range(4):
            tkk.append(e(f"ds_read_b128 {vr(flat[w]+4*q,4)}, v{tid} offset:{w*64*272 + q*16}"))
    A.wait_vm(tok['x'])
    O = LF[0][0]
    assert LF[0][1] == O + 4
    for q in range(4):
        A.wait_ld(tkk[4*q+3])
        for p in range(2):
            a = [f + 4*q + 2*p for f in flat]
            e(f"v_pk_add_f32 {vr(a[0],2)}, {vr(a[0],2)}, {vr(a[1],2)}")
            e(f"v_pk_add_f32 {vr(a[2],2)}, {vr(a[2],2)}, {vr(a[3],2)}")
            xr = XR + 2*q + p
            e(f"v_lshlrev_b32 v{a[1]}, 16, v{xr}")
            e(f"v_and_b32 v{a[1]+1}, 0xffff0000, v{xr}")
            e(f"v_pk_add_f32 {vr(a[0],2)}, {vr(a[0],2)}, {vr(a[2],2)}")
            if epi != 'final':
                br = BR + 2*q + p
                e(f"v_lshlrev_b32 v{a[3]}, 16, v{br}")
                e(f"v_and_b32 v{a[3]+1}, 0xffff0000, v{br}")
                e(f"v_pk_add_f32 {vr(a[0],2)}, {vr(a[0],2)}, {vr(a[3],2)}")
            e(f"v_pk_add_f32 {vr(a[0],2)}, {vr(a[0],2)}, {vr(a[1],2)}")
            e(f"v_cvt_pk_bf16_f32 v{O+2*q+p}, v{a[0]}, v{a[0]+1}")
    for hf in range(2):
        if epi == 'part':
            e(f"buffer_store_dwordx4 {vr(O+4*hf,4)}, v{t2}, s[44:47], s60 offen offset:{hf*16}{ST}")
        else:
            e(f"buffer_store_dwordx4 {vr(O+4*hf,4)}, v{t2}, s[52:55], s59 offen offset:{hf*16}")
    A.ts_flush(kidx)
    e("s_endpgm")
    return R.n

def prolog(A, name, nwg):
    header(A, name)
    A.e(f"s_cmp_ge_u32 s2, {nwg}")
    A.e(f"s_cbranch_scc1 {name}_end")
    load_args(A)
    A.nts = 0; A.ts(True); A.ts()
    A.e("v_lshrrev_b32 v2, 6, v0")
    A.e("v_and_b32 v1, 63, v0")
    A.e("v_readfirstlane_b32 s3, v2")
    A.e("s_nop 3")

def epilog(A, name):
    A.label(f"{name}_end")
    A.e("s_endpgm")
```

```python
import sys
from asmlib import *
from k1 import *
from k2 import *

def build(mode="v1", PD=12, bar_at=17, LD="", ST="", dbg=0, ra=7, rd=4, ST1=None, NX0=4, NQ1=1, PFW2=1, prio=1, PRIO=0, HPK=0):
    A = Asm()
    A.dbg = bool(dbg)
    L = []
    K = []
    A.raw('.amdgcn_target "amdgcn-amd-amdhsa--gfx950"\n.text')
    nv = gen_k1(A, "k1_kernel", ST if ST1 is None else ST1, NX0, NQ1, PFW2, PRIO, HPK)
    L.append(("k1_kernel", 256, 512, K1_LDS)); K.append(kd("k1_kernel", nv, 102))
    if mode == "v1":
        prolog(A, "k2_kernel", 225)
        nv = fft_block(A, 1, 0, lambda: A.e("s_barrier"), LD, ST)
        epilog(A, "k2_kernel")
        L.append(("k2_kernel", 225, 256, 8192)); K.append(kd("k2_kernel", nv, 102))
        prolog(A, "k3_kernel", 224)
        nv = gemm_block(A, 1, 28, 7, 'full', PD, None, LD, ST, 2, (ra, rd))
        epilog(A, "k3_kernel")
        L.append(("k3_kernel", 224, 256, max(PD*8192, 69632))); K.append(kd("k3_kernel", nv, 102))
    else:
        gl = max(PD*8192, 69632)
        prolog(A, "k2_kernel", 225)
        A.e("s_cmp_ge_u32 s3, 4")
        A.e("s_cbranch_scc1 k2_fft")
        A.e("s_cmp_ge_u32 s2, 224")
        A.e("s_cbranch_scc1 k2_kernel_end")
        nv = gemm_block(A, 1, 28, 0, 'part', PD, bar_at, LD, ST, 1, (ra, rd), not prio)
        A.label("k2_fft"); A.reset_counts()
        A.e("s_sub_u32 s3, s3, 4")
        if prio: A.e("s_setprio 3")
        nv = max(nv, fft_block(A, 1, gl, lambda: A.e("s_barrier"), LD, ST, 1, 4, not prio))
        epilog(A, "k2_kernel")
        L.append(("k2_kernel", 225, 512, gl + 8192)); K.append(kd("k2_kernel", nv, 102))
        prolog(A, "k3_kernel", 224)
        nv = gemm_block(A, 1, 0, 7, 'final', 7, None, LD, ST)
        epilog(A, "k3_kernel")
        L.append(("k3_kernel", 224, 256, 69632)); K.append(kd("k3_kernel", nv, 102))
    hdr = "".join(f"; @launch kernel={n} grid=({g},1,1) block=({b},1,1) lds={l}\n" for n, g, b, l in L)
    return hdr + A.text() + '.section .rodata,"a"\n' + "".join(K)

if __name__ == "__main__":
    out = sys.argv[1]
    kw = {}
    for a in sys.argv[2:]:
        k, v = a.split("=")
        kw[k] = int(v) if v.lstrip("-").isdigit() else v.replace("_", " ")
    open(out, "w").write(build(**kw))
```

```python
from asmlib import *
import struct
def f32(x): return "0x%08x" % struct.unpack("<I", struct.pack("<f", x))[0]

HF = 0
X1F = HF + 64 * 112 * 1024
Y1T = X1F + 448 * 4096
WT = Y1T + 448 * 4096
IDF = WT + 225 * 8192
F1T = IDF + 14 * 28 * 1024
F2T = F1T + 16384
WS_END = F2T + 4096
WS_BYTES = 268435456
OOB = 0x10000000

def mk_srd(A, d, src, nbytes):
    A.e(f"s_mov_b32 s{d}, s{src}")
    A.e(f"s_and_b32 s{d+1}, s{src+1}, 0xffff")
    A.e(f"s_mov_b32 s{d+2}, {nbytes}")
    A.e(f"s_mov_b32 s{d+3}, 0x00020000")

def header(A, name):
    A.raw(f".globl {name}\n.p2align 8\n.type {name},@function\n{name}:")
    A.reset_counts()

def load_args(A):
    A.e("s_load_dwordx16 s[16:31], s[0:1], 0")
    A.e("s_load_dwordx2 s[32:33], s[0:1], 64")
    A.e("s_load_dwordx2 s[34:35], s[0:1], 80")

def code_pf(A, name, vd):
    if not A.cpf: return
    A.e("s_getpc_b64 s[36:37]")
    A.raw(f"{name}_pc:")
    A.e(f"v_lshlrev_b32 v{vd}, 7, v0")
    A.e(f"v_min_u32 v{vd}, code_end-{name}_pc-4, v{vd}")
    A.e(f"global_load_dword v{vd}, v{vd}, s[36:37]")

GC0 = -2.0 * 0.7978845608028654 * 1.4426950408889634
GC1 = GC0 * 0.044715

L_W1 = 0
L_DF = 114688
L_XT = L_DF + 28 * 1024
L_CS = L_XT + 16384
L_RS = L_CS + 2048
K1_LDS = L_RS + 1024

def gen_k1(A, name, ST="", NX0=4, NQ1=1, PFW2=1, PRIO=0, HPK=0, GS=8, XD=0):
    header(A, name)
    e = A.e
    e("s_cmp_ge_u32 s2, 256")
    e(f"s_cbranch_scc1 {name}_end")
    load_args(A)
    code_pf(A, name, 251)
    A.nts = 0; A.ts(True); A.ts()
    R = Regs(1)
    lane = R.alloc()
    t0, t1, t2, t3 = [R.alloc() for _ in range(4)]
    e(f"v_lshrrev_b32 v{t0}, 6, v0")
    e(f"v_and_b32 v{lane}, 63, v0")
    e(f"v_readfirstlane_b32 s3, v{t0}")
    e("s_cmp_ge_u32 s2, 224")
    e(f"s_cbranch_scc1 {name}_misc")
    MF = "v_mfma_f32_32x32x16_bf16"
    MS = "v_mfma_f32_16x16x32_bf16"
    def mix(x, y):
        o = []
        nx, ny = len(x), len(y)
        i = j_ = 0
        while i < nx or j_ < ny:
            if j_ >= ny or (i < nx and i * ny <= j_ * nx): o.append(x[i]); i += 1
            else: o.append(y[j_]); j_ += 1
        return o
    l16, hh, t31 = [R.alloc() for _ in range(3)]
    SEL = R.alloc(4); HP = R.alloc(8); g8 = R.alloc(8); PC = R.alloc(2); PS = R.alloc(2)
    g = [g8 + i for i in range(8)]
    ta = [R.alloc() for _ in range(4)]
    e("s_and_b32 s69, s3, 3")
    e("s_and_b32 s4, s2, 7")
    e("s_lshr_b32 s5, s2, 3")
    e("s_and_b32 s6, s5, 1")
    e("s_bfe_u32 s12, s5, 0x10001")
    e("s_lshr_b32 s13, s5, 2")
    e("s_and_b32 s7, s4, 1")
    e("s_mul_i32 s7, s7, 7")
    e("s_add_u32 s7, s7, s13")
    e("s_lshr_b32 s8, s4, 1")
    e("s_lshl_b32 s8, s8, 1")
    e("s_add_u32 s8, s8, s12")
    e("s_lshl_b32 s8, s8, 2")
    e("s_add_u32 s8, s8, s69")
    def r8pc():
        e(f"v_lshrrev_b32 v{t0}, 3, v{lane}")
        e(f"v_and_b32 v{t1}, 7, v{lane}")
    def common2():
        e(f"v_lshlrev_b32 v{l16}, 4, v{lane}")
        e(f"v_and_b32 v{t31}, 31, v{lane}")
        e(f"v_lshrrev_b32 v{hh}, 5, v{lane}")
        e(f"s_mov_b32 s15, {f32(1.0/448)}")
        e("s_lshl_b32 s9, s69, 12")
        e(f"s_add_u32 s9, s9, {L_XT}")
        e("s_lshl_b32 s63, s8, 1")
        e("s_add_u32 s63, s63, s6")
        e("s_mul_i32 s63, s63, 114688")
        e("s_lshl_b32 s64, s7, 13")
        e("s_add_u32 s63, s63, s64")
        e("s_lshl_b32 s64, s6, 12")
        e("s_add_u32 s63, s63, s64")
        e("s_xor_b32 s64, s63, 4096")
        e("s_lshl_b32 s62, s69, 8")
        e(f"s_add_u32 s62, s62, {L_RS}")
    def common3():
        e(f"v_bfe_u32 v{t0}, v{lane}, 2, 2")
        e(f"v_lshl_add_u32 v{t1}, v{hh}, 3, v{t0}")
        e(f"v_lshlrev_b32 v{t1}, 7, v{t1}")
        e(f"v_bfe_u32 v{t2}, v{lane}, 3, 1")
        e(f"v_lshl_add_u32 v{t1}, v{t2}, 6, v{t1}")
        e(f"v_bfe_u32 v{t2}, v{lane}, 4, 1")
        e(f"v_lshl_add_u32 v{t1}, v{t2}, 5, v{t1}")
        e(f"v_and_b32 v{t2}, 3, v{lane}")
        e(f"v_lshl_add_u32 v{ta[0]}, v{t2}, 3, v{t1}")
        e(f"v_lshrrev_b32 v{t0}, 2, v{lane}")
        e(f"v_xor_b32 v{t0}, v{t0}, v{lane}")
        e(f"v_and_b32 v{t0}, 4, v{t0}")
        e(f"v_cmp_eq_u32 vcc, 0, v{t0}")
        e(f"v_mov_b32 v{t0}, 0x3f803f80")
        for i in range(4):
            e(f"v_cndmask_b32 v{SEL+i}, 0, v{t0}, vcc")
    def gelu(b, a, pk, qs):
        S = []
        for q in qs:
            if pk:
                ix = [a + 4 * q, a + 4 * q + 2]
                tm = [g[(q & 1) * 4], g[(q & 1) * 4 + 2]]
                S += [f"v_pk_mul_f32 {vr(t,2)}, {vr(x,2)}, {vr(x,2)}" for x, t in zip(ix, tm)]
                S += [f"v_pk_fma_f32 {vr(t,2)}, {vr(t,2)}, {vr(PC,2)}, {vr(PC,2)} op_sel:[0,0,1] op_sel_hi:[1,0,1]" for t in tm]
                S += [f"v_pk_mul_f32 {vr(t,2)}, {vr(t,2)}, {vr(x,2)}" for x, t in zip(ix, tm)]
                for t in tm: S += [f"v_exp_f32 v{t}, v{t}", f"v_exp_f32 v{t+1}, v{t+1}"]
                S += [f"v_pk_fma_f32 {vr(t,2)}, {vr(t,2)}, {vr(PS,2)}, {vr(PS,2)} op_sel_hi:[1,0,0]" for t in tm]
                for t in tm: S += [f"v_rcp_f32 v{t}, v{t}", f"v_rcp_f32 v{t+1}, v{t+1}"]
                S += [f"v_pk_mul_f32 {vr(t,2)}, {vr(t,2)}, {vr(x,2)}" for x, t in zip(ix, tm)]
            else:
                ix = [a + 4 * q + i for i in range(4)]
                tt = g[(q & 1) * 4:(q & 1) * 4 + 4]
                tm = [tt[0], tt[2]]
                Z = list(zip(ix, tt))
                S += [f"v_mul_f32 v{t}, v{x}, v{x}" for x, t in Z]
                S += [f"v_fma_f32 v{t}, v{t}, v{PC}, v{PC+1}" for x, t in Z]
                S += [f"v_mul_f32 v{t}, v{t}, v{x}" for x, t in Z]
                S += [f"v_exp_f32 v{t}, v{t}" for x, t in Z]
                S += [f"v_fma_f32 v{t}, v{t}, v{PS}, v{PS}" for x, t in Z]
                S += [f"v_rcp_f32 v{t}, v{t}" for x, t in Z]
                S += [f"v_mul_f32 v{t}, v{t}, v{x}" for x, t in Z]
            S += [f"v_cvt_pk_bf16_f32 v{HP+2*q+i}, v{tm[i]}, v{tm[i]+1}" for i in range(2)]
            if q & 1:
                o = (2 * b + (q >> 1)) * 1024
                S.append(f"buffer_store_dwordx4 {vr(HP+4*(q>>1),4)}, v{l16}, s[44:47], s{63 if o < 4096 else 64} offen offset:{o % 4096}{ST}")
        return S
    def gelu8(b, a, h_):
        Z = [(a + 8 * h_ + i, g[i]) for i in range(8)]
        S = [f"v_mul_f32 v{t}, v{x}, v{x}" for x, t in Z]
        S += [f"v_fma_f32 v{t}, v{t}, v{PC}, v{PC+1}" for x, t in Z]
        for x, t in Z: S += [f"v_mul_f32 v{t}, v{t}, v{x}"]
        S2 = []
        for x, t in Z: S2 += [f"v_exp_f32 v{t}, v{t}"]
        S3 = [f"v_fma_f32 v{t}, v{t}, v{PS}, v{PS}" for x, t in Z]
        S4 = [f"v_rcp_f32 v{t}, v{t}" for x, t in Z]
        S5 = [f"v_mul_f32 v{t}, v{t}, v{x}" for x, t in Z]
        S = S[:18] + mix(S2[:6], S[18:]) + S2[6:] if False else S + S2
        S += S3[:2] + mix(S4[:6], S3[2:]) + mix(S4[6:], S5[:2]) + S5[2:]
        S += [f"v_cvt_pk_bf16_f32 v{HP+4*h_+i}, v{g[2*i]}, v{g[2*i+1]}" for i in range(4)]
        o = (2 * b + h_) * 1024
        S.append(f"buffer_store_dwordx4 {vr(HP+4*h_,4)}, v{l16}, s[44:47], s{63 if o < 4096 else 64} offen offset:{o % 4096}{ST}")
        return S
    pcs = [f"v_mul_f32 v{PC+1}, {f32(GC0)}, v{PS+1}", f"v_mul_f32 v{PC}, v{PS+1}, v{PS+1}",
           f"v_mul_f32 v{PC}, v{PC}, v{PC+1}", f"v_mul_f32 v{PC}, {f32(0.044715)}, v{PC}"]
    XOFF = [0, L_DF - L_XT]
    Rsave = R.n
    CFg = [(Rsave + 3) // 4 * 4 + 4 * i for i in range(4)]
    jk = [CFg[3] + 4 + i for i in range(8)]
    common2()
    e("s_lshl_b32 s14, s7, 5")
    e(f"v_add_u32 v{t0}, s14, v{t31}")
    e(f"v_lshrrev_b32 v{t1}, 1, v{t0}")
    e(f"v_and_b32 v{t2}, 1, v{t0}")
    e(f"v_cmp_eq_u32 vcc, 1, v{t0}")
    e(f"v_mov_b32 v{t3}, 224")
    e(f"v_cndmask_b32 v{t1}, v{t1}, v{t3}, vcc")
    e(f"v_cndmask_b32 v{t2}, v{t2}, 0, vcc")
    e(f"v_cvt_f32_u32 v{t1}, v{t1}")
    e(f"v_cvt_f32_u32 v{t2}, v{t2}")
    e(f"v_mul_f32 v{t2}, 0x3e800000, v{t2}")
    for j_ in range(1, 8):
        e(f"v_mul_f32 v{jk[j_]}, {f32(j_/448.0)}, v{t1}")
    e("s_mul_i32 s10, s3, 3")
    e("s_sub_u32 s11, s3, 4")
    e("s_max_i32 s11, s11, 0")
    e("s_add_u32 s10, s10, s11")
    e("s_lshl_b32 s66, s10, 10")
    e("s_lshl_b32 s10, s10, 4")
    e("s_lshl_b32 s11, s13, 6")
    e("s_add_u32 s10, s10, s11")
    e(f"v_lshlrev_b32 v{t0}, 3, v{hh}")
    e(f"v_add_u32 v{t0}, s10, v{t0}")
    e(f"v_cvt_f32_u32 v{t0}, v{t0}")
    e(f"v_mul_f32 v{t0}, v{t0}, v{t1}")
    e(f"v_mul_f32 v{t1}, {f32(16.0)}, v{t1}")
    e(f"s_mov_b32 s65, {f32(-448.0)}")
    e(f"s_add_u32 s66, s66, {L_DF}")
    e(f"v_add_u32 v{jk[0]}, s66, v{l16}")
    def dgen(i):
        fr = CFg[i % 4]
        e(f"v_mul_f32 v{t3}, s15, v{t0}")
        e(f"v_floor_f32 v{t3}, v{t3}")
        e(f"v_fma_f32 v{t3}, v{t3}, s65, v{t0}")
        e(f"v_fma_f32 v{g[0]}, v{t3}, s15, v{t2}")
        for j_ in range(1, 8):
            e(f"v_add_f32 v{g[j_]}, v{g[0]}, v{jk[j_]}")
        for j_ in range(8):
            e(f"v_cos_f32 v{g[j_]}, v{g[j_]}")
        e(f"v_add_f32 v{t0}, v{t0}, v{t1}")
        for j_ in range(4):
            e(f"v_cvt_pk_bf16_f32 v{fr+j_}, v{g[2*j_]}, v{g[2*j_+1]}")
        e(f"ds_write_b128 v{jk[0]}, {vr(fr,4)} offset:{i*1024}")
    for i in range(3): dgen(i)
    e("s_cmp_ge_u32 s3, 4")
    e(f"s_cbranch_scc1 {name}_help")
    XF = R.alloc(112)
    acc = [R.alloc(16), R.alloc(16)]
    GR = R.alloc(16); SM = R.alloc(4)
    NB = 8
    AF = [R.alloc(4) for _ in range(NB)]
    AX = R.alloc(4); BX = R.alloc(4)
    xw0, xw1, vdf = HP, HP + 1, HP + 2
    xr = [acc[0] + i for i in range(4)]
    vxo, vxc = acc[0] + 4, acc[0] + 5
    vst, vrs, vgr, vax, vxa, vxb = [R.alloc() for _ in range(6)]
    if PRIO: e(f"s_setprio {PRIO}")
    r8pc()
    e("s_lshl_b32 s10, s6, 10")
    e("s_add_u32 s10, s10, s8")
    e("s_mul_i32 s52, s10, 896")
    for i in range(1, 4):
        e(f"s_add_u32 s{52+i}, s52, {i*(28672 if XD == 2 else 229376)}")
    e("s_lshl_b32 s59, s13, 7")
    if XD == 1:
        e(f"v_mul_u32_u24 v{vxo}, 28672, v{t31}")
        e(f"v_lshl_add_u32 v{vxo}, v{hh}, 4, v{vxo}")
    elif XD == 2:
        e(f"v_bfe_u32 v{t2}, v{lane}, 2, 3")
        e(f"v_mul_u32_u24 v{vxo}, {4*28672}, v{t2}")
        e(f"v_and_b32 v{t2}, 3, v{lane}")
        e(f"v_lshl_add_u32 v{vxo}, v{t2}, 5, v{vxo}")
        e(f"v_lshl_add_u32 v{vxo}, v{hh}, 4, v{vxo}")
        e("s_mov_b32 s48, 0x55555555"); e("s_mov_b32 s49, 0x55555555")
        e("s_mov_b32 s50, 0x33333333"); e("s_mov_b32 s51, 0x33333333")
    else:
        e(f"v_mul_u32_u24 v{vxo}, 28672, v{t0}")
        e(f"v_lshl_add_u32 v{vxo}, v{t1}, 4, v{vxo}")
    A.ts()
    e("s_waitcnt lgkmcnt(0)")
    A.ld_done = A.nld
    mk_srd(A, 36, 16, 1835008)
    e("s_barrier")
    A.ts()
    xtok = {}
    def xload(c):
        e(f"v_add_u32 v{vxc}, s59, v{vxo}")
        for i in range(4):
            if XD == 1: xtok[c, i] = e(f"buffer_load_dwordx4 {vr(XF+16*c+4*i,4)}, v{vxc}, s[36:39], s52 offen offset:{32*i}")
            else: xtok[c, i] = e(f"buffer_load_dwordx4 {vr(XF+16*c+4*i,4)}, v{vxc}, s[36:39], s{52+i} offen")
        e("s_add_u32 s59, s59, 128")
        e("s_cmp_eq_u32 s59, 896")
        e("s_cselect_b32 s59, 0, s59")
    for c in range(NX0): xload(c)
    A.ts()
    mk_srd(A, 44, 34, WS_BYTES)
    if not XD:
        e(f"v_lshrrev_b32 v{t2}, 1, v{t0}")
        e(f"v_xor_b32 v{t2}, v{t2}, v{t1}")
        e(f"v_lshlrev_b32 v{t2}, 4, v{t2}")
        e(f"v_lshl_add_u32 v{xw0}, v{t0}, 7, v{t2}")
        e(f"v_add_u32 v{xw0}, s9, v{xw0}")
        e(f"v_xor_b32 v{xw1}, 64, v{xw0}")
        e(f"v_bfe_u32 v{t2}, v{lane}, 1, 3")
        e(f"v_xor_b32 v{t2}, v{t2}, v{hh}")
        e(f"v_lshlrev_b32 v{t2}, 4, v{t2}")
        e(f"v_lshl_add_u32 v{xr[0]}, v{t31}, 7, v{t2}")
        e(f"v_add_u32 v{xr[0]}, s9, v{xr[0]}")
        for q in range(1, 4):
            e(f"v_xor_b32 v{xr[q]}, {q*32}, v{xr[0]}")
    common3()
    e(f"v_xor_b32 v{ta[1]}, 64, v{ta[0]}")
    e(f"v_add_u32 v{ta[2]}, 57344, v{ta[0]}")
    e(f"v_add_u32 v{ta[3]}, 57344, v{ta[1]}")
    e(f"v_lshrrev_b32 v{t0}, 3, v{t31}")
    e(f"v_lshlrev_b32 v{t0}, 10, v{t0}")
    e(f"v_lshl_add_u32 v{t0}, v{t31}, 4, v{t0}")
    e(f"v_bfe_u32 v{t1}, v{t31}, 2, 1")
    e(f"v_lshl_add_u32 v{t0}, v{t1}, 9, v{t0}")
    e(f"v_and_b32 v{t1}, 3, v{t31}")
    e(f"v_lshl_add_u32 v{t0}, v{t1}, 2, v{t0}")
    e(f"v_add_u32 v{vgr}, s9, v{t0}")
    for a_ in (AX, BX):
        e(f"v_mov_b32 v{a_+2}, 0")
        e(f"v_mov_b32 v{a_+3}, 0")
    e("s_lshl_b32 s14, s7, 5")
    e(f"v_add_u32 v{t0}, s14, v{t31}")
    e(f"v_cmp_eq_u32 vcc, 0, v{t0}")
    e(f"v_mov_b32 v{t3}, 0x43e0")
    e(f"v_mov_b32 v{AX+1}, 0")
    e(f"v_cndmask_b32 v{AX}, 0, v{t3}, vcc")
    e(f"v_add_u32 v{vdf}, {L_DF}, v{l16}")
    e(f"v_lshlrev_b32 v{vax}, 3, v{t31}")
    e(f"v_add_u32 v{vax}, {L_CS}, v{vax}")
    e(f"v_add_u32 v{vxa}, s9, v{l16}")
    e(f"v_add_u32 v{vxb}, {XOFF[1]}, v{vxa}")
    e(f"v_lshlrev_b32 v{vst}, 12, v{t31}")
    e(f"v_lshl_add_u32 v{vst}, v{hh}, 9, v{vst}")
    e("s_lshl_b32 s67, s7, 17")
    e("s_lshl_b32 s68, s6, 11")
    e("s_add_u32 s67, s67, s68")
    e("s_lshl_b32 s68, s8, 4")
    e("s_add_u32 s67, s67, s68")
    e(f"s_add_u32 s67, s67, {X1F}")
    e(f"v_lshl_add_u32 v{vrs}, v{hh}, 4, s62")
    D = acc[1]
    xt = {}; ft = {}
    def trw(c, i):
        A.wait_vm(xtok[c, i])
        e(f"ds_write_b128 v{xw1 if i&1 else xw0}, {vr(XF+16*c+4*i,4)} offset:{i*1024}")
    def trr(c, q): xt[4*c+q] = e(f"ds_read_b128 {vr(XF+16*c+4*q,4)}, v{xr[q]}")
    def dfr(c, q): ft[4*c+q] = e(f"ds_read_b128 {vr(AF[(4*c+q)%8],4)}, v{vdf} offset:{(4*c+q)*1024}")
    for q in range(4): dfr(0, q)
    def dtr(c):
        X = [XF + 16 * c + 4 * i for i in range(4)]; T = [acc[0] + 4 * i for i in range(4)]
        F = []
        def op(d, s0, s1, qp, pre=None, w=None):
            for j in range(4):
                def f(j=j):
                    if j == 0 and w is not None: A.wait_vm(xtok[c, w])
                    if j == 0 and pre: e(pre)
                    e(f"v_cndmask_b32_dpp v{d+j}, v{s0+j}, v{s1+j}, vcc quad_perm:{qp} row_mask:0xf bank_mask:0xf")
                F.append(f)
        p1, p2 = "[1,0,3,2]", "[2,3,0,1]"
        op(T[0], X[1], X[0], p1, "s_mov_b64 vcc, s[48:49]", 1); op(T[2], X[3], X[2], p1, None, 3)
        op(T[1], X[0], X[1], p1, "s_not_b64 vcc, vcc"); op(T[3], X[2], X[3], p1)
        op(X[0], T[2], T[0], p2, "s_mov_b64 vcc, s[50:51]"); op(X[1], T[3], T[1], p2)
        op(X[2], T[0], T[2], p2, "s_not_b64 vcc, vcc"); op(X[3], T[1], T[3], p2)
        return F
    if not XD:
        for i in range(4): trw(0, i)
        for q in range(4): trr(0, q)
    if XD == 2:
        assert NX0 == 7
        for f in dtr(0): f()
        A.ts()
        for c in range(7):
            ops = dtr(c + 1) if c < 6 else []
            def fl(k):
                for _ in range(k):
                    if ops: ops.pop(0)()
            for q in range(4):
                ks = 4 * c + q
                x_ = vr(XF+4*ks, 4)
                e(f"{MF} {vr(GR,16)}, {x_}, {x_}, {'0' if ks == 0 else vr(GR,16)}")
                fl(3)
                e(f"{MS} {vr(SM,4)}, {vr(SEL,4)}, {x_}, {'0' if ks == 0 else vr(SM,4)}")
                fl(1)
                A.wait_ld(ft[ks])
                e(f"{MF} {vr(D,16)}, {x_}, {vr(AF[ks%8],4)}, {'0' if ks == 0 else vr(D,16)}")
                if c < 6: dfr(c + 1, q)
                fl(4)
    if XD != 2: A.ts()
    for c in range(7 if XD != 2 else 0):
        ops = []
        if c < 6:
            ops = [(lambda i=i: trw(c + 1, i)) for i in range(4)] + [(lambda q=q: trr(c + 1, q)) for q in range(4)] + [(lambda q=q: dfr(c + 1, q)) for q in range(4)]
            if XD: ops = [None] * 8 + ops[8:]
        if c + NX0 < 7: xload(c + NX0)
        for q in range(4):
            ks = 4 * c + q
            x_ = vr(XF+4*ks, 4)
            if XD: A.wait_vm(xtok[c, q])
            else: A.wait_ld(xt[ks])
            e(f"{MF} {vr(GR,16)}, {x_}, {x_}, {'0' if ks == 0 else vr(GR,16)}")
            for _ in range(2):
                if ops:
                    o_ = ops.pop(0)
                    if o_: o_()
            e(f"{MS} {vr(SM,4)}, {vr(SEL,4)}, {x_}, {'0' if ks == 0 else vr(SM,4)}")
        for q in range(4):
            ks = 4 * c + q
            A.wait_ld(ft[ks])
            e(f"{MF} {vr(D,16)}, {vr(XF+4*ks,4)}, {vr(AF[ks%8],4)}, {'0' if ks == 0 else vr(D,16)}")
            if ops: ops.pop(0)()
    A.ts()
    e("s_barrier")
    def stats():
        ssum, ssq = g[0], g[1]
        F = [(lambda q=q: e(f"ds_write_b128 v{vxa}, {vr(GR+4*q,4)} offset:{q*1024}")) for q in range(4)]
        tk = {}
        def rd(): tk[0] = e(f"ds_read_b32 v{ssq}, v{vgr}")
        F += [rd, lambda: e(f"v_mul_f32 v{ssum}, s15, v{SM}"),
              lambda: e(f"v_cmp_gt_u32 vcc, 32, v{lane}"), lambda: e(f"v_lshl_add_u32 v{t1}, v{t31}, 2, s62"),
              lambda: e(f"v_cvt_pk_bf16_f32 v{BX}, -v{ssum}, -v{ssum}"), None, None, None, None, None, None,
              lambda: A.wait_ld(tk[0])]
        seq = [f"v_mul_f32 v{ssq}, s15, v{ssq}",
            f"v_fma_f32 v{ssq}, -v{ssum}, v{ssum}, v{ssq}",
            f"v_max_f32 v{ssq}, 0, v{ssq}",
            f"v_cvt_pk_bf16_f32 v{t0}, v{ssq}, v{ssq}",
            f"v_lshlrev_b32 v{t0}, 16, v{t0}",
            f"v_add_f32 v{t0}, {f32(1e-5)}, v{t0}",
            f"v_cvt_pk_bf16_f32 v{t0}, v{t0}, v{t0}",
            f"v_lshlrev_b32 v{t0}, 16, v{t0}",
            f"v_sqrt_f32 v{t0}, v{t0}",
            f"v_cndmask_b32 v{BX}, 0, v{BX}, vcc",
            f"v_cvt_pk_bf16_f32 v{BX+1}, -v{ssum}, v{t0}",
            f"v_and_b32 v{PS}, 0xffff0000, v{BX+1}",
            f"v_rcp_f32 v{PS+1}, v{PS}",
            f"v_cndmask_b32 v{BX+1}, 0, v{BX+1}, vcc",
            f"ds_write_b32 v{t1}, v{PS} offset:128",
            f"ds_write_b32 v{t1}, v{PS+1}",
            f"{MF} {vr(D,16)}, {vr(BX,4)}, {vr(AX,4)}, {vr(D,16)}"]
        return F + [(lambda s=s: e(s)) for s in seq]
    def dft_epi():
        F = []
        tk = {}
        for h_ in range(2):
            def rd(h_=h_):
                e(f"ds_read_b128 {vr(g8,4)}, v{vrs} offset:{h_*64}")
                tk[h_] = e(f"ds_read_b128 {vr(g8+4,4)}, v{vrs} offset:{h_*64+32}")
            F += [rd, None, None, None, None]
            def ml(i, h_=h_):
                def f():
                    A.wait_ld(tk[h_])
                    e(f"v_mul_f32 v{g8+i}, v{g8+i}, v{D+8*h_+i}")
                return f
            F += [ml(i) for i in range(8)]
            F += [(lambda i=i, h_=h_: e(f"v_cvt_pk_bf16_f32 v{HP+4*h_+i}, v{g8+2*i}, v{g8+2*i+1}")) for i in range(4)]
            F.append(lambda h_=h_: e(f"buffer_store_dwordx4 {vr(HP+4*h_,4)}, v{vst}, s[44:47], s67 offen offset:{h_*1024}{ST}"))
        return F
    steps = [(b, ks) for b in range(4) for ks in range(28)]
    rtok = {}
    def issue_read(n):
        if n >= len(steps): return
        b, ks = steps[n]
        f = AF[n % NB]
        e(f"ds_read_b64_tr_b16 {vr(f,2)}, v{ta[b]} offset:{ks*2048}")
        rtok[n] = e(f"ds_read_b64_tr_b16 {vr(f+2,2)}, v{ta[b]} offset:{ks*2048+512}")
    PF = 4
    for n in range(PF):
        issue_read(n)
    n = 0
    axt = {}
    for b in range(4):
        A.ts()
        def axr(b=b): axt[b] = e(f"ds_read_b64 {vr(AX,2)}, v{vax} offset:{b*512}")
        if b == 0:
            fill = stats() + dft_epi() + [lambda: e("s_barrier"), axr] + [(lambda s=s: e(s)) for s in pcs] + [None] * 4
        else:
            wt = {}
            def aw(q, b=b): wt[0] = e(f"ds_write_b128 v{vxb if (b-1)&1 else vxa}, {vr(acc[(b-1)&1]+4*q,4)} offset:{q*1024}")
            def bar():
                A.wait_ld(wt[0]); e("s_barrier")
            gl = []
            for s_ in gelu8(b - 1, acc[(b-1)&1], 1): gl += [(lambda s_=s_: e(s_))] + ([None] if s_.startswith(TRANS) else [])
            fill = [None] * 5 + [(lambda q=q: aw(q)) for q in range(2)] + gl[:6] + [bar, axr] + gl[6:] + [None] * 4
            if GS == 0: fill = [None] + [(lambda q=q: aw(q)) for q in range(4)] + [None, bar, axr] + [None] * 20
        nf = len(fill)
        fi = 0
        for ks in range(28):
            issue_read(n + PF)
            if n % 2 == 0: A.wait_ld(rtok[n + 1])
            f = AF[n % NB]
            c_ = "0" if ks == 0 else vr(acc[b & 1], 16)
            e(f"{MF} {vr(acc[b&1],16)}, {vr(f,4)}, {vr(XF+4*ks,4)}, {c_}")
            tgt = (nf * (ks + 1) + 27) // 28
            while fi < tgt:
                if fill[fi]: fill[fi]()
                fi += 1
            n += 1
        A.wait_ld(axt[b])
        e(f"{MF} {vr(acc[b&1],16)}, {vr(AX,4)}, {vr(BX,4)}, {vr(acc[b&1],16)}")
    A.ts()
    for q in range(2): wt3 = e(f"ds_write_b128 v{vxb}, {vr(acc[1]+4*q,4)} offset:{q*1024}")
    gl = gelu(3, acc[1], True, (2, 3))
    for s_ in gl[:6]: e(s_)
    A.wait_ld(wt3)
    e("s_barrier")
    for s_ in gl[6:]: e(s_)
    A.ts_flush(0)
    e("s_endpgm")
    nv0 = R.n
    A.label(f"{name}_help")
    A.reset_counts()
    A.nts = 2
    R.n = Rsave
    CF = [R.alloc(4) for _ in range(8)]
    if HPK: e(f"s_setprio {HPK}")
    CA = R.alloc(4); HA = R.alloc(16)
    vwA, vwB, b1r, vxa, vax = [R.alloc() for _ in range(5)]
    dgen(3)
    r8pc()
    e(f"v_lshlrev_b32 v{t2}, 1, v{t0}")
    e(f"v_and_b32 v{t2}, 4, v{t2}")
    e(f"v_xor_b32 v{t2}, v{t2}, v{t1}")
    e(f"v_mul_u32_u24 v{vwA}, 3584, v{t0}")
    e(f"v_lshl_add_u32 v{vwA}, v{t2}, 4, v{vwA}")
    e("s_lshl_b32 s14, s6, 7")
    e(f"v_add_u32 v{vwA}, s14, v{vwA}")
    e(f"v_xor_b32 v{vwB}, 128, v{vwA}")
    e("s_mul_i32 s56, s69, 28672")
    e("s_lshl_b32 s10, s7, 8")
    e("s_add_u32 s56, s56, s10")
    e("s_add_u32 s10, s10, s14")
    e("s_lshl_b32 s11, s69, 6")
    e("s_xor_b32 s10, s10, s11")
    e("s_mul_i32 s57, s12, 28672")
    e("s_lshl_b32 s58, s69, 10")
    e("s_add_u32 s57, s57, s58")
    e("s_xor_b32 s58, s57, 28672")
    e("s_mul_i32 s60, s12, 7")
    e("s_lshl_b32 s61, s13, 1")
    e("s_add_u32 s60, s60, s61")
    e("s_cmp_ge_u32 s60, 14")
    e("s_cselect_b32 s61, 14, 0")
    e("s_sub_u32 s60, s60, s61")
    e("s_mul_i32 s60, s60, 114688")
    e("s_add_u32 s60, s60, s56")
    e(f"s_add_u32 s61, s56, {14*114688}")
    A.ts()
    e("s_waitcnt lgkmcnt(0)")
    A.ld_done = A.nld
    e("s_barrier")
    mk_srd(A, 40, 24, 1605632)
    mk_srd(A, 44, 34, WS_BYTES)
    mk_srd(A, 48, 26, 3584)
    wtok = {}
    def wload(p, i):
        if p == 0:
            if i == 0:
                e("s_mov_b32 s16, s60")
            else:
                e(f"s_add_u32 s{16+i}, s{15+i}, 114688")
                e(f"s_cmp_eq_u32 s{16+i}, s61")
                e(f"s_cselect_b32 s{16+i}, s56, s{16+i}")
        e(f"s_add_u32 m0, s{57 if i < 7 else 58}, {L_W1 + p*57344 + (i%7)*4096}")
        wtok[p] = e(f"buffer_load_dwordx4 v{vwB if p else vwA}, s[40:43], s{16+i} offen lds")
    e(f"v_lshlrev_b32 v{t2}, 1, v{t31}")
    e(f"buffer_load_ushort v{b1r}, v{t2}, s[48:51], s10 offen")
    for p_ in range(2):
        for i in range(14): wload(p_, i)
    A.ts()
    common3()
    e(f"v_mul_u32_u24 v{t0}, {28672-1024}, v{hh}")
    e("s_lshl_b32 s12, s69, 10")
    e(f"v_add3_u32 v{ta[0]}, v{ta[0]}, v{t0}, s12")
    e(f"v_xor_b32 v{ta[1]}, 64, v{ta[0]}")
    e(f"v_add_u32 v{ta[2]}, 57344, v{ta[0]}")
    e(f"v_add_u32 v{ta[3]}, 57344, v{ta[1]}")
    e(f"v_add_u32 v{vxa}, s9, v{l16}")
    e("s_lshl_b32 s12, s69, 2")
    e(f"s_add_u32 s12, s12, {L_CS}")
    e(f"v_lshl_add_u32 v{vwA}, v{t31}, 4, s12")
    e("s_lshl_b32 s12, s69, 9")
    e(f"s_add_u32 s12, s12, {L_CS}")
    e(f"v_lshl_add_u32 v{vwB}, v{t31}, 4, s12")
    e(f"v_lshl_add_u32 v{vax}, v{t31}, 3, s12")
    e(f"v_lshl_add_u32 v{t3}, v{t31}, 2, s62")
    tk = {}
    def rdc(n_):
        if n_ >= 28: return
        b_, i = n_ // 7, n_ % 7
        if n_ % 14 == 0:
            A.wait_vm(wtok[n_ // 14]); A.ts()
        c_ = CF[n_ % 8]
        e(f"ds_read_b64_tr_b16 {vr(c_,2)}, v{ta[b_]} offset:{i*4096}")
        tk[n_] = e(f"ds_read_b64_tr_b16 {vr(c_+2,2)}, v{ta[b_]} offset:{i*4096+512}")
    for hf in range(2):
        for i in range(6): rdc(14 * hf + i)
        for i in range(14):
            n_ = 14 * hf + i
            A.wait_ld(tk[n_])
            ca = vr(HA + 4 * (n_ // 7), 4)
            e(f"{MS} {ca}, {vr(SEL,4)}, {vr(CF[n_%8],4)}, {'0' if n_ % 7 == 0 else ca}")
            if i + 6 < 14: rdc(n_ + 6)
    for b_ in range(4):
        e(f"ds_write_b32 v{vwA}, v{HA+4*b_} offset:{b_*512}")
    A.wait_all_ld()
    A.ts()
    e("s_barrier")
    A.ts()
    e(f"ds_read_b128 {vr(CA,4)}, v{vwB}")
    A.wait_all_ld()
    for s_ in [f"v_add_f32 v{CA}, v{CA}, v{CA+1}", f"v_add_f32 v{CA+2}, v{CA+2}, v{CA+3}", f"v_add_f32 v{CA}, v{CA}, v{CA+2}",
               f"v_cvt_pk_bf16_f32 v{CA+1}, v{CA}, v{CA}",
               f"v_lshlrev_b32 v{CA+2}, 16, v{CA+1}",
               f"v_sub_f32 v{CA+3}, v{CA}, v{CA+2}",
               f"v_cvt_pk_bf16_f32 v{g8}, v{CA}, v{CA+3}",
               f"v_and_b32 v{CA+2}, 0xffff0000, v{g8}",
               f"v_sub_f32 v{CA+3}, v{CA+3}, v{CA+2}",
               f"v_cvt_pk_bf16_f32 v{g8+1}, v{CA+3}, 0",
               f"v_lshl_or_b32 v{g8+1}, v{b1r}, 16, v{g8+1}",
               f"ds_write_b64 v{vax}, {vr(g8,2)}"]: e(s_)
    A.wait_all_ld()
    e("s_barrier")
    e(f"ds_read_b32 v{PS}, v{t3} offset:128")
    e(f"ds_read_b32 v{PS+1}, v{t3}")
    e(f"v_add_u32 v{t0}, {XOFF[1]}, v{vxa}")
    A.wait_all_ld()
    for s_ in pcs: e(s_)
    for b in range(4):
        e("s_barrier")
        A.ts()
        full = GS == 0 and b < 3
        tks = [e(f"ds_read_b128 {vr(HA+4*q,4)}, v{t0 if b&1 else vxa} offset:{q*1024}") for q in range(4 if full else 2)]
        A.wait_ld(tks[1])
        for s_ in (gelu(b, HA, True, (0, 1)) if b == 3 else gelu8(b, HA, 0)): e(s_)
        if full:
            A.wait_ld(tks[3])
            for s_ in gelu8(b, HA, 1): e(s_)
    A.ts_flush(0)
    e("s_endpgm")
    A.nts = 2
    R.n = nv0
    nv = R.n
    A.label(f"{name}_misc")
    A.reset_counts()
    e("s_nop 4")
    R = Regs(6)
    l16, i15, kk, va, vo, vk = [R.alloc() for _ in range(6)]
    P = R.alloc(4)
    ra = [R.alloc() for _ in range(16)]
    q_ = [R.alloc() for _ in range(12)]
    e("s_cmp_ge_u32 s3, 4")
    e(f"s_cbranch_scc1 {name}_end")
    e("s_sub_u32 s4, s2, 224")
    e("s_and_b32 s5, s4, 3")
    e("s_lshr_b32 s6, s4, 2")
    e(f"v_lshlrev_b32 v{l16}, 4, v{lane}")
    e("s_waitcnt lgkmcnt(0)")
    mk_srd(A, 36, 18, 921600)
    mk_srd(A, 40, 20, 921600)
    mk_srd(A, 44, 34, WS_BYTES)
    e("s_lshl_b32 s7, s6, 2")
    e("s_add_u32 s7, s7, s3")
    e("s_lshl_b32 s7, s7, 2")
    e("s_add_u32 s7, s7, s5")
    e("s_mul_i32 s7, s7, 7200")
    e("s_lshl_b32 s8, s3, 13")
    for arr in range(2):
        for it in range(8):
            e(f"s_add_u32 m0, s8, {arr*32768 + it*1024}")
            e(f"s_add_u32 s9, s7, {it*1024}")
            e(f"buffer_load_dwordx4 v{l16}, s[{36+4*arr}:{39+4*arr}], s9 offen lds")
    e("s_lshl_b32 s10, s4, 2")
    e("s_add_u32 s10, s10, s3")
    e(f"v_and_b32 v{t0}, 31, v{lane}")
    e(f"v_lshrrev_b32 v{t1}, 5, v{lane}")
    e(f"s_mov_b32 s15, {f32(1.0/448)}")
    e(f"s_mov_b32 s60, {f32(-448.0)}")
    SC = 2.0 / (2048 * 448)
    e(f"s_mov_b32 s61, {f32(SC)}")
    e(f"s_mov_b32 s62, {f32(-SC)}")
    e(f"v_mov_b32 v{t2}, {f32(SC/2)}")
    e(f"v_lshlrev_b32 v{t3}, 31, v{lane}")
    e(f"v_xor_b32 v{t3}, v{t3}, v{t2}")
    e(f"v_cvt_pk_bf16_f32 v{vk}, v{t2}, v{t3}")
    for it in range(4):
        e(f"s_add_u32 s11, s10, {it*128}")
        e("s_mul_i32 s12, s11, 2341")
        e("s_lshr_b32 s12, s12, 16")
        e("s_mul_i32 s13, s12, 28")
        e("s_sub_u32 s13, s11, s13")
        e("s_lshl_b32 s12, s12, 5")
        e("s_lshl_b32 s14, s13, 3")
        e(f"v_add_u32 v{t2}, s12, v{t0}")
        e(f"v_cvt_f32_u32 v{t2}, v{t2}")
        e(f"v_lshl_add_u32 v{t3}, v{t1}, 1, s14")
        e(f"v_cmp_eq_u32 vcc, 0, v{t3}")
        e(f"v_cvt_f32_u32 v{t3}, v{t3}")
        for z, off in enumerate((0.0, 1.0, 4.0, 5.0)):
            e(f"v_add_f32 v{q_[z]}, {f32(off)}, v{t3}")
            e(f"v_mul_f32 v{q_[z]}, v{q_[z]}, v{t2}")
            e(f"v_mul_f32 v{q_[4+z]}, s15, v{q_[z]}")
            e(f"v_floor_f32 v{q_[4+z]}, v{q_[4+z]}")
            e(f"v_fma_f32 v{q_[z]}, v{q_[4+z]}, s60, v{q_[z]}")
            e(f"v_mul_f32 v{q_[z]}, s15, v{q_[z]}")
            e(f"v_cos_f32 v{q_[4+z]}, v{q_[z]}")
            e(f"v_sin_f32 v{q_[8+z]}, v{q_[z]}")
            e(f"v_mul_f32 v{q_[4+z]}, s61, v{q_[4+z]}")
            e(f"v_mul_f32 v{q_[8+z]}, s62, v{q_[8+z]}")
            e(f"v_cvt_pk_bf16_f32 v{P+z}, v{q_[4+z]}, v{q_[8+z]}")
        e(f"v_cndmask_b32 v{P}, v{P}, v{vk}, vcc")
        e("s_lshl_b32 s12, s11, 10")
        e(f"s_add_u32 s12, s12, {IDF}")
        e("s_cmp_lt_u32 s11, 392")
        e(f"s_cselect_b32 s12, s12, {OOB}")
        e(f"buffer_store_dwordx4 {vr(P,4)}, v{l16}, s[44:47], s12 offen")
    A.ts()
    e(f"v_and_b32 v{i15}, 15, v{lane}")
    e(f"v_lshrrev_b32 v{kk}, 4, v{lane}")
    e("s_cmp_lt_u32 s10, 118")
    e(f"s_cbranch_scc1 {name}_notab")
    e("s_sub_u32 s11, s10, 118")
    e("s_cmp_lt_u32 s11, 8")
    e("s_cselect_b32 s12, 1, 0")
    e("s_lshr_b32 s13, s11, 1")
    e("s_and_b32 s14, s11, 1")
    e("s_cmp_eq_u32 s12, 1")
    e("s_cselect_b32 s13, s13, s14")
    e("s_cselect_b32 s14, s14, 0")
    e(f"s_mov_b32 s63, {f32(1/32)}")
    e(f"s_mov_b32 s64, {f32(16.0)}")
    e(f"s_cselect_b32 s63, {f32(1/64)}, s63")
    e(f"s_cselect_b32 s64, {f32(8.0)}, s64")
    e("s_cselect_b32 s65, 16, 8")
    e("s_lshl_b32 s13, s13, 4")
    e("s_lshl_b32 s14, s14, 5")
    e(f"v_add_u32 v{t2}, s13, v{i15}")
    e(f"v_cvt_f32_u32 v{t2}, v{t2}")
    e(f"v_mul_f32 v{t2}, s63, v{t2}")
    e(f"v_lshrrev_b32 v{t3}, 1, v{kk}")
    e(f"v_mul_u32_u24 v{t3}, s65, v{t3}")
    e(f"v_and_b32 v{t0}, 1, v{kk}")
    e(f"v_lshl_add_u32 v{t3}, v{t0}, 2, v{t3}")
    e(f"v_add_u32 v{t3}, s14, v{t3}")
    e(f"v_cvt_f32_u32 v{t3}, v{t3}")
    for j_ in range(8):
        e(f"v_add_f32 v{ra[j_]}, {f32(float(j_ & 3))}, v{t3}")
        if j_ >= 4:
            e(f"v_add_f32 v{ra[j_]}, s64, v{ra[j_]}")
        e(f"v_mul_f32 v{ra[j_]}, v{ra[j_]}, v{t2}")
        e(f"v_sin_f32 v{ra[8+j_]}, v{ra[j_]}")
        e(f"v_cos_f32 v{ra[j_]}, v{ra[j_]}")
    e("s_lshl_b32 s11, s11, 11")
    e(f"s_add_u32 s11, s11, {F1T}")
    for cs_ in range(2):
        for z in range(4):
            e(f"v_cvt_pk_bf16_f32 v{P+z}, v{ra[8*cs_+2*z]}, v{ra[8*cs_+2*z+1]}")
        e(f"buffer_store_dwordx4 {vr(P,4)}, v{l16}, s[44:47], s11 offen offset:{cs_*1024}")
    A.label(f"{name}_notab")
    e("s_nop 4")
    e(f"v_mul_u32_u24 v{va}, 450, v{i15}")
    e("s_lshl_b32 s11, s3, 2")
    e(f"v_add_u32 v{t0}, s11, v{kk}")
    e(f"v_lshl_add_u32 v{va}, v{t0}, 1, v{va}")
    e(f"v_lshlrev_b32 v{vo}, 13, v{t0}")
    e(f"v_lshl_add_u32 v{vo}, v{i15}, 4, v{vo}")
    e("s_lshl_b32 s12, s5, 11")
    e("s_lshl_b32 s13, s6, 8")
    e("s_add_u32 s12, s12, s13")
    e(f"s_add_u32 s12, s12, {WT}")
    e(f"v_cmp_eq_u32 vcc, 0, v{t0}")
    e(f"v_mov_b32 v{t1}, {OOB}")
    A.ts()
    e("s_waitcnt vmcnt(0)")
    e("s_barrier")
    A.ts()
    A.reset_counts()
    P2 = [P, R.alloc(4)]
    toks = {}
    def rdw(n_):
        o = (n_ & 1) * 8
        for r_ in range(4):
            e(f"ds_read_u16 v{ra[o+r_]}, v{va} offset:{r_*8192 + n_*32}")
            toks[n_] = e(f"ds_read_u16 v{ra[o+4+r_]}, v{va} offset:{32768 + r_*8192 + n_*32}")
    rdw(0)
    for n_ in range(15):
        A.wait_ld(toks[n_])
        if n_ + 1 < 15: rdw(n_ + 1)
        o = (n_ & 1) * 8
        for r_ in range(4):
            e(f"v_lshl_or_b32 v{P2[n_&1]+r_}, v{ra[o+4+r_]}, 16, v{ra[o+r_]}")
        if n_ == 14:
            e(f"v_cndmask_b32 v{vo}, v{t1}, v{vo}, vcc")
        e(f"buffer_store_dwordx4 {vr(P2[n_&1],4)}, v{vo}, s[44:47], s12 offen")
        e(f"s_add_u32 s12, s12, {16*8192}")
    if PFW2:
        mk_srd(A, 36, 28, 1605632)
        e("s_mul_i32 s11, s10, 13312")
        for it in range(13):
            e(f"buffer_load_dwordx4 {vr(P2[it&1],4)}, v{l16}, s[36:39], s11 offen")
            e("s_add_u32 s11, s11, 1024")
        e("s_waitcnt vmcnt(0)")
    A.ts_flush(0)
    A.label(f"{name}_end")
    e("s_endpgm")
    return max(nv, R.n)
```

```python
from asmlib import *
from k1 import *

def fft_block(A, lane, LB, barrier, LD="", ST="", kidx=1, wofs=0, bar0=False, xbar=0, fb=(0,0,0,0)):
    def bars(i):
        for _ in range(fb[i]): A.e("s_barrier")
    e = A.e
    R = Regs(lane + 1)
    i15, g, l16, va, t0, t1, t2, vst, vw = [R.alloc() for _ in range(9)]
    XA = [[[R.alloc(4) for Q in range(2)] for T in range(2)] for c in range(2)]
    F1 = [[R.alloc(4) for cs in range(3)] for Q in range(2)]
    F2 = [[R.alloc(4) for cs in range(3)] for T in range(2)]
    W = [R.alloc(4) for T in range(2)]
    WR = R.alloc(8); WI = R.alloc(8)
    C1 = R.alloc(8); S1 = R.alloc(8); C2 = R.alloc(8); S2 = R.alloc(8)
    DR = R.alloc(8); DI = R.alloc(8)
    TR = R.alloc(8); TI = R.alloc(8)
    ZR = R.alloc(4); ZI = R.alloc(4)
    e(f"v_and_b32 v{i15}, 15, v{lane}")
    e(f"v_lshrrev_b32 v{g}, 4, v{lane}")
    e(f"v_lshlrev_b32 v{l16}, 4, v{lane}")
    e(f"v_lshlrev_b32 v{va}, 4, v{i15}")
    e(f"v_lshl_add_u32 v{va}, v{g}, 9, v{va}")
    e("s_lshl_b32 s4, s2, 13")
    e("s_add_u32 s5, s4, 4096")
    e("s_cmp_eq_u32 s2, 224")
    e("s_cselect_b32 s4, 4096, s4")
    e(f"s_cselect_b32 s5, {OOB}, s5")
    e("s_cmp_eq_u32 s2, 0")
    e(f"s_cselect_b32 s5, {OOB}, s5")
    e(f"s_add_u32 s6, s4, {X1F}")
    e(f"s_add_u32 s7, s5, {X1F}")
    e(f"s_add_u32 s8, s4, {Y1T}")
    e(f"s_add_u32 s9, s5, {Y1T}")
    e("s_lshl_b32 s11, s2, 13")
    e("s_lshl_b32 s12, s3, 11")
    e("s_add_u32 s11, s11, s12")
    e(f"s_add_u32 s11, s11, {WT}")
    e("s_cmp_lt_u32 s3, 2")
    e("s_cselect_b32 s10, s6, s7")
    e("s_and_b32 s13, s12, 2048")
    e("s_add_u32 s10, s10, s13")
    e(f"s_add_u32 m0, s12, {LB + 8192}")
    lm = R.alloc()
    e(f"v_lshlrev_b32 v{lm}, 31, v{lane}")
    e(f"v_lshrrev_b32 v{t0}, 16, v{lm}")
    e(f"v_or_b32 v{lm}, v{lm}, v{t0}")
    e("s_mov_b32 s15, 0x80008000")
    e("s_brev_b32 s12, 1")
    e("s_lshl_b32 s13, s3, 4")
    e(f"v_add_u32 v{t0}, s13, v{i15}")
    e(f"v_cvt_f32_u32 v{t0}, v{t0}")
    e(f"v_mul_f32 v{t0}, {f32(1/2048)}, v{t0}")
    e(f"v_lshlrev_b32 v{t1}, 2, v{g}")
    e(f"v_add_u32 v{vst}, s13, v{t1}")
    e(f"v_cvt_f32_u32 v{t1}, v{t1}")
    e(f"v_mul_f32 v{t1}, v{t1}, v{t0}")
    for j in range(8):
        e(f"v_fma_f32 v{C1+j}, v{t0}, {f32(float(16*(j>>2)+(j&3)))}, v{t1}" if False else
          f"v_fmamk_f32 v{C1+j}, v{t0}, {f32(float(16*(j>>2)+(j&3)))}, v{t1}")
    for j in range(8):
        e(f"v_sin_f32 v{S1+j}, v{C1+j}")
        e(f"v_cos_f32 v{C1+j}, v{C1+j}")
    e("s_waitcnt lgkmcnt(0)")
    mk_srd(A, 44, 34, WS_BYTES)
    tk = {}
    bars(0)
    for h in range(2):
        tk['x'] = e(f"buffer_load_dwordx4 v{l16}, s[44:47], s10 offen offset:{h*1024} lds{LD}")
    for T in range(2):
        tk['w'] = e(f"buffer_load_dwordx4 {vr(W[T],4)}, v{l16}, s[44:47], s11 offen offset:{T*1024}{LD}")
    A.nts = 2; A.ts()
    e(f"v_cvt_f32_u32 v{t0}, v{i15}")
    e(f"v_mul_f32 v{t0}, {f32(1/2048)}, v{t0}")
    e(f"v_add_f32 v{t2}, {f32(16/2048)}, v{t0}")
    e(f"v_cvt_f32_u32 v{t1}, v{vst}")
    for j in range(8):
        tt = t2 if j >> 2 else t0
        e(f"v_add_f32 v{C2+j}, {f32(float(j&3))}, v{t1}")
        e(f"v_mul_f32 v{C2+j}, v{C2+j}, v{tt}")
    for j in range(8):
        e(f"v_sin_f32 v{S2+j}, v{C2+j}")
        e(f"v_cos_f32 v{C2+j}, v{C2+j}")
    e(f"v_mul_f32 v{t0}, {f32(64.0)}, v{t0}")
    e(f"v_lshlrev_b32 v{t1}, 2, v{g}")
    e(f"v_cvt_f32_u32 v{t1}, v{t1}")
    e(f"v_mul_f32 v{TR}, v{t1}, v{t0}")
    for j in range(1, 4): e(f"v_fmamk_f32 v{TR+j}, v{t0}, {f32(float(j))}, v{TR}")
    for j in range(4):
        e(f"v_sin_f32 v{TI+j}, v{TR+j}")
        e(f"v_cos_f32 v{TR+j}, v{TR+j}")
    for cs, src in ((0, TR), (1, TI)):
        for z in range(2): e(f"v_cvt_pk_bf16_f32 v{F2[0][cs]+z}, v{src+2*z}, v{src+2*z+1}")
        for z in range(2): e(f"v_xor_b32 v{F2[0][cs]+2+z}, v{F2[0][cs]+z}, v{lm}")
        for z in range(4): e(f"v_xor_b32 v{F2[1][cs]+z}, s12, v{F2[0][cs]+z}")
    for T in range(2):
        for z in range(4): e(f"v_xor_b32 v{F2[T][2]+z}, s15, v{F2[T][1]+z}")
    e(f"v_add_u32 v{t0}, s13, v{i15}")
    e(f"v_cvt_f32_u32 v{t0}, v{t0}")
    e(f"v_mul_f32 v{t0}, {f32(1/64)}, v{t0}")
    e(f"v_lshrrev_b32 v{t1}, 1, v{g}")
    e(f"v_lshlrev_b32 v{t1}, 3, v{t1}")
    e(f"v_lshl_add_u32 v{t1}, v{g}, 2, v{t1}")
    e(f"v_cvt_f32_u32 v{t1}, v{t1}")
    e(f"v_mul_f32 v{TR}, v{t1}, v{t0}")
    for j in range(1, 8): e(f"v_fmamk_f32 v{TR+j}, v{t0}, {f32(float((j&3)+8*(j>>2)))}, v{TR}")
    for j in range(8):
        e(f"v_sin_f32 v{TI+j}, v{TR+j}")
        e(f"v_cos_f32 v{TR+j}, v{TR+j}")
    for cs, src in ((0, TR), (1, TI)):
        for z in range(4): e(f"v_cvt_pk_bf16_f32 v{F1[0][cs]+z}, v{src+2*z}, v{src+2*z+1}")
        for z in range(4): e(f"v_xor_b32 v{F1[1][cs]+z}, v{F1[0][cs]+z}, v{lm}")
    for Q in range(2):
        for z in range(4): e(f"v_xor_b32 v{F1[Q][2]+z}, s15, v{F1[Q][1]+z}")
    e(f"v_add_u32 v{t2}, {LB + 8192}, v{va}")
    e(f"v_lshlrev_b32 v{vst}, 1, v{vst}")
    e(f"v_lshl_add_u32 v{vst}, v{i15}, 7, v{vst}")
    e(f"v_and_b32 v{t0}, 1, v{g}")
    e(f"v_lshlrev_b32 v{t0}, 8, v{t0}")
    e(f"v_lshl_add_u32 v{t0}, v{i15}, 4, v{t0}")
    e(f"v_lshrrev_b32 v{t1}, 1, v{g}")
    e(f"v_lshl_add_u32 v{t0}, v{t1}, 3, v{t0}")
    e("s_lshl_b32 s14, s3, 9")
    e(f"s_add_u32 s14, s14, {LB}")
    e(f"v_add_u32 v{vw}, s14, v{t0}")
    e(f"v_add_u32 v{va}, {LB}, v{l16}")
    M = "v_mfma_f32_16x16x32_bf16"
    def mm(d, a, b, first):
        e(f"{M} {vr(d,4)}, {vr(a,4)}, {vr(b,4)}, {'0' if first else vr(d,4)}")
    def cmul(c, s, sgn):
        for p in range(8):
            e(f"v_mul_f32 v{TR+p}, v{DR+p}, v{c+p}")
            e(f"v_mul_f32 v{TI+p}, v{DI+p}, v{c+p}")
        for p in range(8):
            e(f"v_fma_f32 v{TR+p}, v{DI+p}, {'-' if sgn > 0 else ''}v{s+p}, v{TR+p}")
            e(f"v_fma_f32 v{TI+p}, v{DR+p}, {'-' if sgn < 0 else ''}v{s+p}, v{TI+p}")
        for p in range(4):
            e(f"v_cvt_pk_bf16_f32 v{ZR+p}, v{TR+2*p}, v{TR+2*p+1}")
            e(f"v_cvt_pk_bf16_f32 v{ZI+p}, v{TI+2*p}, v{TI+2*p+1}")
    A.wait_vm(tk['x'])
    assert fb[1] >= 1
    bars(1)
    A.ts()
    for Q in range(2):
        for c in range(2):
            for T in range(2):
                tk['x', c, T, Q] = e(f"ds_read_b128 {vr(XA[c][T][Q],4)}, v{t2} offset:{c*4096+Q*2048+T*256}")
    e(f"s_cmp_lt_u32 s5, {OOB}")
    e("s_cbranch_scc1 fft_nz")
    e("s_waitcnt lgkmcnt(0)")
    for T in range(2):
        for Q in range(2):
            for z in range(4): e(f"v_mov_b32 v{XA[1][T][Q]+z}, 0")
    A.label("fft_nz")
    for Q in range(2):
        for T in range(2):
            A.wait_ld(tk['x', 0, T, Q])
            mm(DR+4*T, XA[0][T][Q], F1[Q][0], Q == 0)
            mm(DI+4*T, XA[0][T][Q], F1[Q][2], Q == 0)
        for T in range(2):
            A.wait_ld(tk['x', 1, T, Q])
            mm(DR+4*T, XA[1][T][Q], F1[Q][1], False)
            mm(DI+4*T, XA[1][T][Q], F1[Q][0], False)
    bars(2)
    A.ts()
    cmul(C1, S1, -1)
    for T in range(2):
        mm(DR+4*T, F2[T][0], ZR, True)
        mm(DI+4*T, F2[T][0], ZI, True)
    for T in range(2):
        mm(DR+4*T, F2[T][1], ZI, False)
        mm(DI+4*T, F2[T][2], ZR, False)
    bars(3)
    A.wait_vm(tk['w'])
    for j in range(8):
        e(f"v_lshlrev_b32 v{WR+j}, 16, v{W[j>>2]+(j&3)}")
        e(f"v_and_b32 v{WI+j}, 0xffff0000, v{W[j>>2]+(j&3)}")
    cmul(WR, WI, +1)
    for T in range(2):
        mm(DR+4*T, ZR, F2[T][0], True)
        mm(DI+4*T, ZI, F2[T][0], True)
    for T in range(2):
        mm(DR+4*T, ZI, F2[T][2], False)
        mm(DI+4*T, ZR, F2[T][1], False)
    bars(5)
    cmul(C2, S2, +1)
    for T in range(2):
        e(f"ds_write_b64 v{vw}, {vr(ZR+2*T,2)} offset:{T*2048}")
        e(f"ds_write_b64 v{vw}, {vr(ZI+2*T,2)} offset:{4096+T*2048}")
    A.wait_all_ld()
    A.ts()
    barrier()
    A.ts()
    for Q in range(2):
        for c in range(2):
            for T in range(2):
                tk['u', c, T, Q] = e(f"ds_read_b128 {vr(XA[c][T][Q],4)}, v{va} offset:{(c*2+T)*2048+Q*1024}")
    for Q in range(2):
        for T in range(2):
            A.wait_ld(tk['u', 0, T, Q])
            mm(DR+4*T, F1[Q][0], XA[0][T][Q], Q == 0)
            mm(DI+4*T, F1[Q][1], XA[0][T][Q], Q == 0)
        for T in range(2):
            A.wait_ld(tk['u', 1, T, Q])
            mm(DR+4*T, F1[Q][2], XA[1][T][Q], False)
            mm(DI+4*T, F1[Q][0], XA[1][T][Q], False)
    for p in range(4):
        e(f"v_cvt_pk_bf16_f32 v{ZR+p}, v{DR+2*p}, v{DR+2*p+1}")
        e(f"v_cvt_pk_bf16_f32 v{ZI+p}, v{DI+2*p}, v{DI+2*p+1}")
    bars(4)
    for T in range(2):
        e(f"buffer_store_dwordx2 {vr(ZR+2*T,2)}, v{vst}, s[44:47], s8 offen offset:{T*2048}{ST}")
        e(f"buffer_store_dwordx2 {vr(ZI+2*T,2)}, v{vst}, s[44:47], s9 offen offset:{T*2048}{ST}")
    A.ts()
    for _ in range(xbar): e("s_barrier")
    A.ts_flush(kidx, "s3", wofs)
    e("s_endpgm")
    return R.n

PB = WS_END

def gemm_block(A, lane, nf, ni, epi, PD, bar_at=None, LD="", ST="", kidx=2, ROT=(7, 4), bar0=False):
    e = A.e
    R = Regs(lane + 1)
    t0, t1, t2, l16, vw2, vy, tid = [R.alloc() for _ in range(7)]
    ta = [R.alloc(), R.alloc()]
    acc = [[R.alloc(16) for u in range(2)] for h in range(2)]
    LF = [[R.alloc(4) for h in range(2)] for p in range(2)]
    GF = [[R.alloc(4) for h in range(2)] for p in range(PD)]
    XR = R.alloc(8)
    BR = R.alloc(8)
    e("s_and_b32 s4, s2, 7")
    e("s_lshr_b32 s5, s2, 3")
    e("s_and_b32 s6, s5, 3")
    e("s_lshr_b32 s7, s5, 2")
    e("s_lshl_b32 s8, s4, 2")
    e("s_add_u32 s8, s8, s6")
    e(f"v_lshrrev_b32 v{t0}, 3, v{lane}")
    e(f"v_and_b32 v{t1}, 7, v{lane}")
    e(f"v_lshlrev_b32 v{t2}, 1, v{t0}")
    e(f"v_and_b32 v{t2}, 4, v{t2}")
    e(f"v_xor_b32 v{t2}, v{t2}, v{t1}")
    e(f"v_lshlrev_b32 v{t2}, 4, v{t2}")
    e(f"v_mad_u32_u24 v{vw2}, v{t0}, 896, v{t2}" if False else f"v_mul_u32_u24 v{vw2}, 896, v{t0}")
    e(f"v_add_u32 v{vw2}, v{vw2}, v{t2}")
    e(f"v_lshl_add_u32 v{vy}, v{t0}, 12, v{t2}")
    e(f"v_lshlrev_b32 v{l16}, 4, v{lane}")
    e("s_lshl_b32 s9, s7, 7")
    e(f"s_mul_i32 s10, s3, {28*16*896}")
    e("s_add_u32 s10, s10, s9")
    e("s_mul_i32 s11, s8, 229376")
    e("s_mul_i32 s12, s3, 28672")
    e("s_add_u32 s11, s11, s12")
    e("s_add_u32 s12, s11, 114688")
    e(f"s_mul_i32 s13, s3, {7*16*4096}")
    e("s_lshl_b32 s14, s8, 7")
    e("s_add_u32 s13, s13, s14")
    e(f"s_add_u32 s13, s13, {Y1T}")
    e("s_mul_i32 s14, s7, 57344")
    e("s_mul_i32 s15, s3, 7168")
    e("s_add_u32 s14, s14, s15")
    e(f"s_add_u32 s14, s14, {IDF}")
    e("s_add_u32 s15, s14, 28672")
    e(f"s_mul_i32 s57, s3, {PD*2048}")
    e(f"s_mul_i32 s62, s6, {ROT[0]}")
    e(f"s_mul_i32 s63, s7, {ROT[1]}")
    e("s_add_u32 s62, s62, s63")
    e("s_cmp_ge_u32 s62, 28")
    e("s_cselect_b32 s63, 28, 0")
    e("s_sub_u32 s62, s62, s63")
    e("s_mul_i32 s63, s62, 14336")
    e("s_add_u32 s63, s63, s10")
    e("s_lshl_b32 s64, s62, 10")
    e("s_add_u32 s64, s64, s11")
    e("s_waitcnt lgkmcnt(0)")
    mk_srd(A, 44, 34, WS_BYTES)
    mk_srd(A, 40, 28, 1605632)
    mk_srd(A, 36, 16, 1835008)
    mk_srd(A, 48, 30, 896)
    mk_srd(A, 52, 32, 1835008)
    steps = [('i', k) for k in range(ni)] + [('f', k) for k in range(nf)]
    if epi == 'full':
        steps = [('f', k) for k in range(nf)] + [('i', k) for k in range(ni)]
    N = len(steps)
    tok = {}
    def issue(n):
        if n >= N: return
        kind, k = steps[n]
        sl = n % PD
        for hf in range(2):
            e(f"s_add_u32 m0, s57, {sl*2048 + hf*1024}")
            if kind == 'f':
                if hf: e(f"s_add_u32 s58, s63, {8*896}")
                e(f"buffer_load_dwordx4 v{vw2}, s[40:43], s{58 if hf else 63} offen lds")
            else:
                e(f"s_add_u32 s58, s13, {(k*16+hf*8)*4096}")
                e(f"buffer_load_dwordx4 v{vy}, s[44:47], s58 offen lds{LD}")
        if kind == 'f':
            e("s_add_u32 s58, s64, 114688")
            for hf in range(2):
                tok[n] = e(f"buffer_load_dwordx4 {vr(GF[sl][hf],4)}, v{l16}, s[44:47], s{58 if hf else 64} offen{LD}")
            e("s_add_u32 s62, s62, 1")
            e("s_add_u32 s63, s63, 14336")
            e("s_add_u32 s64, s64, 1024")
            e("s_cmp_eq_u32 s62, 28")
            e("s_cselect_b32 s62, 0, s62")
            e("s_cselect_b32 s63, s10, s63")
            e("s_cselect_b32 s64, s11, s64")
            return
        for hf in range(2):
            sb = (11 + hf) if kind == 'f' else (14 + hf)
            if k % 4 == 0 and k:
                e(f"s_add_u32 s{sb}, s{sb}, 4096")
            tok[n] = e(f"buffer_load_dwordx4 {vr(GF[sl][hf],4)}, v{l16}, s[44:47], s{sb} offen offset:{(k%4)*1024}{LD}")
    if bar0: e("s_barrier")
    if epi == 'final4':
        PR = [[R.alloc(8) for u in range(2)] for h in range(2)]
        e("s_lshl_b32 s60, s3, 5")
        e("s_add_u32 s60, s60, s8")
        e("s_mul_i32 s60, s60, 57344")
        e("s_lshl_b32 s61, s7, 12")
        e("s_add_u32 s60, s60, s61")
        e(f"s_add_u32 s60, s60, {PB}")
        e("s_add_u32 s61, s60, 28672")
        for u in range(2):
            for h in range(2):
                for qq in range(2):
                    tok['p', h, u] = e(f"buffer_load_dwordx4 {vr(PR[h][u]+4*qq,4)}, v{l16}, s[44:47], s{60+u} offen offset:{h*2048+qq*1024}{LD}")
    for n in range(PD):
        issue(n)
    A.nts = 2; A.ts()
    e(f"v_and_b32 v{tid}, 255, v0")
    e(f"v_lshrrev_b32 v{t0}, 2, v{tid}")
    e(f"v_and_b32 v{t1}, 3, v{tid}")
    e(f"v_mul_u32_u24 v{t2}, 28672, v{t0}")
    e(f"v_lshl_add_u32 v{t2}, v{t1}, 5, v{t2}")
    e("s_mul_i32 s59, s8, 896")
    e("s_add_u32 s59, s59, s9")
    e(f"s_add_u32 s60, s59, {PB}")
    e(f"v_mul_u32_u24 v{tid}, 272, v{t0}")
    e(f"v_lshl_add_u32 v{tid}, v{t1}, 6, v{tid}")
    e(f"v_lshlrev_b32 v{t1}, 5, v{t1}")
    def epi_loads():
        for hf in range(2):
            if epi == 'final':
                tok['x'] = e(f"buffer_load_dwordx4 {vr(XR+4*hf,4)}, v{t2}, s[44:47], s60 offen offset:{hf*16}{LD}")
            else:
                e(f"buffer_load_dwordx4 {vr(XR+4*hf,4)}, v{t2}, s[36:39], s59 offen offset:{hf*16}")
                tok['x'] = e(f"buffer_load_dwordx4 {vr(BR+4*hf,4)}, v{t1}, s[48:51], s9 offen offset:{hf*16}")
    e(f"v_bfe_u32 v{t0}, v{lane}, 2, 2")
    e(f"v_lshrrev_b32 v{ta[1]}, 5, v{lane}")
    e(f"v_lshl_add_u32 v{t0}, v{ta[1]}, 2, v{t0}")
    e(f"v_lshlrev_b32 v{t0}, 7, v{t0}")
    e(f"v_bfe_u32 v{ta[1]}, v{lane}, 3, 1")
    e(f"v_lshl_add_u32 v{t0}, v{ta[1]}, 6, v{t0}")
    e(f"v_bfe_u32 v{ta[1]}, v{lane}, 4, 1")
    e(f"v_lshl_add_u32 v{t0}, v{ta[1]}, 5, v{t0}")
    e(f"v_and_b32 v{ta[1]}, 3, v{lane}")
    e(f"v_lshl_add_u32 v{t0}, v{ta[1]}, 3, v{t0}")
    e(f"v_add_u32 v{ta[0]}, s57, v{t0}")
    e(f"v_xor_b32 v{ta[1]}, 64, v{ta[0]}")
    rt = {}
    def rd(n):
        if n >= N: return
        A.wait_vm(tok[n])
        sl = n % PD
        for h in range(2):
            f = LF[n & 1][h]
            e(f"ds_read_b64_tr_b16 {vr(f,2)}, v{ta[h]} offset:{sl*2048}")
            rt[n] = e(f"ds_read_b64_tr_b16 {vr(f+2,2)}, v{ta[h]} offset:{sl*2048+1024}")
    if epi == 'final4':
        for u in range(2):
            for h in range(2):
                A.wait_vm(tok['p', h, u])
                for j in range(8):
                    e(f"v_lshlrev_b32 v{acc[h][u]+2*j}, 16, v{PR[h][u]+j}")
                    e(f"v_and_b32 v{acc[h][u]+2*j+1}, 0xffff0000, v{PR[h][u]+j}")
    rd(0)
    for n in range(N):
        kind, k = steps[n]
        A.wait_ld(rt[n])
        if n % 7 == 0: A.ts()
        rd(n + 1)
        L = LF[n & 1]; G = GF[n % PD]
        for h in range(2):
            for u in range(2):
                a, b = (L[h], G[u]) if kind == 'f' else (G[h], L[u])
                c = '0' if n == 0 and epi != 'final4' else vr(acc[h][u], 16)
                e(f"v_mfma_f32_32x32x16_bf16 {vr(acc[h][u],16)}, {vr(a,4)}, {vr(b,4)}, {c}")
        issue(n + PD)
        if n == max(N - PD, 0): epi_loads()
        if bar_at is not None and n == bar_at: e("s_barrier")
    e(f"v_and_b32 v{t0}, 31, v{lane}")
    e(f"v_mul_u32_u24 v{t0}, 272, v{t0}")
    e(f"v_lshrrev_b32 v{t1}, 5, v{lane}")
    e(f"v_lshl_add_u32 v{t0}, v{t1}, 4, v{t0}")
    e(f"s_mul_i32 s61, s3, {64*272}")
    e(f"v_add_u32 v{t0}, s61, v{t0}")
    A.ts()
    e("s_barrier")
    A.ts()
    for h in range(2):
        for u in range(2):
            for q in range(4):
                e(f"ds_write_b128 v{t0}, {vr(acc[h][u]+4*q,4)} offset:{u*32*272 + h*128 + q*32}")
    A.wait_all_ld()
    e("s_barrier")
    A.ts()
    flat = [acc[0][0], acc[0][1], acc[1][0], acc[1][1]]
    tkk = []
    for q in range(4):
        for w in range(4):
            tkk.append(e(f"ds_read_b128 {vr(flat[w]+4*q,4)}, v{tid} offset:{w*64*272 + q*16}"))
    A.wait_vm(tok['x'])
    O = LF[0][0]
    assert LF[0][1] == O + 4
    for q in range(4):
        A.wait_ld(tkk[4*q+3])
        for p in range(2):
            a = [f + 4*q + 2*p for f in flat]
            e(f"v_pk_add_f32 {vr(a[0],2)}, {vr(a[0],2)}, {vr(a[1],2)}")
            e(f"v_pk_add_f32 {vr(a[2],2)}, {vr(a[2],2)}, {vr(a[3],2)}")
            xr = XR + 2*q + p
            e(f"v_lshlrev_b32 v{a[1]}, 16, v{xr}")
            e(f"v_and_b32 v{a[1]+1}, 0xffff0000, v{xr}")
            e(f"v_pk_add_f32 {vr(a[0],2)}, {vr(a[0],2)}, {vr(a[2],2)}")
            if epi != 'final':
                br = BR + 2*q + p
                e(f"v_lshlrev_b32 v{a[3]}, 16, v{br}")
                e(f"v_and_b32 v{a[3]+1}, 0xffff0000, v{br}")
                e(f"v_pk_add_f32 {vr(a[0],2)}, {vr(a[0],2)}, {vr(a[3],2)}")
            e(f"v_pk_add_f32 {vr(a[0],2)}, {vr(a[0],2)}, {vr(a[1],2)}")
            e(f"v_cvt_pk_bf16_f32 v{O+2*q+p}, v{a[0]}, v{a[0]+1}")
    for hf in range(2):
        if epi == 'part':
            e(f"buffer_store_dwordx4 {vr(O+4*hf,4)}, v{t2}, s[44:47], s60 offen offset:{hf*16}{ST}")
        else:
            e(f"buffer_store_dwordx4 {vr(O+4*hf,4)}, v{t2}, s[52:55], s59 offen offset:{hf*16}")
    A.ts_flush(kidx)
    e("s_endpgm")
    return R.n

def gemm4(A, lane, PC=3, PF=6, LD="", ST="", kidx=1, ROT=(1, 2), bar_c=0):
    e = A.e
    R = Regs(lane + 1)
    t0, t1, t2, l16, vw2 = [R.alloc() for _ in range(5)]
    ta = [R.alloc() for _ in range(4)]
    acc = [R.alloc(16) for b in range(4)]
    LF = [R.alloc(4) for _ in range(8)]
    GF = [[R.alloc(4) for k in range(4)] for c in range(7)]
    e("s_bfe_u32 s4, s2, 0x20001")
    e("s_and_b32 s5, s2, 1")
    e("s_bfe_u32 s6, s2, 0x30003")
    e("s_lshr_b32 s7, s2, 6")
    e("s_lshl_b32 s8, s5, 3")
    e("s_add_u32 s8, s8, s6")
    e("s_lshl_b32 s8, s8, 2")
    e("s_add_u32 s8, s8, s3")
    e(f"v_lshrrev_b32 v{t0}, 3, v{lane}")
    e(f"v_and_b32 v{t1}, 7, v{lane}")
    e(f"v_lshlrev_b32 v{t2}, 1, v{t0}")
    e(f"v_and_b32 v{t2}, 4, v{t2}")
    e(f"v_xor_b32 v{t2}, v{t2}, v{t1}")
    e(f"v_lshlrev_b32 v{t2}, 4, v{t2}")
    e(f"v_mul_u32_u24 v{vw2}, 896, v{t0}")
    e(f"v_add_u32 v{vw2}, v{vw2}, v{t2}")
    e(f"v_lshlrev_b32 v{l16}, 4, v{lane}")
    e("s_lshl_b32 s9, s7, 2")
    e("s_min_u32 s9, s9, 10")
    e(f"s_mul_i32 s10, s4, {448*896}")
    e(f"s_mul_i32 s11, s3, {16*896}")
    e("s_add_u32 s10, s10, s11")
    e("s_lshl_b32 s11, s9, 6")
    e("s_add_u32 s10, s10, s11")
    e("s_mul_i32 s11, s8, 114688")
    e("s_mul_i32 s12, s4, 28672")
    e("s_add_u32 s11, s11, s12")
    e("s_lshl_b32 s57, s3, 12")
    e(f"s_mul_i32 s62, s6, {ROT[0]}")
    e(f"s_mul_i32 s63, s7, {ROT[1]}")
    e("s_add_u32 s62, s62, s63")
    for _ in range((7 * ROT[0] + 3 * ROT[1]) // 7):
        e("s_cmp_ge_u32 s62, 7")
        e("s_cselect_b32 s63, 7, 0")
        e("s_sub_u32 s62, s62, s63")
    e(f"s_mul_i32 s63, s62, {64*896}")
    e("s_add_u32 s63, s63, s10")
    e("s_lshl_b32 s64, s62, 12")
    e("s_add_u32 s64, s64, s11")
    e("s_waitcnt lgkmcnt(0)")
    mk_srd(A, 44, 34, WS_BYTES)
    mk_srd(A, 40, 28, 1605632)
    dt, ht = {}, {}
    def issue(c):
        if c >= 7: return []
        F = []
        def dma(ch, rh):
            e(f"s_add_u32 m0, s57, {c*16384 + ch*2048 + rh*1024}")
            if ch or rh: e(f"s_add_u32 s58, s63, {rh*7168 + ch*128}")
            dt[c] = e(f"buffer_load_dwordx4 v{vw2}, s[40:43], s{58 if ch or rh else 63} offen lds")
        def hl(k):
            ht[c, k] = e(f"buffer_load_dwordx4 {vr(GF[c][k],4)}, v{l16}, s[44:47], s64 offen offset:{k*1024}{LD}")
            if k == 3:
                e("s_add_u32 s62, s62, 1")
                e(f"s_add_u32 s63, s63, {64*896}")
                e("s_add_u32 s64, s64, 4096")
                e("s_cmp_eq_u32 s62, 7")
                e("s_cselect_b32 s62, 0, s62")
                e("s_cselect_b32 s63, s10, s63")
                e("s_cselect_b32 s64, s11, s64")
        return [(lambda ch=ch, rh=rh: dma(ch, rh)) for rh in range(2) for ch in range(2)] + [(lambda k=k: hl(k)) for k in range(4)]
    for c in range(PC):
        for f in issue(c): f()
    A.nts = 2; A.ts()
    e("s_lshl_b32 s60, s4, 6")
    e("s_add_u32 s60, s60, s8")
    e("s_mul_i32 s60, s60, 14")
    e("s_add_u32 s60, s60, s9")
    e("s_lshl_b32 s60, s60, 11")
    e(f"s_add_u32 s60, s60, {PB}")
    e("s_add_u32 s61, s60, 4096")
    e(f"v_bfe_u32 v{t0}, v{lane}, 2, 2")
    e(f"v_lshrrev_b32 v{t1}, 5, v{lane}")
    e(f"v_lshl_add_u32 v{t0}, v{t1}, 2, v{t0}")
    e(f"v_lshlrev_b32 v{t0}, 7, v{t0}")
    e(f"v_bfe_u32 v{t1}, v{lane}, 3, 1")
    e(f"v_lshl_add_u32 v{t0}, v{t1}, 6, v{t0}")
    e(f"v_bfe_u32 v{t1}, v{lane}, 4, 1")
    e(f"v_lshl_add_u32 v{t0}, v{t1}, 5, v{t0}")
    e(f"v_and_b32 v{t1}, 3, v{lane}")
    e(f"v_lshl_add_u32 v{ta[0]}, v{t1}, 3, v{t0}")
    e(f"v_xor_b32 v{ta[1]}, 64, v{ta[0]}")
    e(f"v_add_u32 v{ta[2]}, 65536, v{ta[0]}")
    e(f"v_add_u32 v{ta[3]}, 65536, v{ta[1]}")
    if bar_c: e("s_barrier")
    rt = {}
    pend = []
    def rd(n):
        if n >= 112: return
        c, ks, b = n // 16, (n // 4) % 4, n % 4
        if n % 16 == 0:
            A.wait_vm(dt[c]); e("s_barrier"); A.ts()
            pend.extend(issue(c + PC))
        o = (c % 4) * 16384 + ks * 4096 + (b >> 1) * 2048
        f = LF[n % 8]; a = ta[(b & 1) + 2 * (c // 4)]
        e(f"ds_read_b64_tr_b16 {vr(f,2)}, v{a} offset:{o}")
        rt[n] = e(f"ds_read_b64_tr_b16 {vr(f+2,2)}, v{a} offset:{o+1024}")
    for n in range(PF): rd(n)
    for n in range(112):
        c, ks, b = n // 16, (n // 4) % 4, n % 4
        rd(n + PF)
        if n % 2 == 0: A.wait_ld(rt[n + 1])
        if b == 0: A.wait_vm(ht[c, ks])
        e(f"v_mfma_f32_32x32x16_bf16 {vr(acc[b],16)}, {vr(LF[n%8],4)}, {vr(GF[c][ks],4)}, {'0' if n < 4 else vr(acc[b],16)}")
        if pend: pend.pop(0)()
    A.ts()
    e("s_cmp_eq_u32 s7, 3")
    e("s_cbranch_scc1 g4_skip")
    for b in range(4):
        if b == 2: A.label("g4_skip"); e("s_nop 7"); e("s_nop 7")
        for qq in range(2):
            O = GF[b >> 1][2 * (b & 1) + qq]
            for j in range(4):
                e(f"v_cvt_pk_bf16_f32 v{O+j}, v{acc[b]+8*qq+2*j}, v{acc[b]+8*qq+2*j+1}")
            e(f"buffer_store_dwordx4 {vr(O,4)}, v{l16}, s[44:47], s{60 + (b >> 1)} offen offset:{(b&1)*2048 + qq*1024}{ST}")
    A.ts_flush(kidx)
    e("s_endpgm")
    return R.n

def prolog(A, name, nwg, vd):
    header(A, name)
    A.e(f"s_cmp_ge_u32 s2, {nwg}")
    A.e(f"s_cbranch_scc1 {name}_end")
    load_args(A)
    code_pf(A, name, vd)
    A.nts = 0; A.ts(True); A.ts()
    A.e("v_lshrrev_b32 v2, 6, v0")
    A.e("v_and_b32 v1, 63, v0")
    A.e("v_readfirstlane_b32 s3, v2")
    A.e("s_nop 3")

def epilog(A, name):
    A.label(f"{name}_end")
    A.e("s_endpgm")
```

```python
import sys
from asmlib import *
from k1 import *
from k2 import *

def build(mode="v1", PD=12, bar_at=17, LD="", ST="", dbg=0, ra=7, rd=4, ST1=None, NX0=4, NQ1=1, PFW2=1, prio=1, PRIO=0, HPK=0, cpf=1, GS=8, XD=0, PC=3, PF=6, r1=1, r2=2, fb=1011111, STF=None, b0=1):
    fb = [int(c) for c in str(fb)[1:]]
    A = Asm()
    A.dbg = bool(dbg); A.cpf = cpf
    L = []
    K = []
    A.raw('.amdgcn_target "amdgcn-amd-amdhsa--gfx950"\n.text')
    nv = gen_k1(A, "k1_kernel", ST if ST1 is None else ST1, NX0, NQ1, PFW2, PRIO, HPK, GS, XD)
    assert nv <= 251; nv = 252
    L.append(("k1_kernel", 256, 512, K1_LDS)); K.append(kd("k1_kernel", nv, 102))
    if mode == "v3":
        gl = 114688
        prolog(A, "k2_kernel", 256, 231)
        A.e("s_cmp_ge_u32 s3, 4")
        A.e("s_cbranch_scc1 k2_fft")
        nv = gemm4(A, 1, PC, PF, LD, ST, 1, (r1, r2), b0)
        A.label("k2_fft"); A.reset_counts()
        A.e("s_cmp_ge_u32 s2, 225")
        A.e("s_cbranch_scc1 k2_kernel_end")
        A.e("s_sub_u32 s3, s3, 4")
        if prio: A.e("s_setprio 3")
        nv = max(nv, fft_block(A, 1, gl, lambda: A.e("s_barrier"), LD, ST if STF is None else STF, 1, 4, False, 6 + b0 - sum(fb), fb))
        epilog(A, "k2_kernel"); assert nv <= 231; nv = 232
        L.append(("k2_kernel", 256, 512, gl + 16384)); K.append(kd("k2_kernel", nv, 102))
        prolog(A, "k3_kernel", 224, 199)
        nv = gemm_block(A, 1, 0, 7, 'final4', 7, None, LD, ST)
        epilog(A, "k3_kernel"); assert nv <= 199; nv = 200
        A.raw("code_end:")
        L.append(("k3_kernel", 224, 256, 69632)); K.append(kd("k3_kernel", nv, 102))
    else:
        gl = max(PD*8192, 69632)
        prolog(A, "k2_kernel", 225, 207)
        A.e("s_cmp_ge_u32 s3, 4")
        A.e("s_cbranch_scc1 k2_fft")
        A.e("s_cmp_ge_u32 s2, 224")
        A.e("s_cbranch_scc1 k2_kernel_end")
        nv = gemm_block(A, 1, 28, 0, 'part', PD, bar_at, LD, ST, 1, (ra, rd), not prio)
        A.label("k2_fft"); A.reset_counts()
        A.e("s_sub_u32 s3, s3, 4")
        if prio: A.e("s_setprio 3")
        nv = max(nv, fft_block(A, 1, gl, lambda: A.e("s_barrier"), LD, ST, 1, 4, not prio))
        epilog(A, "k2_kernel"); assert nv <= 207; nv = 208
        L.append(("k2_kernel", 225, 512, gl + 8192)); K.append(kd("k2_kernel", nv, 102))
        prolog(A, "k3_kernel", 224, 167)
        nv = gemm_block(A, 1, 0, 7, 'final', 7, None, LD, ST)
        epilog(A, "k3_kernel"); assert nv <= 167; nv = 168
        A.raw("code_end:")
        L.append(("k3_kernel", 224, 256, 69632)); K.append(kd("k3_kernel", nv, 102))
    hdr = "".join(f"; @launch kernel={n} grid=({g},1,1) block=({b},1,1) lds={l}\n" for n, g, b, l in L)
    return hdr + A.text() + '.section .rodata,"a"\n' + "".join(K)

if __name__ == "__main__":
    out = sys.argv[1]
    kw = {}
    for a in sys.argv[2:]:
        k, v = a.split("=")
        kw[k] = int(v) if v.lstrip("-").isdigit() else v.replace("_", " ")
    open(out, "w").write(build(**kw))
```

```python
from asmlib import *
import struct
def f32(x): return "0x%08x" % struct.unpack("<I", struct.pack("<f", x))[0]

HF = 0
X1F = HF + 64 * 112 * 1024
Y1T = X1F + 448 * 4096
WT = Y1T + 448 * 4096
IDF = WT + 225 * 8192
F1T = IDF + 14 * 28 * 1024
F2T = F1T + 16384
WS_END = F2T + 4096
WS_BYTES = 268435456
OOB = 0x10000000

def mk_srd(A, d, src, nbytes):
    A.e(f"s_mov_b32 s{d}, s{src}")
    A.e(f"s_and_b32 s{d+1}, s{src+1}, 0xffff")
    A.e(f"s_mov_b32 s{d+2}, {nbytes}")
    A.e(f"s_mov_b32 s{d+3}, 0x00020000")

def header(A, name):
    A.raw(f".globl {name}\n.p2align 8\n.type {name},@function\n{name}:")
    A.reset_counts()

def load_args(A):
    A.e("s_load_dwordx16 s[16:31], s[0:1], 0")
    A.e("s_load_dwordx2 s[32:33], s[0:1], 64")
    A.e("s_load_dwordx2 s[34:35], s[0:1], 80")

def code_pf(A, name, vd):
    if not A.cpf: return
    A.e("s_getpc_b64 s[36:37]")
    A.raw(f"{name}_pc:")
    A.e(f"v_lshlrev_b32 v{vd}, 7, v0")
    A.e(f"v_min_u32 v{vd}, code_end-{name}_pc-4, v{vd}")
    A.e(f"global_load_dword v{vd}, v{vd}, s[36:37]")

GC0 = -2.0 * 0.7978845608028654 * 1.4426950408889634
GC1 = GC0 * 0.044715

L_W1 = 0
L_DF = 114688
L_XT = L_DF + 28 * 1024
L_CS = L_XT + 16384
L_RS = L_CS + 2048
K1_LDS = L_RS + 1024

def gen_k1(A, name, ST="", NX0=4, NQ1=1, PFW2=1, PRIO=0, HPK=0, GS=8, XD=0, MSL=0, HS=0, NH1=8, HP2=0, BP=14):
    header(A, name)
    e = A.e
    e("s_cmp_ge_u32 s2, 256")
    e(f"s_cbranch_scc1 {name}_end")
    load_args(A)
    code_pf(A, name, 251)
    A.nts = 0; A.ts(True); A.ts()
    R = Regs(1)
    lane = R.alloc()
    t0, t1, t2, t3 = [R.alloc() for _ in range(4)]
    e(f"v_lshrrev_b32 v{t0}, 6, v0")
    e(f"v_and_b32 v{lane}, 63, v0")
    e(f"v_readfirstlane_b32 s3, v{t0}")
    e("s_cmp_ge_u32 s2, 224")
    e(f"s_cbranch_scc1 {name}_misc")
    MF = "v_mfma_f32_32x32x16_bf16"
    MS = "v_mfma_f32_16x16x32_bf16"
    def mix(x, y):
        o = []
        nx, ny = len(x), len(y)
        i = j_ = 0
        while i < nx or j_ < ny:
            if j_ >= ny or (i < nx and i * ny <= j_ * nx): o.append(x[i]); i += 1
            else: o.append(y[j_]); j_ += 1
        return o
    l16, hh, t31 = [R.alloc() for _ in range(3)]
    SEL = R.alloc(4); HP = R.alloc(8); g8 = R.alloc(8); PC = R.alloc(2); PS = R.alloc(2)
    g = [g8 + i for i in range(8)]
    ta = [R.alloc() for _ in range(4)]
    e("s_and_b32 s69, s3, 3")
    e("s_and_b32 s4, s2, 7")
    e("s_lshr_b32 s5, s2, 3")
    e("s_and_b32 s6, s5, 1")
    e("s_bfe_u32 s12, s5, 0x10001")
    e("s_lshr_b32 s13, s5, 2")
    e("s_and_b32 s7, s4, 1")
    e("s_mul_i32 s7, s7, 7")
    e("s_add_u32 s7, s7, s13")
    e("s_lshr_b32 s8, s4, 1")
    e("s_lshl_b32 s8, s8, 1")
    e("s_add_u32 s8, s8, s12")
    e("s_lshl_b32 s8, s8, 2")
    e("s_add_u32 s8, s8, s69")
    def r8pc():
        e(f"v_lshrrev_b32 v{t0}, 3, v{lane}")
        e(f"v_and_b32 v{t1}, 7, v{lane}")
    def common2():
        e(f"v_lshlrev_b32 v{l16}, 4, v{lane}")
        e(f"v_and_b32 v{t31}, 31, v{lane}")
        e(f"v_lshrrev_b32 v{hh}, 5, v{lane}")
        e(f"s_mov_b32 s15, {f32(1.0/448)}")
        e("s_lshl_b32 s9, s69, 12")
        e(f"s_add_u32 s9, s9, {L_XT}")
        e("s_lshl_b32 s63, s8, 1")
        e("s_add_u32 s63, s63, s6")
        e("s_mul_i32 s63, s63, 114688")
        e("s_lshl_b32 s64, s7, 13")
        e("s_add_u32 s63, s63, s64")
        e("s_lshl_b32 s64, s6, 12")
        e("s_add_u32 s63, s63, s64")
        e("s_xor_b32 s64, s63, 4096")
        e("s_lshl_b32 s62, s69, 8")
        e(f"s_add_u32 s62, s62, {L_RS}")
    def common3():
        e(f"v_bfe_u32 v{t0}, v{lane}, 2, 2")
        e(f"v_lshl_add_u32 v{t1}, v{hh}, 3, v{t0}")
        e(f"v_lshlrev_b32 v{t1}, 7, v{t1}")
        e(f"v_bfe_u32 v{t2}, v{lane}, 3, 1")
        e(f"v_lshl_add_u32 v{t1}, v{t2}, 6, v{t1}")
        e(f"v_bfe_u32 v{t2}, v{lane}, 4, 1")
        e(f"v_lshl_add_u32 v{t1}, v{t2}, 5, v{t1}")
        e(f"v_and_b32 v{t2}, 3, v{lane}")
        e(f"v_lshl_add_u32 v{ta[0]}, v{t2}, 3, v{t1}")
        e(f"v_lshrrev_b32 v{t0}, 2, v{lane}")
        e(f"v_xor_b32 v{t0}, v{t0}, v{lane}")
        e(f"v_and_b32 v{t0}, 4, v{t0}")
        e(f"v_cmp_eq_u32 vcc, 0, v{t0}")
        e(f"v_mov_b32 v{t0}, 0x3f803f80")
        for i in range(4):
            e(f"v_cndmask_b32 v{SEL+i}, 0, v{t0}, vcc")
    def gelu(b, a, pk, qs):
        S = []
        for q in qs:
            if pk:
                ix = [a + 4 * q, a + 4 * q + 2]
                tm = [g[(q & 1) * 4], g[(q & 1) * 4 + 2]]
                S += [f"v_pk_mul_f32 {vr(t,2)}, {vr(x,2)}, {vr(x,2)}" for x, t in zip(ix, tm)]
                S += [f"v_pk_fma_f32 {vr(t,2)}, {vr(t,2)}, {vr(PC,2)}, {vr(PC,2)} op_sel:[0,0,1] op_sel_hi:[1,0,1]" for t in tm]
                S += [f"v_pk_mul_f32 {vr(t,2)}, {vr(t,2)}, {vr(x,2)}" for x, t in zip(ix, tm)]
                for t in tm: S += [f"v_exp_f32 v{t}, v{t}", f"v_exp_f32 v{t+1}, v{t+1}"]
                S += [f"v_pk_fma_f32 {vr(t,2)}, {vr(t,2)}, {vr(PS,2)}, {vr(PS,2)} op_sel_hi:[1,0,0]" for t in tm]
                for t in tm: S += [f"v_rcp_f32 v{t}, v{t}", f"v_rcp_f32 v{t+1}, v{t+1}"]
                S += [f"v_pk_mul_f32 {vr(t,2)}, {vr(t,2)}, {vr(x,2)}" for x, t in zip(ix, tm)]
            else:
                ix = [a + 4 * q + i for i in range(4)]
                tt = g[(q & 1) * 4:(q & 1) * 4 + 4]
                tm = [tt[0], tt[2]]
                Z = list(zip(ix, tt))
                S += [f"v_mul_f32 v{t}, v{x}, v{x}" for x, t in Z]
                S += [f"v_fma_f32 v{t}, v{t}, v{PC}, v{PC+1}" for x, t in Z]
                S += [f"v_mul_f32 v{t}, v{t}, v{x}" for x, t in Z]
                S += [f"v_exp_f32 v{t}, v{t}" for x, t in Z]
                S += [f"v_fma_f32 v{t}, v{t}, v{PS}, v{PS}" for x, t in Z]
                S += [f"v_rcp_f32 v{t}, v{t}" for x, t in Z]
                S += [f"v_mul_f32 v{t}, v{t}, v{x}" for x, t in Z]
            S += [f"v_cvt_pk_bf16_f32 v{HP+2*q+i}, v{tm[i]}, v{tm[i]+1}" for i in range(2)]
            if q & 1:
                o = (2 * b + (q >> 1)) * 1024
                S.append(f"buffer_store_dwordx4 {vr(HP+4*(q>>1),4)}, v{l16}, s[44:47], s{63 if o < 4096 else 64} offen offset:{o % 4096}{ST}")
        return S
    def gelu8(b, a, h_):
        Z = [(a + 8 * h_ + i, g[i]) for i in range(8)]
        S = [f"v_mul_f32 v{t}, v{x}, v{x}" for x, t in Z]
        S += [f"v_fma_f32 v{t}, v{t}, v{PC}, v{PC+1}" for x, t in Z]
        for x, t in Z: S += [f"v_mul_f32 v{t}, v{t}, v{x}"]
        S2 = []
        for x, t in Z: S2 += [f"v_exp_f32 v{t}, v{t}"]
        S3 = [f"v_fma_f32 v{t}, v{t}, v{PS}, v{PS}" for x, t in Z]
        S4 = [f"v_rcp_f32 v{t}, v{t}" for x, t in Z]
        S5 = [f"v_mul_f32 v{t}, v{t}, v{x}" for x, t in Z]
        S = S[:18] + mix(S2[:6], S[18:]) + S2[6:] if False else S + S2
        S += S3[:2] + mix(S4[:6], S3[2:]) + mix(S4[6:], S5[:2]) + S5[2:]
        S += [f"v_cvt_pk_bf16_f32 v{HP+4*h_+i}, v{g[2*i]}, v{g[2*i+1]}" for i in range(4)]
        o = (2 * b + h_) * 1024
        S.append(f"buffer_store_dwordx4 {vr(HP+4*h_,4)}, v{l16}, s[44:47], s{63 if o < 4096 else 64} offen offset:{o % 4096}{ST}")
        return S
    pcs = [f"v_mul_f32 v{PC+1}, {f32(GC0)}, v{PS+1}", f"v_mul_f32 v{PC}, v{PS+1}, v{PS+1}",
           f"v_mul_f32 v{PC}, v{PC}, v{PC+1}", f"v_mul_f32 v{PC}, {f32(0.044715)}, v{PC}"]
    XOFF = [0, L_DF - L_XT]
    Rsave = R.n
    CFg = [(Rsave + 3) // 4 * 4 + 4 * i for i in range(4)]
    jk = [CFg[3] + 4 + i for i in range(8)]
    common2()
    e("s_lshl_b32 s14, s7, 5")
    e(f"v_add_u32 v{t0}, s14, v{t31}")
    e(f"v_lshrrev_b32 v{t1}, 1, v{t0}")
    e(f"v_and_b32 v{t2}, 1, v{t0}")
    e(f"v_cmp_eq_u32 vcc, 1, v{t0}")
    e(f"v_mov_b32 v{t3}, 224")
    e(f"v_cndmask_b32 v{t1}, v{t1}, v{t3}, vcc")
    e(f"v_cndmask_b32 v{t2}, v{t2}, 0, vcc")
    e(f"v_cvt_f32_u32 v{t1}, v{t1}")
    e(f"v_cvt_f32_u32 v{t2}, v{t2}")
    e(f"v_mul_f32 v{t2}, 0x3e800000, v{t2}")
    for j_ in range(1, 8):
        e(f"v_mul_f32 v{jk[j_]}, {f32(j_/448.0)}, v{t1}")
    e("s_mul_i32 s10, s3, 3")
    e("s_sub_u32 s11, s3, 4")
    e("s_max_i32 s11, s11, 0")
    e("s_add_u32 s10, s10, s11")
    e("s_lshl_b32 s66, s10, 10")
    e("s_lshl_b32 s10, s10, 4")
    e("s_lshl_b32 s11, s13, 6")
    e("s_add_u32 s10, s10, s11")
    e(f"v_lshlrev_b32 v{t0}, 3, v{hh}")
    e(f"v_add_u32 v{t0}, s10, v{t0}")
    e(f"v_cvt_f32_u32 v{t0}, v{t0}")
    e(f"v_mul_f32 v{t0}, v{t0}, v{t1}")
    e(f"v_mul_f32 v{t1}, {f32(16.0)}, v{t1}")
    e(f"s_mov_b32 s65, {f32(-448.0)}")
    e(f"s_add_u32 s66, s66, {L_DF}")
    e(f"v_add_u32 v{jk[0]}, s66, v{l16}")
    def dgen(i):
        fr = CFg[i % 4]
        e(f"v_mul_f32 v{t3}, s15, v{t0}")
        e(f"v_floor_f32 v{t3}, v{t3}")
        e(f"v_fma_f32 v{t3}, v{t3}, s65, v{t0}")
        e(f"v_fma_f32 v{g[0]}, v{t3}, s15, v{t2}")
        for j_ in range(1, 8):
            e(f"v_add_f32 v{g[j_]}, v{g[0]}, v{jk[j_]}")
        for j_ in range(8):
            e(f"v_cos_f32 v{g[j_]}, v{g[j_]}")
        e(f"v_add_f32 v{t0}, v{t0}, v{t1}")
        for j_ in range(4):
            e(f"v_cvt_pk_bf16_f32 v{fr+j_}, v{g[2*j_]}, v{g[2*j_+1]}")
        e(f"ds_write_b128 v{jk[0]}, {vr(fr,4)} offset:{i*1024}")
    for i in range(3): dgen(i)
    e("s_cmp_ge_u32 s3, 4")
    e(f"s_cbranch_scc1 {name}_help")
    XF = R.alloc(112)
    acc = [R.alloc(16), R.alloc(16)]
    GR = R.alloc(16); SM = R.alloc(4)
    NB = 8
    AF = [R.alloc(4) for _ in range(NB)]
    AX = R.alloc(4); BX = R.alloc(4)
    xw0, xw1, vdf = HP, HP + 1, HP + 2
    xr = [acc[0] + i for i in range(4)]
    vxo, vxc = HP + 3, HP + 4
    vst, vrs, vgr, vax, vxa, vxb = [R.alloc() for _ in range(6)]
    if PRIO: e(f"s_setprio {PRIO}")
    r8pc()
    e("s_lshl_b32 s10, s6, 10")
    e("s_add_u32 s10, s10, s8")
    e("s_mul_i32 s52, s10, 896")
    for i in range(1, 4):
        e(f"s_add_u32 s{52+i}, s52, {i*(28672 if XD == 2 else 229376)}")
    e("s_lshl_b32 s59, s13, 7")
    if XD == 1:
        e(f"v_mul_u32_u24 v{vxo}, 28672, v{t31}")
        e(f"v_lshl_add_u32 v{vxo}, v{hh}, 4, v{vxo}")
    elif XD == 2:
        e(f"v_bfe_u32 v{t2}, v{lane}, 2, 3")
        e(f"v_mul_u32_u24 v{vxo}, {4*28672}, v{t2}")
        e(f"v_and_b32 v{t2}, 3, v{lane}")
        e(f"v_lshl_add_u32 v{vxo}, v{t2}, 5, v{vxo}")
        e(f"v_lshl_add_u32 v{vxo}, v{hh}, 4, v{vxo}")
        e("s_mov_b32 s48, 0x55555555"); e("s_mov_b32 s49, 0x55555555")
        e("s_mov_b32 s50, 0x33333333"); e("s_mov_b32 s51, 0x33333333")
    else:
        e(f"v_mul_u32_u24 v{vxo}, 28672, v{t0}")
        e(f"v_lshl_add_u32 v{vxo}, v{t1}, 4, v{vxo}")
    A.ts()
    e("s_waitcnt lgkmcnt(0)")
    A.ld_done = A.nld
    mk_srd(A, 36, 16, 1835008)
    xtok = {}
    def xload(c):
        e(f"v_add_u32 v{vxc}, s59, v{vxo}")
        for i in range(4):
            if XD == 1: xtok[c, i] = e(f"buffer_load_dwordx4 {vr(XF+16*c+4*i,4)}, v{vxc}, s[36:39], s52 offen offset:{32*i}")
            else: xtok[c, i] = e(f"buffer_load_dwordx4 {vr(XF+16*c+4*i,4)}, v{vxc}, s[36:39], s{52+i} offen")
        e("s_add_u32 s59, s59, 128")
        e("s_cmp_eq_u32 s59, 896")
        e("s_cselect_b32 s59, 0, s59")
    for c in range(NX0): xload(c)
    A.ts()
    if NX0 == 7: e("s_barrier")
    mk_srd(A, 44, 34, WS_BYTES)
    if not XD:
        e(f"v_lshrrev_b32 v{t2}, 1, v{t0}")
        e(f"v_xor_b32 v{t2}, v{t2}, v{t1}")
        e(f"v_lshlrev_b32 v{t2}, 4, v{t2}")
        e(f"v_lshl_add_u32 v{xw0}, v{t0}, 7, v{t2}")
        e(f"v_add_u32 v{xw0}, s9, v{xw0}")
        e(f"v_xor_b32 v{xw1}, 64, v{xw0}")
        e(f"v_bfe_u32 v{t2}, v{lane}, 1, 3")
        e(f"v_xor_b32 v{t2}, v{t2}, v{hh}")
        e(f"v_lshlrev_b32 v{t2}, 4, v{t2}")
        e(f"v_lshl_add_u32 v{xr[0]}, v{t31}, 7, v{t2}")
        e(f"v_add_u32 v{xr[0]}, s9, v{xr[0]}")
        for q in range(1, 4):
            e(f"v_xor_b32 v{xr[q]}, {q*32}, v{xr[0]}")
    common3()
    e(f"v_xor_b32 v{ta[1]}, 64, v{ta[0]}")
    e(f"v_add_u32 v{ta[2]}, 57344, v{ta[0]}")
    e(f"v_add_u32 v{ta[3]}, 57344, v{ta[1]}")
    e(f"v_lshrrev_b32 v{t0}, 3, v{t31}")
    e(f"v_lshlrev_b32 v{t0}, 10, v{t0}")
    e(f"v_lshl_add_u32 v{t0}, v{t31}, 4, v{t0}")
    e(f"v_bfe_u32 v{t1}, v{t31}, 2, 1")
    e(f"v_lshl_add_u32 v{t0}, v{t1}, 9, v{t0}")
    e(f"v_and_b32 v{t1}, 3, v{t31}")
    e(f"v_lshl_add_u32 v{t0}, v{t1}, 2, v{t0}")
    e(f"v_add_u32 v{vgr}, s9, v{t0}")
    for a_ in (AX, BX):
        e(f"v_mov_b32 v{a_+2}, 0")
        e(f"v_mov_b32 v{a_+3}, 0")
    e("s_lshl_b32 s14, s7, 5")
    e(f"v_add_u32 v{t0}, s14, v{t31}")
    e(f"v_cmp_eq_u32 vcc, 0, v{t0}")
    e(f"v_mov_b32 v{t3}, 0x43e0")
    e(f"v_mov_b32 v{AX+1}, 0")
    e(f"v_cndmask_b32 v{AX}, 0, v{t3}, vcc")
    e(f"v_add_u32 v{vdf}, {L_DF}, v{l16}")
    e(f"v_lshlrev_b32 v{vax}, 3, v{t31}")
    e(f"v_add_u32 v{vax}, {L_CS}, v{vax}")
    e(f"v_add_u32 v{vxa}, s9, v{l16}")
    e(f"v_add_u32 v{vxb}, {XOFF[1]}, v{vxa}")
    e(f"v_lshlrev_b32 v{vst}, 12, v{t31}")
    e(f"v_lshl_add_u32 v{vst}, v{hh}, 9, v{vst}")
    e("s_lshl_b32 s67, s7, 17")
    e("s_lshl_b32 s68, s6, 11")
    e("s_add_u32 s67, s67, s68")
    e("s_lshl_b32 s68, s8, 4")
    e("s_add_u32 s67, s67, s68")
    e(f"s_add_u32 s67, s67, {X1F}")
    e(f"v_lshl_add_u32 v{vrs}, v{hh}, 4, s62")
    D = acc[1]
    xt = {}; ft = {}
    def trw(c, i):
        A.wait_vm(xtok[c, i])
        e(f"ds_write_b128 v{xw1 if i&1 else xw0}, {vr(XF+16*c+4*i,4)} offset:{i*1024}")
    def trr(c, q): xt[4*c+q] = e(f"ds_read_b128 {vr(XF+16*c+4*q,4)}, v{xr[q]}")
    def dfr(c, q): ft[4*c+q] = e(f"ds_read_b128 {vr(AF[(4*c+q)%8],4)}, v{vdf} offset:{(4*c+q)*1024}")
    A.ts()
    if NX0 < 7: e("s_barrier")
    for q in range(4): dfr(0, q)
    def dtr(c):
        X = [XF + 16 * c + 4 * i for i in range(4)]; T = [acc[0] + 4 * i for i in range(4)]
        F = []
        def op(d, s0, s1, qp, pre=None, w=None):
            for j in range(4):
                def f(j=j):
                    if j == 0 and w is not None: A.wait_vm(xtok[c, w])
                    if j == 0 and pre: e(pre)
                    e(f"v_cndmask_b32_dpp v{d+j}, v{s0+j}, v{s1+j}, vcc quad_perm:{qp} row_mask:0xf bank_mask:0xf")
                F.append(f)
        p1, p2 = "[1,0,3,2]", "[2,3,0,1]"
        op(T[0], X[1], X[0], p1, "s_mov_b64 vcc, s[48:49]", 1); op(T[2], X[3], X[2], p1, None, 3)
        op(T[1], X[0], X[1], p1, "s_not_b64 vcc, vcc"); op(T[3], X[2], X[3], p1)
        op(X[0], T[2], T[0], p2, "s_mov_b64 vcc, s[50:51]"); op(X[1], T[3], T[1], p2)
        op(X[2], T[0], T[2], p2, "s_not_b64 vcc, vcc"); op(X[3], T[1], T[3], p2)
        return F
    if not XD:
        for i in range(4): trw(0, i)
        for q in range(4): trr(0, q)
    if XD == 2:
        for f in dtr(0): f()
        A.ts()
        for c in range(7):
            if c + NX0 < 7: xload(c + NX0)
            if c + NX0 == 6: e("s_barrier")
            ops = dtr(c + 1) if c < 6 else []
            def fl(k):
                for _ in range(k):
                    if ops: ops.pop(0)()
            for q in range(4):
                ks = 4 * c + q
                x_ = vr(XF+4*ks, 4)
                e(f"{MF} {vr(GR,16)}, {x_}, {x_}, {'0' if ks == 0 else vr(GR,16)}")
                fl(3)
                e(f"{MS} {vr(SM,4)}, {vr(SEL,4)}, {x_}, {'0' if ks == 0 else vr(SM,4)}")
                fl(1)
                A.wait_ld(ft[ks])
                e(f"{MF} {vr(D,16)}, {x_}, {vr(AF[ks%8],4)}, {'0' if ks == 0 else vr(D,16)}")
                if c < 6: dfr(c + 1, q)
                fl(4)
    if XD != 2: A.ts()
    for c in range(7 if XD != 2 else 0):
        ops = []
        if c < 6:
            ops = [(lambda i=i: trw(c + 1, i)) for i in range(4)] + [(lambda q=q: trr(c + 1, q)) for q in range(4)] + [(lambda q=q: dfr(c + 1, q)) for q in range(4)]
            if XD: ops = [None] * 8 + ops[8:]
        if c + NX0 < 7: xload(c + NX0)
        for q in range(4):
            ks = 4 * c + q
            x_ = vr(XF+4*ks, 4)
            if XD: A.wait_vm(xtok[c, q])
            else: A.wait_ld(xt[ks])
            e(f"{MF} {vr(GR,16)}, {x_}, {x_}, {'0' if ks == 0 else vr(GR,16)}")
            for _ in range(2):
                if ops:
                    o_ = ops.pop(0)
                    if o_: o_()
            e(f"{MS} {vr(SM,4)}, {vr(SEL,4)}, {x_}, {'0' if ks == 0 else vr(SM,4)}")
        for q in range(4):
            ks = 4 * c + q
            A.wait_ld(ft[ks])
            e(f"{MF} {vr(D,16)}, {vr(XF+4*ks,4)}, {vr(AF[ks%8],4)}, {'0' if ks == 0 else vr(D,16)}")
            if ops: ops.pop(0)()
    A.ts()
    e("s_barrier")
    def stats():
        ssum, ssq = g[0], g[1]
        F = [(lambda q=q: e(f"ds_write_b128 v{vxa}, {vr(GR+4*q,4)} offset:{q*1024}")) for q in range(4)]
        tk = {}
        def rd(): tk[0] = e(f"ds_read_b32 v{ssq}, v{vgr}")
        F += [rd, lambda: e(f"v_mul_f32 v{ssum}, s15, v{SM}"),
              lambda: e(f"v_cmp_gt_u32 vcc, 32, v{lane}"), lambda: e(f"v_lshl_add_u32 v{t1}, v{t31}, 2, s62"),
              lambda: e(f"v_cvt_pk_bf16_f32 v{BX}, -v{ssum}, -v{ssum}"), None, None, None, None, None, None,
              lambda: A.wait_ld(tk[0])]
        seq = [f"v_mul_f32 v{ssq}, s15, v{ssq}",
            f"v_fma_f32 v{ssq}, -v{ssum}, v{ssum}, v{ssq}",
            f"v_max_f32 v{ssq}, 0, v{ssq}",
            f"v_cvt_pk_bf16_f32 v{t0}, v{ssq}, v{ssq}",
            f"v_lshlrev_b32 v{t0}, 16, v{t0}",
            f"v_add_f32 v{t0}, {f32(1e-5)}, v{t0}",
            f"v_cvt_pk_bf16_f32 v{t0}, v{t0}, v{t0}",
            f"v_lshlrev_b32 v{t0}, 16, v{t0}",
            f"v_sqrt_f32 v{t0}, v{t0}",
            f"v_cndmask_b32 v{BX}, 0, v{BX}, vcc",
            f"v_cvt_pk_bf16_f32 v{BX+1}, -v{ssum}, v{t0}",
            f"v_and_b32 v{PS}, 0xffff0000, v{BX+1}",
            f"v_rcp_f32 v{PS+1}, v{PS}",
            f"v_cndmask_b32 v{BX+1}, 0, v{BX+1}, vcc",
            f"ds_write_b32 v{t1}, v{PS} offset:128",
            f"ds_write_b32 v{t1}, v{PS+1}",
            f"{MF} {vr(D,16)}, {vr(BX,4)}, {vr(AX,4)}, {vr(D,16)}"]
        return F + [(lambda s=s: e(s)) for s in seq]
    def dft_epi():
        F = []
        tk = {}
        for h_ in range(2):
            def rd(h_=h_):
                e(f"ds_read_b128 {vr(g8,4)}, v{vrs} offset:{h_*64}")
                tk[h_] = e(f"ds_read_b128 {vr(g8+4,4)}, v{vrs} offset:{h_*64+32}")
            F += [rd, None, None, None, None]
            def ml(i, h_=h_):
                def f():
                    A.wait_ld(tk[h_])
                    e(f"v_mul_f32 v{g8+i}, v{g8+i}, v{D+8*h_+i}")
                return f
            F += [ml(i) for i in range(8)]
            F += [(lambda i=i, h_=h_: e(f"v_cvt_pk_bf16_f32 v{HP+4*h_+i}, v{g8+2*i}, v{g8+2*i+1}")) for i in range(4)]
            F.append(lambda h_=h_: e(f"buffer_store_dwordx4 {vr(HP+4*h_,4)}, v{vst}, s[44:47], s67 offen offset:{h_*1024}{ST}"))
        return F
    steps = [(b, ks) for b in range(4) for ks in range(28)]
    rtok = {}
    def issue_read(n):
        if n >= len(steps): return
        b, ks = steps[n]
        f = AF[n % NB]
        e(f"ds_read_b64_tr_b16 {vr(f,2)}, v{ta[b]} offset:{ks*2048}")
        rtok[n] = e(f"ds_read_b64_tr_b16 {vr(f+2,2)}, v{ta[b]} offset:{ks*2048+512}")
    PF = 4
    for n in range(PF):
        issue_read(n)
    n = 0
    axt = {}
    for b in range(4):
        A.ts()
        def axr(b=b): axt[b] = e(f"ds_read_b64 {vr(AX,2)}, v{vax} offset:{b*512}")
        if b == 0:
            fill = stats() + dft_epi() + [(lambda s=s: e(s)) for s in pcs]
            fill.insert(len(fill) - BP, lambda: e("s_barrier"))
            fill += [lambda: e("s_barrier"), axr] + [None] * 5
        else:
            wt = {}
            def aw(q, b=b): wt[0] = e(f"ds_write_b128 v{vxb if (b-1)&1 else vxa}, {vr(acc[(b-1)&1]+4*q,4)} offset:{q*1024}")
            def bar():
                A.wait_ld(wt[0]); e("s_barrier")
            gl = []
            for s_ in gelu8(b - 1, acc[(b-1)&1], 1): gl += [(lambda s_=s_: e(s_))] + ([None] if s_.startswith(TRANS) else [])
            fill = [None] * 5 + [(lambda q=q: aw(q)) for q in range(2)] + gl[:6] + [bar, axr] + gl[6:] + [None] * 4
            if GS == 0: fill = [None] + [(lambda q=q: aw(q)) for q in range(4)] + [None, bar, axr] + [None] * 20
        nf = len(fill)
        fi = 0
        for ks in range(28):
            issue_read(n + PF)
            if n % 2 == 0: A.wait_ld(rtok[n + 1])
            f = AF[n % NB]
            c_ = "0" if ks == 0 else vr(acc[b & 1], 16)
            e(f"{MF} {vr(acc[b&1],16)}, {vr(f,4)}, {vr(XF+4*ks,4)}, {c_}")
            tgt = (nf * (ks + 1) + 27) // 28
            while fi < tgt:
                if fill[fi]: fill[fi]()
                fi += 1
            n += 1
        A.wait_ld(axt[b])
        e(f"{MF} {vr(acc[b&1],16)}, {vr(AX,4)}, {vr(BX,4)}, {vr(acc[b&1],16)}")
    A.ts()
    for q in range(2): wt3 = e(f"ds_write_b128 v{vxb}, {vr(acc[1]+4*q,4)} offset:{q*1024}")
    gl = gelu(3, acc[1], True, (2, 3))
    for s_ in gl[:6]: e(s_)
    A.wait_ld(wt3)
    e("s_barrier")
    for s_ in gl[6:]: e(s_)
    A.ts_flush(0)
    e("s_endpgm")
    nv0 = R.n
    A.label(f"{name}_help")
    A.reset_counts()
    A.nts = 2
    R.n = Rsave
    CF = [R.alloc(4) for _ in range(8)]
    if HPK: e(f"s_setprio {HPK}")
    CA = R.alloc(4); HA = R.alloc(16)
    vwA, vwB, b1r, vxa, vax, vpw, vpr = [R.alloc() for _ in range(7)]
    dgen(3)
    r8pc()
    e(f"v_lshlrev_b32 v{t2}, 1, v{t0}")
    e(f"v_and_b32 v{t2}, 4, v{t2}")
    e(f"v_xor_b32 v{t2}, v{t2}, v{t1}")
    e(f"v_mul_u32_u24 v{vwA}, 3584, v{t0}")
    e(f"v_lshl_add_u32 v{vwA}, v{t2}, 4, v{vwA}")
    e("s_lshl_b32 s14, s6, 7")
    e(f"v_add_u32 v{vwA}, s14, v{vwA}")
    e(f"v_xor_b32 v{vwB}, 128, v{vwA}")
    e("s_mul_i32 s56, s69, 28672")
    e("s_lshl_b32 s10, s7, 8")
    e("s_add_u32 s56, s56, s10")
    e("s_add_u32 s10, s10, s14")
    e("s_lshl_b32 s11, s69, 6")
    e("s_xor_b32 s10, s10, s11")
    e("s_mul_i32 s57, s12, 28672")
    e("s_lshl_b32 s58, s69, 10")
    e("s_add_u32 s57, s57, s58")
    e("s_xor_b32 s58, s57, 28672")
    e("s_mul_i32 s60, s12, 7")
    e("s_lshl_b32 s61, s13, 1")
    e("s_add_u32 s60, s60, s61")
    e("s_cmp_ge_u32 s60, 14")
    e("s_cselect_b32 s61, 14, 0")
    e("s_sub_u32 s60, s60, s61")
    e("s_mul_i32 s60, s60, 114688")
    e("s_add_u32 s60, s60, s56")
    e(f"s_add_u32 s61, s56, {14*114688}")
    common3()
    e(f"v_mul_u32_u24 v{t0}, {28672-1024}, v{hh}")
    e("s_lshl_b32 s12, s69, 10")
    e(f"v_add3_u32 v{ta[0]}, v{ta[0]}, v{t0}, s12")
    e(f"v_xor_b32 v{ta[1]}, 64, v{ta[0]}")
    e(f"v_add_u32 v{ta[2]}, 57344, v{ta[0]}")
    e(f"v_add_u32 v{ta[3]}, 57344, v{ta[1]}")
    e(f"v_add_u32 v{vxa}, s9, v{l16}")
    e("s_lshl_b32 s12, s69, 2")
    e(f"s_add_u32 s12, s12, {L_CS}")
    e(f"v_lshl_add_u32 v{vpw}, v{t31}, 4, s12")
    e("s_lshl_b32 s12, s69, 9")
    e(f"s_add_u32 s12, s12, {L_CS}")
    e(f"v_lshl_add_u32 v{vpr}, v{t31}, 4, s12")
    e(f"v_lshl_add_u32 v{vax}, v{t31}, 3, s12")
    e(f"v_lshl_add_u32 v{t3}, v{t31}, 2, s62")
    e("s_waitcnt lgkmcnt(0)")
    A.ld_done = A.nld
    mk_srd(A, 40, 24, 1605632)
    mk_srd(A, 44, 34, WS_BYTES)
    mk_srd(A, 48, 26, 3584)
    A.ts()
    if NX0 < 7: e("s_barrier")
    e("s_barrier")
    wtok = {}
    def wload(p, i):
        if p == 0:
            if i == 0:
                e("s_mov_b32 s16, s60")
            else:
                e(f"s_add_u32 s{16+i}, s{15+i}, 114688")
                e(f"s_cmp_eq_u32 s{16+i}, s61")
                e(f"s_cselect_b32 s{16+i}, s56, s{16+i}")
        e(f"s_add_u32 m0, s{57 if i < 7 else 58}, {L_W1 + p*57344 + (i%7)*4096}")
        wtok[p] = e(f"buffer_load_dwordx4 v{vwB if p else vwA}, s[40:43], s{16+i} offen lds")
    if HS: e(f"s_sleep {HS}")
    e(f"v_lshlrev_b32 v{t2}, 1, v{t31}")
    e(f"buffer_load_ushort v{b1r}, v{t2}, s[48:51], s10 offen")
    for i in range(14): wload(0, i)
    for i in range(NH1): wload(1, i)
    A.ts()
    tk = {}
    def rdc(n_):
        b_, i = n_ // 7, n_ % 7
        if n_ % 14 == 0:
            A.wait_vm(wtok[n_ // 14]); A.ts()
        c_ = CF[n_ % 8]
        e(f"ds_read_b64_tr_b16 {vr(c_,2)}, v{ta[b_]} offset:{i*4096}")
        tk[n_] = e(f"ds_read_b64_tr_b16 {vr(c_+2,2)}, v{ta[b_]} offset:{i*4096+512}")
    def colsum(hf):
        for i in range(6): rdc(14 * hf + i)
        for i in range(14):
            n_ = 14 * hf + i
            A.wait_ld(tk[n_])
            ca = vr(HA + 4 * (n_ // 7), 4)
            e(f"{MS} {ca}, {vr(SEL,4)}, {vr(CF[n_%8],4)}, {'0' if n_ % 7 == 0 else ca}")
            if i + 6 < 14: rdc(n_ + 6)
        if hf:
            for b_ in range(4): e(f"ds_write_b32 v{vpw}, v{HA+4*b_} offset:{b_*512}")
            A.wait_all_ld()
    def axbuild():
        e(f"ds_read_b128 {vr(CA,4)}, v{vpr}")
        A.wait_all_ld()
        for s_ in [f"v_add_f32 v{CA}, v{CA}, v{CA+1}", f"v_add_f32 v{CA+2}, v{CA+2}, v{CA+3}", f"v_add_f32 v{CA}, v{CA}, v{CA+2}",
                   f"v_cvt_pk_bf16_f32 v{CA+1}, v{CA}, v{CA}",
                   f"v_lshlrev_b32 v{CA+2}, 16, v{CA+1}",
                   f"v_sub_f32 v{CA+3}, v{CA}, v{CA+2}",
                   f"v_cvt_pk_bf16_f32 v{g8}, v{CA}, v{CA+3}",
                   f"v_and_b32 v{CA+2}, 0xffff0000, v{g8}",
                   f"v_sub_f32 v{CA+3}, v{CA+3}, v{CA+2}",
                   f"v_cvt_pk_bf16_f32 v{g8+1}, v{CA+3}, 0",
                   f"v_lshl_or_b32 v{g8+1}, v{b1r}, 16, v{g8+1}",
                   f"ds_write_b64 v{vax}, {vr(g8,2)}"]: e(s_)
        A.wait_all_ld()
    A.wait_vm(wtok[0])
    e("s_barrier")
    for i in range(NH1, 14): wload(1, i)
    if HP2: e(f"s_setprio {HP2}")
    colsum(0)
    colsum(1)
    A.ts()
    e("s_barrier")
    axbuild()
    e("s_barrier")
    if HP2: e(f"s_setprio {HPK}")
    e(f"ds_read_b32 v{PS}, v{t3} offset:128")
    e(f"ds_read_b32 v{PS+1}, v{t3}")
    e(f"v_add_u32 v{t0}, {XOFF[1]}, v{vxa}")
    A.wait_all_ld()
    for s_ in pcs: e(s_)
    for b in range(4):
        e("s_barrier")
        A.ts()
        full = GS == 0 and b < 3
        tks = [e(f"ds_read_b128 {vr(HA+4*q,4)}, v{t0 if b&1 else vxa} offset:{q*1024}") for q in range(4 if full else 2)]
        A.wait_ld(tks[1])
        for s_ in (gelu(b, HA, True, (0, 1)) if b == 3 else gelu8(b, HA, 0)): e(s_)
        if full:
            A.wait_ld(tks[3])
            for s_ in gelu8(b, HA, 1): e(s_)
    A.ts_flush(0)
    e("s_endpgm")
    A.nts = 2
    R.n = nv0
    nv = R.n
    A.label(f"{name}_misc")
    A.reset_counts()
    e("s_nop 4")
    R = Regs(6)
    l16, i15, kk, va, vo, vk = [R.alloc() for _ in range(6)]
    P = R.alloc(4)
    ra = [R.alloc() for _ in range(16)]
    q_ = [R.alloc() for _ in range(12)]
    e("s_cmp_ge_u32 s3, 4")
    e(f"s_cbranch_scc1 {name}_end")
    e("s_sub_u32 s4, s2, 224")
    e("s_and_b32 s5, s4, 3")
    e("s_lshr_b32 s6, s4, 2")
    e(f"v_lshlrev_b32 v{l16}, 4, v{lane}")
    e("s_waitcnt lgkmcnt(0)")
    mk_srd(A, 36, 18, 921600)
    mk_srd(A, 40, 20, 921600)
    mk_srd(A, 44, 34, WS_BYTES)
    e("s_lshl_b32 s7, s6, 2")
    e("s_add_u32 s7, s7, s3")
    e("s_lshl_b32 s7, s7, 2")
    e("s_add_u32 s7, s7, s5")
    e("s_mul_i32 s7, s7, 7200")
    e("s_lshl_b32 s8, s3, 13")
    if MSL: e(f"s_sleep {MSL}")
    for arr in range(2):
        for it in range(8):
            e(f"s_add_u32 m0, s8, {arr*32768 + it*1024}")
            e(f"s_add_u32 s9, s7, {it*1024}")
            e(f"buffer_load_dwordx4 v{l16}, s[{36+4*arr}:{39+4*arr}], s9 offen lds")
    e("s_lshl_b32 s10, s4, 2")
    e("s_add_u32 s10, s10, s3")
    A.ts()
    e(f"v_and_b32 v{i15}, 15, v{lane}")
    e(f"v_lshrrev_b32 v{kk}, 4, v{lane}")
    e(f"v_mul_u32_u24 v{va}, 450, v{i15}")
    e("s_lshl_b32 s11, s3, 2")
    e(f"v_add_u32 v{t0}, s11, v{kk}")
    e(f"v_lshl_add_u32 v{va}, v{t0}, 1, v{va}")
    e(f"v_lshlrev_b32 v{vo}, 13, v{t0}")
    e(f"v_lshl_add_u32 v{vo}, v{i15}, 4, v{vo}")
    e("s_lshl_b32 s12, s5, 11")
    e("s_lshl_b32 s13, s6, 8")
    e("s_add_u32 s12, s12, s13")
    e(f"s_add_u32 s12, s12, {WT}")
    e(f"v_cmp_eq_u32 vcc, 0, v{t0}")
    e(f"v_mov_b32 v{t1}, {OOB}")
    A.ts()
    e("s_waitcnt vmcnt(0)")
    e("s_barrier")
    A.ts()
    A.reset_counts()
    P2 = [P, R.alloc(4)]
    toks = {}
    def rdw(n_):
        o = (n_ & 1) * 8
        for r_ in range(4):
            e(f"ds_read_u16 v{ra[o+r_]}, v{va} offset:{r_*8192 + n_*32}")
            toks[n_] = e(f"ds_read_u16 v{ra[o+4+r_]}, v{va} offset:{32768 + r_*8192 + n_*32}")
    rdw(0)
    for n_ in range(15):
        A.wait_ld(toks[n_])
        if n_ + 1 < 15: rdw(n_ + 1)
        o = (n_ & 1) * 8
        for r_ in range(4):
            e(f"v_lshl_or_b32 v{P2[n_&1]+r_}, v{ra[o+4+r_]}, 16, v{ra[o+r_]}")
        if n_ == 14:
            e(f"v_cndmask_b32 v{vo}, v{t1}, v{vo}, vcc")
        e(f"buffer_store_dwordx4 {vr(P2[n_&1],4)}, v{vo}, s[44:47], s12 offen")
        e(f"s_add_u32 s12, s12, {16*8192}")
    if PFW2:
        mk_srd(A, 36, 28, 1605632)
        e("s_mul_i32 s11, s10, 13312")
        for it in range(13):
            e(f"buffer_load_dwordx4 {vr(P2[it&1],4)}, v{l16}, s[36:39], s11 offen")
            e("s_add_u32 s11, s11, 1024")
        e("s_waitcnt vmcnt(0)")
    A.ts_flush(0)
    A.label(f"{name}_end")
    e("s_endpgm")
    return max(nv, R.n)
```

```python
from asmlib import *
from k1 import *

def fft_block(A, lane, LB, barrier, LD="", ST="", kidx=1, wofs=0, bar0=False, xbar=0, fb=(0,0,0,0)):
    def bars(i):
        for _ in range(fb[i]): A.e("s_barrier")
    e = A.e
    R = Regs(lane + 1)
    i15, g, l16, va, t0, t1, t2, vst, vw = [R.alloc() for _ in range(9)]
    XA = [[[R.alloc(4) for Q in range(2)] for T in range(2)] for c in range(2)]
    F1 = [[R.alloc(4) for cs in range(3)] for Q in range(2)]
    F2 = [[R.alloc(4) for cs in range(3)] for T in range(2)]
    W = [R.alloc(4) for T in range(2)]
    WR = R.alloc(8); WI = R.alloc(8)
    C1 = R.alloc(8); S1 = R.alloc(8); C2 = R.alloc(8); S2 = R.alloc(8)
    DR = R.alloc(8); DI = R.alloc(8)
    TR = R.alloc(8); TI = R.alloc(8)
    ZR = R.alloc(4); ZI = R.alloc(4)
    e(f"v_and_b32 v{i15}, 15, v{lane}")
    e(f"v_lshrrev_b32 v{g}, 4, v{lane}")
    e(f"v_lshlrev_b32 v{l16}, 4, v{lane}")
    e(f"v_lshlrev_b32 v{va}, 4, v{i15}")
    e(f"v_lshl_add_u32 v{va}, v{g}, 9, v{va}")
    e("s_lshl_b32 s4, s2, 13")
    e("s_add_u32 s5, s4, 4096")
    e("s_cmp_eq_u32 s2, 224")
    e("s_cselect_b32 s4, 4096, s4")
    e(f"s_cselect_b32 s5, {OOB}, s5")
    e("s_cmp_eq_u32 s2, 0")
    e(f"s_cselect_b32 s5, {OOB}, s5")
    e(f"s_add_u32 s6, s4, {X1F}")
    e(f"s_add_u32 s7, s5, {X1F}")
    e(f"s_add_u32 s8, s4, {Y1T}")
    e(f"s_add_u32 s9, s5, {Y1T}")
    e("s_lshl_b32 s11, s2, 13")
    e("s_lshl_b32 s12, s3, 11")
    e("s_add_u32 s11, s11, s12")
    e(f"s_add_u32 s11, s11, {WT}")
    e("s_cmp_lt_u32 s3, 2")
    e("s_cselect_b32 s10, s6, s7")
    e("s_and_b32 s13, s12, 2048")
    e("s_add_u32 s10, s10, s13")
    e(f"s_add_u32 m0, s12, {LB + 8192}")
    lm = R.alloc()
    e(f"v_lshlrev_b32 v{lm}, 31, v{lane}")
    e(f"v_lshrrev_b32 v{t0}, 16, v{lm}")
    e(f"v_or_b32 v{lm}, v{lm}, v{t0}")
    e("s_mov_b32 s15, 0x80008000")
    e("s_brev_b32 s12, 1")
    e("s_lshl_b32 s13, s3, 4")
    e(f"v_add_u32 v{t0}, s13, v{i15}")
    e(f"v_cvt_f32_u32 v{t0}, v{t0}")
    e(f"v_mul_f32 v{t0}, {f32(1/2048)}, v{t0}")
    e(f"v_lshlrev_b32 v{t1}, 2, v{g}")
    e(f"v_add_u32 v{vst}, s13, v{t1}")
    e(f"v_cvt_f32_u32 v{t1}, v{t1}")
    e(f"v_mul_f32 v{t1}, v{t1}, v{t0}")
    for j in range(8):
        e(f"v_fma_f32 v{C1+j}, v{t0}, {f32(float(16*(j>>2)+(j&3)))}, v{t1}" if False else
          f"v_fmamk_f32 v{C1+j}, v{t0}, {f32(float(16*(j>>2)+(j&3)))}, v{t1}")
    for j in range(8):
        e(f"v_sin_f32 v{S1+j}, v{C1+j}")
        e(f"v_cos_f32 v{C1+j}, v{C1+j}")
    e("s_waitcnt lgkmcnt(0)")
    mk_srd(A, 44, 34, WS_BYTES)
    tk = {}
    bars(0)
    for h in range(2):
        tk['x'] = e(f"buffer_load_dwordx4 v{l16}, s[44:47], s10 offen offset:{h*1024} lds{LD}")
    for T in range(2):
        tk['w'] = e(f"buffer_load_dwordx4 {vr(W[T],4)}, v{l16}, s[44:47], s11 offen offset:{T*1024}{LD}")
    A.nts = 2; A.ts()
    e(f"v_cvt_f32_u32 v{t0}, v{i15}")
    e(f"v_mul_f32 v{t0}, {f32(1/2048)}, v{t0}")
    e(f"v_add_f32 v{t2}, {f32(16/2048)}, v{t0}")
    e(f"v_cvt_f32_u32 v{t1}, v{vst}")
    for j in range(8):
        tt = t2 if j >> 2 else t0
        e(f"v_add_f32 v{C2+j}, {f32(float(j&3))}, v{t1}")
        e(f"v_mul_f32 v{C2+j}, v{C2+j}, v{tt}")
    for j in range(8):
        e(f"v_sin_f32 v{S2+j}, v{C2+j}")
        e(f"v_cos_f32 v{C2+j}, v{C2+j}")
    e(f"v_mul_f32 v{t0}, {f32(64.0)}, v{t0}")
    e(f"v_lshlrev_b32 v{t1}, 2, v{g}")
    e(f"v_cvt_f32_u32 v{t1}, v{t1}")
    e(f"v_mul_f32 v{TR}, v{t1}, v{t0}")
    for j in range(1, 4): e(f"v_fmamk_f32 v{TR+j}, v{t0}, {f32(float(j))}, v{TR}")
    for j in range(4):
        e(f"v_sin_f32 v{TI+j}, v{TR+j}")
        e(f"v_cos_f32 v{TR+j}, v{TR+j}")
    for cs, src in ((0, TR), (1, TI)):
        for z in range(2): e(f"v_cvt_pk_bf16_f32 v{F2[0][cs]+z}, v{src+2*z}, v{src+2*z+1}")
        for z in range(2): e(f"v_xor_b32 v{F2[0][cs]+2+z}, v{F2[0][cs]+z}, v{lm}")
        for z in range(4): e(f"v_xor_b32 v{F2[1][cs]+z}, s12, v{F2[0][cs]+z}")
    for T in range(2):
        for z in range(4): e(f"v_xor_b32 v{F2[T][2]+z}, s15, v{F2[T][1]+z}")
    e(f"v_add_u32 v{t0}, s13, v{i15}")
    e(f"v_cvt_f32_u32 v{t0}, v{t0}")
    e(f"v_mul_f32 v{t0}, {f32(1/64)}, v{t0}")
    e(f"v_lshrrev_b32 v{t1}, 1, v{g}")
    e(f"v_lshlrev_b32 v{t1}, 3, v{t1}")
    e(f"v_lshl_add_u32 v{t1}, v{g}, 2, v{t1}")
    e(f"v_cvt_f32_u32 v{t1}, v{t1}")
    e(f"v_mul_f32 v{TR}, v{t1}, v{t0}")
    for j in range(1, 8): e(f"v_fmamk_f32 v{TR+j}, v{t0}, {f32(float((j&3)+8*(j>>2)))}, v{TR}")
    for j in range(8):
        e(f"v_sin_f32 v{TI+j}, v{TR+j}")
        e(f"v_cos_f32 v{TR+j}, v{TR+j}")
    for cs, src in ((0, TR), (1, TI)):
        for z in range(4): e(f"v_cvt_pk_bf16_f32 v{F1[0][cs]+z}, v{src+2*z}, v{src+2*z+1}")
        for z in range(4): e(f"v_xor_b32 v{F1[1][cs]+z}, v{F1[0][cs]+z}, v{lm}")
    for Q in range(2):
        for z in range(4): e(f"v_xor_b32 v{F1[Q][2]+z}, s15, v{F1[Q][1]+z}")
    e(f"v_add_u32 v{t2}, {LB + 8192}, v{va}")
    e(f"v_lshlrev_b32 v{vst}, 1, v{vst}")
    e(f"v_lshl_add_u32 v{vst}, v{i15}, 7, v{vst}")
    e(f"v_and_b32 v{t0}, 1, v{g}")
    e(f"v_lshlrev_b32 v{t0}, 8, v{t0}")
    e(f"v_lshl_add_u32 v{t0}, v{i15}, 4, v{t0}")
    e(f"v_lshrrev_b32 v{t1}, 1, v{g}")
    e(f"v_lshl_add_u32 v{t0}, v{t1}, 3, v{t0}")
    e("s_lshl_b32 s14, s3, 9")
    e(f"s_add_u32 s14, s14, {LB}")
    e(f"v_add_u32 v{vw}, s14, v{t0}")
    e(f"v_add_u32 v{va}, {LB}, v{l16}")
    M = "v_mfma_f32_16x16x32_bf16"
    def mm(d, a, b, first):
        e(f"{M} {vr(d,4)}, {vr(a,4)}, {vr(b,4)}, {'0' if first else vr(d,4)}")
    def cmul(c, s, sgn):
        for p in range(8):
            e(f"v_mul_f32 v{TR+p}, v{DR+p}, v{c+p}")
            e(f"v_mul_f32 v{TI+p}, v{DI+p}, v{c+p}")
        for p in range(8):
            e(f"v_fma_f32 v{TR+p}, v{DI+p}, {'-' if sgn > 0 else ''}v{s+p}, v{TR+p}")
            e(f"v_fma_f32 v{TI+p}, v{DR+p}, {'-' if sgn < 0 else ''}v{s+p}, v{TI+p}")
        for p in range(4):
            e(f"v_cvt_pk_bf16_f32 v{ZR+p}, v{TR+2*p}, v{TR+2*p+1}")
            e(f"v_cvt_pk_bf16_f32 v{ZI+p}, v{TI+2*p}, v{TI+2*p+1}")
    A.wait_vm(tk['x'])
    assert fb[1] >= 1
    bars(1)
    A.ts()
    for Q in range(2):
        for c in range(2):
            for T in range(2):
                tk['x', c, T, Q] = e(f"ds_read_b128 {vr(XA[c][T][Q],4)}, v{t2} offset:{c*4096+Q*2048+T*256}")
    e(f"s_cmp_lt_u32 s5, {OOB}")
    e("s_cbranch_scc1 fft_nz")
    e("s_waitcnt lgkmcnt(0)")
    for T in range(2):
        for Q in range(2):
            for z in range(4): e(f"v_mov_b32 v{XA[1][T][Q]+z}, 0")
    A.label("fft_nz")
    for Q in range(2):
        for T in range(2):
            A.wait_ld(tk['x', 0, T, Q])
            mm(DR+4*T, XA[0][T][Q], F1[Q][0], Q == 0)
            mm(DI+4*T, XA[0][T][Q], F1[Q][2], Q == 0)
        for T in range(2):
            A.wait_ld(tk['x', 1, T, Q])
            mm(DR+4*T, XA[1][T][Q], F1[Q][1], False)
            mm(DI+4*T, XA[1][T][Q], F1[Q][0], False)
    bars(2)
    A.ts()
    cmul(C1, S1, -1)
    for T in range(2):
        mm(DR+4*T, F2[T][0], ZR, True)
        mm(DI+4*T, F2[T][0], ZI, True)
    for T in range(2):
        mm(DR+4*T, F2[T][1], ZI, False)
        mm(DI+4*T, F2[T][2], ZR, False)
    bars(3)
    A.wait_vm(tk['w'])
    for j in range(8):
        e(f"v_lshlrev_b32 v{WR+j}, 16, v{W[j>>2]+(j&3)}")
        e(f"v_and_b32 v{WI+j}, 0xffff0000, v{W[j>>2]+(j&3)}")
    cmul(WR, WI, +1)
    for T in range(2):
        mm(DR+4*T, ZR, F2[T][0], True)
        mm(DI+4*T, ZI, F2[T][0], True)
    for T in range(2):
        mm(DR+4*T, ZI, F2[T][2], False)
        mm(DI+4*T, ZR, F2[T][1], False)
    bars(5)
    cmul(C2, S2, +1)
    for T in range(2):
        e(f"ds_write_b64 v{vw}, {vr(ZR+2*T,2)} offset:{T*2048}")
        e(f"ds_write_b64 v{vw}, {vr(ZI+2*T,2)} offset:{4096+T*2048}")
    A.wait_all_ld()
    A.ts()
    barrier()
    A.ts()
    for Q in range(2):
        for c in range(2):
            for T in range(2):
                tk['u', c, T, Q] = e(f"ds_read_b128 {vr(XA[c][T][Q],4)}, v{va} offset:{(c*2+T)*2048+Q*1024}")
    for Q in range(2):
        for T in range(2):
            A.wait_ld(tk['u', 0, T, Q])
            mm(DR+4*T, F1[Q][0], XA[0][T][Q], Q == 0)
            mm(DI+4*T, F1[Q][1], XA[0][T][Q], Q == 0)
        for T in range(2):
            A.wait_ld(tk['u', 1, T, Q])
            mm(DR+4*T, F1[Q][2], XA[1][T][Q], False)
            mm(DI+4*T, F1[Q][0], XA[1][T][Q], False)
    for p in range(4):
        e(f"v_cvt_pk_bf16_f32 v{ZR+p}, v{DR+2*p}, v{DR+2*p+1}")
        e(f"v_cvt_pk_bf16_f32 v{ZI+p}, v{DI+2*p}, v{DI+2*p+1}")
    bars(4)
    for T in range(2):
        e(f"buffer_store_dwordx2 {vr(ZR+2*T,2)}, v{vst}, s[44:47], s8 offen offset:{T*2048}{ST}")
        e(f"buffer_store_dwordx2 {vr(ZI+2*T,2)}, v{vst}, s[44:47], s9 offen offset:{T*2048}{ST}")
    A.ts()
    for _ in range(xbar): e("s_barrier")
    A.ts_flush(kidx, "s3", wofs)
    e("s_endpgm")
    return R.n

PB = WS_END

def gemm_block(A, lane, nf, ni, epi, PD, bar_at=None, LD="", ST="", kidx=2, ROT=(7, 4), bar0=False):
    e = A.e
    R = Regs(lane + 1)
    t0, t1, t2, l16, vw2, vy, tid = [R.alloc() for _ in range(7)]
    ta = [R.alloc(), R.alloc()]
    acc = [[R.alloc(16) for u in range(2)] for h in range(2)]
    LF = [[R.alloc(4) for h in range(2)] for p in range(2)]
    GF = [[R.alloc(4) for h in range(2)] for p in range(PD)]
    XR = R.alloc(8)
    BR = R.alloc(8)
    e("s_and_b32 s4, s2, 7")
    e("s_lshr_b32 s5, s2, 3")
    e("s_and_b32 s6, s5, 3")
    e("s_lshr_b32 s7, s5, 2")
    e("s_lshl_b32 s8, s4, 2")
    e("s_add_u32 s8, s8, s6")
    e(f"v_lshrrev_b32 v{t0}, 3, v{lane}")
    e(f"v_and_b32 v{t1}, 7, v{lane}")
    e(f"v_lshlrev_b32 v{t2}, 1, v{t0}")
    e(f"v_and_b32 v{t2}, 4, v{t2}")
    e(f"v_xor_b32 v{t2}, v{t2}, v{t1}")
    e(f"v_lshlrev_b32 v{t2}, 4, v{t2}")
    e(f"v_mad_u32_u24 v{vw2}, v{t0}, 896, v{t2}" if False else f"v_mul_u32_u24 v{vw2}, 896, v{t0}")
    e(f"v_add_u32 v{vw2}, v{vw2}, v{t2}")
    e(f"v_lshl_add_u32 v{vy}, v{t0}, 12, v{t2}")
    e(f"v_lshlrev_b32 v{l16}, 4, v{lane}")
    e("s_lshl_b32 s9, s7, 7")
    e(f"s_mul_i32 s10, s3, {28*16*896}")
    e("s_add_u32 s10, s10, s9")
    e("s_mul_i32 s11, s8, 229376")
    e("s_mul_i32 s12, s3, 28672")
    e("s_add_u32 s11, s11, s12")
    e("s_add_u32 s12, s11, 114688")
    e(f"s_mul_i32 s13, s3, {7*16*4096}")
    e("s_lshl_b32 s14, s8, 7")
    e("s_add_u32 s13, s13, s14")
    e(f"s_add_u32 s13, s13, {Y1T}")
    e("s_mul_i32 s14, s7, 57344")
    e("s_mul_i32 s15, s3, 7168")
    e("s_add_u32 s14, s14, s15")
    e(f"s_add_u32 s14, s14, {IDF}")
    e("s_add_u32 s15, s14, 28672")
    e(f"s_mul_i32 s57, s3, {PD*2048}")
    e(f"s_mul_i32 s62, s6, {ROT[0]}")
    e(f"s_mul_i32 s63, s7, {ROT[1]}")
    e("s_add_u32 s62, s62, s63")
    e("s_cmp_ge_u32 s62, 28")
    e("s_cselect_b32 s63, 28, 0")
    e("s_sub_u32 s62, s62, s63")
    e("s_mul_i32 s63, s62, 14336")
    e("s_add_u32 s63, s63, s10")
    e("s_lshl_b32 s64, s62, 10")
    e("s_add_u32 s64, s64, s11")
    e("s_waitcnt lgkmcnt(0)")
    mk_srd(A, 44, 34, WS_BYTES)
    mk_srd(A, 40, 28, 1605632)
    mk_srd(A, 36, 16, 1835008)
    mk_srd(A, 48, 30, 896)
    mk_srd(A, 52, 32, 1835008)
    steps = [('i', k) for k in range(ni)] + [('f', k) for k in range(nf)]
    if epi == 'full':
        steps = [('f', k) for k in range(nf)] + [('i', k) for k in range(ni)]
    N = len(steps)
    tok = {}
    def issue(n):
        if n >= N: return
        kind, k = steps[n]
        sl = n % PD
        for hf in range(2):
            e(f"s_add_u32 m0, s57, {sl*2048 + hf*1024}")
            if kind == 'f':
                if hf: e(f"s_add_u32 s58, s63, {8*896}")
                e(f"buffer_load_dwordx4 v{vw2}, s[40:43], s{58 if hf else 63} offen lds")
            else:
                e(f"s_add_u32 s58, s13, {(k*16+hf*8)*4096}")
                e(f"buffer_load_dwordx4 v{vy}, s[44:47], s58 offen lds{LD}")
        if kind == 'f':
            e("s_add_u32 s58, s64, 114688")
            for hf in range(2):
                tok[n] = e(f"buffer_load_dwordx4 {vr(GF[sl][hf],4)}, v{l16}, s[44:47], s{58 if hf else 64} offen{LD}")
            e("s_add_u32 s62, s62, 1")
            e("s_add_u32 s63, s63, 14336")
            e("s_add_u32 s64, s64, 1024")
            e("s_cmp_eq_u32 s62, 28")
            e("s_cselect_b32 s62, 0, s62")
            e("s_cselect_b32 s63, s10, s63")
            e("s_cselect_b32 s64, s11, s64")
            return
        for hf in range(2):
            sb = (11 + hf) if kind == 'f' else (14 + hf)
            if k % 4 == 0 and k:
                e(f"s_add_u32 s{sb}, s{sb}, 4096")
            tok[n] = e(f"buffer_load_dwordx4 {vr(GF[sl][hf],4)}, v{l16}, s[44:47], s{sb} offen offset:{(k%4)*1024}{LD}")
    if bar0: e("s_barrier")
    if epi == 'final4':
        PR = [[R.alloc(8) for u in range(2)] for h in range(2)]
        e("s_lshl_b32 s60, s3, 5")
        e("s_add_u32 s60, s60, s8")
        e("s_mul_i32 s60, s60, 57344")
        e("s_lshl_b32 s61, s7, 12")
        e("s_add_u32 s60, s60, s61")
        e(f"s_add_u32 s60, s60, {PB}")
        e("s_add_u32 s61, s60, 28672")
        for u in range(2):
            for h in range(2):
                for qq in range(2):
                    tok['p', h, u] = e(f"buffer_load_dwordx4 {vr(PR[h][u]+4*qq,4)}, v{l16}, s[44:47], s{60+u} offen offset:{h*2048+qq*1024}{LD}")
    for n in range(PD):
        issue(n)
    A.nts = 2; A.ts()
    e(f"v_and_b32 v{tid}, 255, v0")
    e(f"v_lshrrev_b32 v{t0}, 2, v{tid}")
    e(f"v_and_b32 v{t1}, 3, v{tid}")
    e(f"v_mul_u32_u24 v{t2}, 28672, v{t0}")
    e(f"v_lshl_add_u32 v{t2}, v{t1}, 5, v{t2}")
    e("s_mul_i32 s59, s8, 896")
    e("s_add_u32 s59, s59, s9")
    e(f"s_add_u32 s60, s59, {PB}")
    e(f"v_mul_u32_u24 v{tid}, 272, v{t0}")
    e(f"v_lshl_add_u32 v{tid}, v{t1}, 6, v{tid}")
    e(f"v_lshlrev_b32 v{t1}, 5, v{t1}")
    def epi_loads():
        for hf in range(2):
            if epi == 'final':
                tok['x'] = e(f"buffer_load_dwordx4 {vr(XR+4*hf,4)}, v{t2}, s[44:47], s60 offen offset:{hf*16}{LD}")
            else:
                e(f"buffer_load_dwordx4 {vr(XR+4*hf,4)}, v{t2}, s[36:39], s59 offen offset:{hf*16}")
                tok['x'] = e(f"buffer_load_dwordx4 {vr(BR+4*hf,4)}, v{t1}, s[48:51], s9 offen offset:{hf*16}")
    e(f"v_bfe_u32 v{t0}, v{lane}, 2, 2")
    e(f"v_lshrrev_b32 v{ta[1]}, 5, v{lane}")
    e(f"v_lshl_add_u32 v{t0}, v{ta[1]}, 2, v{t0}")
    e(f"v_lshlrev_b32 v{t0}, 7, v{t0}")
    e(f"v_bfe_u32 v{ta[1]}, v{lane}, 3, 1")
    e(f"v_lshl_add_u32 v{t0}, v{ta[1]}, 6, v{t0}")
    e(f"v_bfe_u32 v{ta[1]}, v{lane}, 4, 1")
    e(f"v_lshl_add_u32 v{t0}, v{ta[1]}, 5, v{t0}")
    e(f"v_and_b32 v{ta[1]}, 3, v{lane}")
    e(f"v_lshl_add_u32 v{t0}, v{ta[1]}, 3, v{t0}")
    e(f"v_add_u32 v{ta[0]}, s57, v{t0}")
    e(f"v_xor_b32 v{ta[1]}, 64, v{ta[0]}")
    rt = {}
    def rd(n):
        if n >= N: return
        A.wait_vm(tok[n])
        sl = n % PD
        for h in range(2):
            f = LF[n & 1][h]
            e(f"ds_read_b64_tr_b16 {vr(f,2)}, v{ta[h]} offset:{sl*2048}")
            rt[n] = e(f"ds_read_b64_tr_b16 {vr(f+2,2)}, v{ta[h]} offset:{sl*2048+1024}")
    if epi == 'final4':
        for u in range(2):
            for h in range(2):
                A.wait_vm(tok['p', h, u])
                for j in range(8):
                    e(f"v_lshlrev_b32 v{acc[h][u]+2*j}, 16, v{PR[h][u]+j}")
                    e(f"v_and_b32 v{acc[h][u]+2*j+1}, 0xffff0000, v{PR[h][u]+j}")
    rd(0)
    for n in range(N):
        kind, k = steps[n]
        A.wait_ld(rt[n])
        if n % 7 == 0: A.ts()
        rd(n + 1)
        L = LF[n & 1]; G = GF[n % PD]
        for h in range(2):
            for u in range(2):
                a, b = (L[h], G[u]) if kind == 'f' else (G[h], L[u])
                c = '0' if n == 0 and epi != 'final4' else vr(acc[h][u], 16)
                e(f"v_mfma_f32_32x32x16_bf16 {vr(acc[h][u],16)}, {vr(a,4)}, {vr(b,4)}, {c}")
        issue(n + PD)
        if n == max(N - PD, 0): epi_loads()
        if bar_at is not None and n == bar_at: e("s_barrier")
    e(f"v_and_b32 v{t0}, 31, v{lane}")
    e(f"v_mul_u32_u24 v{t0}, 272, v{t0}")
    e(f"v_lshrrev_b32 v{t1}, 5, v{lane}")
    e(f"v_lshl_add_u32 v{t0}, v{t1}, 4, v{t0}")
    e(f"s_mul_i32 s61, s3, {64*272}")
    e(f"v_add_u32 v{t0}, s61, v{t0}")
    A.ts()
    e("s_barrier")
    A.ts()
    for h in range(2):
        for u in range(2):
            for q in range(4):
                e(f"ds_write_b128 v{t0}, {vr(acc[h][u]+4*q,4)} offset:{u*32*272 + h*128 + q*32}")
    A.wait_all_ld()
    e("s_barrier")
    A.ts()
    flat = [acc[0][0], acc[0][1], acc[1][0], acc[1][1]]
    tkk = []
    for q in range(4):
        for w in range(4):
            tkk.append(e(f"ds_read_b128 {vr(flat[w]+4*q,4)}, v{tid} offset:{w*64*272 + q*16}"))
    A.wait_vm(tok['x'])
    O = LF[0][0]
    assert LF[0][1] == O + 4
    for q in range(4):
        A.wait_ld(tkk[4*q+3])
        for p in range(2):
            a = [f + 4*q + 2*p for f in flat]
            e(f"v_pk_add_f32 {vr(a[0],2)}, {vr(a[0],2)}, {vr(a[1],2)}")
            e(f"v_pk_add_f32 {vr(a[2],2)}, {vr(a[2],2)}, {vr(a[3],2)}")
            xr = XR + 2*q + p
            e(f"v_lshlrev_b32 v{a[1]}, 16, v{xr}")
            e(f"v_and_b32 v{a[1]+1}, 0xffff0000, v{xr}")
            e(f"v_pk_add_f32 {vr(a[0],2)}, {vr(a[0],2)}, {vr(a[2],2)}")
            if epi != 'final':
                br = BR + 2*q + p
                e(f"v_lshlrev_b32 v{a[3]}, 16, v{br}")
                e(f"v_and_b32 v{a[3]+1}, 0xffff0000, v{br}")
                e(f"v_pk_add_f32 {vr(a[0],2)}, {vr(a[0],2)}, {vr(a[3],2)}")
            e(f"v_pk_add_f32 {vr(a[0],2)}, {vr(a[0],2)}, {vr(a[1],2)}")
            e(f"v_cvt_pk_bf16_f32 v{O+2*q+p}, v{a[0]}, v{a[0]+1}")
    for hf in range(2):
        if epi == 'part':
            e(f"buffer_store_dwordx4 {vr(O+4*hf,4)}, v{t2}, s[44:47], s60 offen offset:{hf*16}{ST}")
        else:
            e(f"buffer_store_dwordx4 {vr(O+4*hf,4)}, v{t2}, s[52:55], s59 offen offset:{hf*16}")
    A.ts_flush(kidx)
    e("s_endpgm")
    return R.n

def gemm4(A, lane, PC=3, PF=6, LD="", ST="", kidx=1, ROT=(1, 2), bar_c=0):
    e = A.e
    R = Regs(lane + 1)
    t0, t1, t2, l16, vw2 = [R.alloc() for _ in range(5)]
    ta = [R.alloc() for _ in range(4)]
    acc = [R.alloc(16) for b in range(4)]
    LF = [R.alloc(4) for _ in range(8)]
    GF = [[R.alloc(4) for k in range(4)] for c in range(7)]
    e("s_bfe_u32 s4, s2, 0x20001")
    e("s_and_b32 s5, s2, 1")
    e("s_bfe_u32 s6, s2, 0x30003")
    e("s_lshr_b32 s7, s2, 6")
    e("s_lshl_b32 s8, s5, 3")
    e("s_add_u32 s8, s8, s6")
    e("s_lshl_b32 s8, s8, 2")
    e("s_add_u32 s8, s8, s3")
    e(f"v_lshrrev_b32 v{t0}, 3, v{lane}")
    e(f"v_and_b32 v{t1}, 7, v{lane}")
    e(f"v_lshlrev_b32 v{t2}, 1, v{t0}")
    e(f"v_and_b32 v{t2}, 4, v{t2}")
    e(f"v_xor_b32 v{t2}, v{t2}, v{t1}")
    e(f"v_lshlrev_b32 v{t2}, 4, v{t2}")
    e(f"v_mul_u32_u24 v{vw2}, 896, v{t0}")
    e(f"v_add_u32 v{vw2}, v{vw2}, v{t2}")
    e(f"v_lshlrev_b32 v{l16}, 4, v{lane}")
    e("s_lshl_b32 s9, s7, 2")
    e("s_min_u32 s9, s9, 10")
    e(f"s_mul_i32 s10, s4, {448*896}")
    e(f"s_mul_i32 s11, s3, {16*896}")
    e("s_add_u32 s10, s10, s11")
    e("s_lshl_b32 s11, s9, 6")
    e("s_add_u32 s10, s10, s11")
    e("s_mul_i32 s11, s8, 114688")
    e("s_mul_i32 s12, s4, 28672")
    e("s_add_u32 s11, s11, s12")
    e("s_lshl_b32 s57, s3, 12")
    e(f"s_mul_i32 s62, s6, {ROT[0]}")
    e(f"s_mul_i32 s63, s7, {ROT[1]}")
    e("s_add_u32 s62, s62, s63")
    for _ in range((7 * ROT[0] + 3 * ROT[1]) // 7):
        e("s_cmp_ge_u32 s62, 7")
        e("s_cselect_b32 s63, 7, 0")
        e("s_sub_u32 s62, s62, s63")
    e(f"s_mul_i32 s63, s62, {64*896}")
    e("s_add_u32 s63, s63, s10")
    e("s_lshl_b32 s64, s62, 12")
    e("s_add_u32 s64, s64, s11")
    e("s_waitcnt lgkmcnt(0)")
    mk_srd(A, 44, 34, WS_BYTES)
    mk_srd(A, 40, 28, 1605632)
    dt, ht = {}, {}
    def issue(c):
        if c >= 7: return []
        F = []
        def dma(ch, rh):
            e(f"s_add_u32 m0, s57, {c*16384 + ch*2048 + rh*1024}")
            if ch or rh: e(f"s_add_u32 s58, s63, {rh*7168 + ch*128}")
            dt[c] = e(f"buffer_load_dwordx4 v{vw2}, s[40:43], s{58 if ch or rh else 63} offen lds")
        def hl(k):
            ht[c, k] = e(f"buffer_load_dwordx4 {vr(GF[c][k],4)}, v{l16}, s[44:47], s64 offen offset:{k*1024}{LD}")
            if k == 3:
                e("s_add_u32 s62, s62, 1")
                e(f"s_add_u32 s63, s63, {64*896}")
                e("s_add_u32 s64, s64, 4096")
                e("s_cmp_eq_u32 s62, 7")
                e("s_cselect_b32 s62, 0, s62")
                e("s_cselect_b32 s63, s10, s63")
                e("s_cselect_b32 s64, s11, s64")
        return [(lambda ch=ch, rh=rh: dma(ch, rh)) for rh in range(2) for ch in range(2)] + [(lambda k=k: hl(k)) for k in range(4)]
    for c in range(PC):
        for f in issue(c): f()
    A.nts = 2; A.ts()
    e("s_lshl_b32 s60, s4, 6")
    e("s_add_u32 s60, s60, s8")
    e("s_mul_i32 s60, s60, 14")
    e("s_add_u32 s60, s60, s9")
    e("s_lshl_b32 s60, s60, 11")
    e(f"s_add_u32 s60, s60, {PB}")
    e("s_add_u32 s61, s60, 4096")
    e(f"v_bfe_u32 v{t0}, v{lane}, 2, 2")
    e(f"v_lshrrev_b32 v{t1}, 5, v{lane}")
    e(f"v_lshl_add_u32 v{t0}, v{t1}, 2, v{t0}")
    e(f"v_lshlrev_b32 v{t0}, 7, v{t0}")
    e(f"v_bfe_u32 v{t1}, v{lane}, 3, 1")
    e(f"v_lshl_add_u32 v{t0}, v{t1}, 6, v{t0}")
    e(f"v_bfe_u32 v{t1}, v{lane}, 4, 1")
    e(f"v_lshl_add_u32 v{t0}, v{t1}, 5, v{t0}")
    e(f"v_and_b32 v{t1}, 3, v{lane}")
    e(f"v_lshl_add_u32 v{ta[0]}, v{t1}, 3, v{t0}")
    e(f"v_xor_b32 v{ta[1]}, 64, v{ta[0]}")
    e(f"v_add_u32 v{ta[2]}, 65536, v{ta[0]}")
    e(f"v_add_u32 v{ta[3]}, 65536, v{ta[1]}")
    if bar_c: e("s_barrier")
    rt = {}
    pend = []
    def rd(n):
        if n >= 112: return
        c, ks, b = n // 16, (n // 4) % 4, n % 4
        if n % 16 == 0:
            A.wait_vm(dt[c]); e("s_barrier"); A.ts()
            pend.extend(issue(c + PC))
        o = (c % 4) * 16384 + ks * 4096 + (b >> 1) * 2048
        f = LF[n % 8]; a = ta[(b & 1) + 2 * (c // 4)]
        e(f"ds_read_b64_tr_b16 {vr(f,2)}, v{a} offset:{o}")
        rt[n] = e(f"ds_read_b64_tr_b16 {vr(f+2,2)}, v{a} offset:{o+1024}")
    for n in range(PF): rd(n)
    for n in range(112):
        c, ks, b = n // 16, (n // 4) % 4, n % 4
        rd(n + PF)
        if n % 2 == 0: A.wait_ld(rt[n + 1])
        if b == 0: A.wait_vm(ht[c, ks])
        e(f"v_mfma_f32_32x32x16_bf16 {vr(acc[b],16)}, {vr(LF[n%8],4)}, {vr(GF[c][ks],4)}, {'0' if n < 4 else vr(acc[b],16)}")
        if pend: pend.pop(0)()
    A.ts()
    e("s_cmp_eq_u32 s7, 3")
    e("s_cbranch_scc1 g4_skip")
    for b in range(4):
        if b == 2: A.label("g4_skip"); e("s_nop 7"); e("s_nop 7")
        for qq in range(2):
            O = GF[b >> 1][2 * (b & 1) + qq]
            for j in range(4):
                e(f"v_cvt_pk_bf16_f32 v{O+j}, v{acc[b]+8*qq+2*j}, v{acc[b]+8*qq+2*j+1}")
            e(f"buffer_store_dwordx4 {vr(O,4)}, v{l16}, s[44:47], s{60 + (b >> 1)} offen offset:{(b&1)*2048 + qq*1024}{ST}")
    A.ts_flush(kidx)
    e("s_endpgm")
    return R.n

def k3_block(A, lane, LD="", kidx=2, NG0=6, SLP=2):
    e = A.e
    R = Regs(lane + 1)
    t0, t1, t2, t3, l16, vy, vx, vb, hh, dl, vk, xw = [R.alloc() for _ in range(12)]
    ta = [R.alloc(), R.alloc()]
    bs = R.alloc(4); cs = R.alloc(4); sn = R.alloc(4)
    acc = [R.alloc(16) for u in range(2)]
    Rs = R.n
    LF = [[R.alloc(4) for u in range(2)] for p in range(3)]
    G = [R.alloc(4) for _ in range(14)]
    nv = R.n; R.n = Rs
    P = [R.alloc(8) for kq in range(4)]
    X = R.alloc(8); B2 = R.alloc(8); S = R.alloc(16); T = R.alloc(16)
    nv = max(nv, R.n)
    e("s_and_b32 s4, s2, 7")
    e("s_lshr_b32 s5, s2, 3")
    e("s_and_b32 s6, s5, 3")
    e("s_lshr_b32 s7, s5, 2")
    e("s_lshl_b32 s8, s4, 2")
    e("s_add_u32 s8, s8, s6")
    e("s_and_b32 s4, s3, 1")
    e("s_bfe_u32 s5, s3, 0x10001")
    e("s_lshl_b32 s9, s7, 1")
    e("s_add_u32 s9, s9, s4")
    e(f"v_and_b32 v{t0}, 31, v{lane}")
    e(f"v_lshrrev_b32 v{hh}, 5, v{lane}")
    e(f"v_lshlrev_b32 v{l16}, 4, v{lane}")
    e("s_cmp_ge_u32 s3, 4")
    e("s_cbranch_scc1 k3_epi")
    e(f"s_mov_b32 s15, {f32(1.0/448)}")
    e(f"s_mov_b32 s60, {f32(-448.0)}")
    e("s_lshl_b32 s10, s9, 5")
    e("s_mul_i32 s11, s5, 112")
    e(f"v_add_u32 v{t2}, s10, v{t0}")
    e(f"v_cvt_f32_u32 v{t2}, v{t2}")
    e(f"v_lshl_add_u32 v{t3}, v{hh}, 1, s11")
    e(f"v_cmp_eq_u32 vcc, 0, v{t3}")
    e(f"v_cvt_f32_u32 v{t3}, v{t3}")
    for z, off in enumerate((0.0, 1.0, 4.0, 5.0)):
        e(f"v_add_f32 v{bs+z}, {f32(off)}, v{t3}")
    for z in range(4): e(f"v_mul_f32 v{bs+z}, v{bs+z}, v{t2}")
    e(f"v_mul_f32 v{dl}, {f32(8.0)}, v{t2}")
    Z = [(bs + z, cs + z) for z in range(4)] + [(dl, t1)]
    for r, t in Z: e(f"v_mul_f32 v{t}, s15, v{r}")
    for r, t in Z: e(f"v_floor_f32 v{t}, v{t}")
    for r, t in Z: e(f"v_fma_f32 v{r}, v{t}, s60, v{r}")
    for r, t in Z: e(f"v_mul_f32 v{r}, s15, v{r}")
    e(f"v_lshlrev_b32 v{vk}, 31, v{lane}")
    e(f"v_or_b32 v{vk}, 0x3f003f00, v{vk}")
    def gen(n):
        for z in range(4):
            if n: e(f"v_fmamk_f32 v{cs+z}, v{dl}, {f32(float(n))}, v{bs+z}")
        for z in range(4):
            e(f"v_sin_f32 v{sn+z}, v{(cs if n else bs)+z}")
            e(f"v_cos_f32 v{cs+z}, v{(cs if n else bs)+z}")
        for z in range(4): e(f"v_cvt_pk_bf16_f32 v{G[n]+z}, v{cs+z}, -v{sn+z}")
        if n == 0: e(f"v_cndmask_b32 v{G[0]}, v{G[0]}, v{vk}, vcc")
    e(f"v_lshrrev_b32 v{t0}, 3, v{lane}")
    e(f"v_and_b32 v{t1}, 7, v{lane}")
    e(f"v_lshlrev_b32 v{t2}, 1, v{t0}")
    e(f"v_and_b32 v{t2}, 4, v{t2}")
    e(f"v_xor_b32 v{t2}, v{t2}, v{t1}")
    e(f"v_lshlrev_b32 v{t2}, 4, v{t2}")
    e(f"v_lshl_add_u32 v{vy}, v{t0}, 12, v{t2}")
    e(f"s_mul_i32 s13, s3, {7*16*4096}")
    e("s_lshl_b32 s14, s8, 7")
    e("s_add_u32 s13, s13, s14")
    e(f"s_add_u32 s13, s13, {Y1T}")
    e(f"s_mul_i32 s57, s3, {7*2048}")
    for n in range(NG0): gen(n)
    e("s_waitcnt lgkmcnt(0)")
    mk_srd(A, 44, 34, WS_BYTES)
    for i in range(14):
        e(f"s_add_u32 m0, s57, {i*1024}")
        if i: e(f"s_add_u32 s13, s13, {8*4096}")
        ty = e(f"buffer_load_dwordx4 v{vy}, s[44:47], s13 offen lds{LD}")
    A.nts = 2; A.ts()
    for n in range(NG0, 14): gen(n)
    e(f"v_bfe_u32 v{t0}, v{lane}, 2, 2")
    e(f"v_lshl_add_u32 v{t0}, v{hh}, 2, v{t0}")
    e(f"v_lshlrev_b32 v{t0}, 7, v{t0}")
    e(f"v_bfe_u32 v{t1}, v{lane}, 3, 1")
    e(f"v_lshl_add_u32 v{t0}, v{t1}, 6, v{t0}")
    e(f"v_bfe_u32 v{t1}, v{lane}, 4, 1")
    e(f"v_lshl_add_u32 v{t0}, v{t1}, 5, v{t0}")
    e(f"v_and_b32 v{t1}, 3, v{lane}")
    e(f"v_lshl_add_u32 v{t0}, v{t1}, 3, v{t0}")
    e("s_mul_i32 s12, s5, 28672")
    e(f"v_add_u32 v{ta[0]}, s12, v{t0}")
    e(f"v_xor_b32 v{ta[1]}, 64, v{ta[0]}")
    e("s_lshl_b32 s12, s3, 13")
    e("s_add_u32 s12, s12, 57344")
    e(f"v_add_u32 v{xw}, s12, v{l16}")
    A.ts()
    A.wait_vm(ty)
    e("s_barrier")
    A.ts()
    rt = {}
    def rd(n):
        if n >= 14: return
        for u in range(2):
            f = LF[n % 3][u]
            e(f"ds_read_b64_tr_b16 {vr(f,2)}, v{ta[u]} offset:{n*2048}")
            rt[n] = e(f"ds_read_b64_tr_b16 {vr(f+2,2)}, v{ta[u]} offset:{n*2048+1024}")
    rd(0); rd(1)
    for n in range(14):
        rd(n + 2)
        A.wait_ld(rt[n])
        for u in range(2):
            e(f"v_mfma_f32_32x32x16_bf16 {vr(acc[u],16)}, {vr(G[n],4)}, {vr(LF[n%3][u],4)}, {'0' if n == 0 else vr(acc[u],16)}")
    A.ts()
    for u in range(2):
        for q in range(4): e(f"ds_write_b128 v{xw}, {vr(acc[u]+4*q,4)} offset:{u*4096+q*1024}")
    A.wait_all_ld()
    e("s_barrier")
    A.ts_flush(kidx)
    e("s_endpgm")
    A.label("k3_epi"); A.reset_counts()
    e(f"v_mul_u32_u24 v{vx}, 28672, v{t0}")
    e(f"v_lshlrev_b32 v{vb}, 4, v{hh}")
    e(f"v_add_u32 v{vx}, v{vx}, v{vb}")
    e("s_lshl_b32 s61, s8, 1")
    e("s_add_u32 s61, s61, s5")
    e("s_mul_i32 s61, s61, 14")
    e("s_add_u32 s61, s61, s9")
    e("s_lshl_b32 s61, s61, 11")
    e(f"s_add_u32 s61, s61, {PB}")
    e("s_lshl_b32 s10, s9, 6")
    e("s_lshl_b32 s59, s5, 10")
    e("s_add_u32 s59, s59, s8")
    e("s_mul_i32 s59, s59, 896")
    e("s_add_u32 s59, s59, s10")
    e("s_lshl_b32 s12, s4, 13")
    e("s_lshl_b32 s13, s5, 12")
    e("s_add_u32 s12, s12, s13")
    e("s_add_u32 s12, s12, 57344")
    e(f"v_add_u32 v{xw}, s12, v{l16}")
    e(f"s_mov_b32 s14, {f32(2.0 / (2048 * 448))}")
    e("s_mov_b32 s15, 0xffff0000")
    e("s_waitcnt lgkmcnt(0)")
    mk_srd(A, 44, 34, WS_BYTES)
    mk_srd(A, 36, 16, 1835008)
    mk_srd(A, 48, 30, 896)
    mk_srd(A, 52, 32, 1835008)
    if SLP: e(f"s_sleep {SLP}")
    tok = {}
    for qq in range(2):
        e(f"buffer_load_dwordx4 {vr(B2+4*qq,4)}, v{vb}, s[48:51], s10 offen offset:{qq*32}")
        tok['x'] = e(f"buffer_load_dwordx4 {vr(X+4*qq,4)}, v{vx}, s[36:39], s59 offen offset:{qq*32}")
    for kq in range(4):
        if kq: e(f"s_add_u32 s61, s61, {64*28672}")
        for qq in range(2):
            tok[kq] = e(f"buffer_load_dwordx4 {vr(P[kq]+4*qq,4)}, v{l16}, s[44:47], s61 offen offset:{qq*1024}{LD}")
    A.nts = 2; A.ts()
    e("s_barrier")
    A.ts()
    A.wait_vm(tok['x'])
    for r in (X, B2):
        for qq in range(2):
            for j in range(2): e(f"v_permlane32_swap_b32 v{r+4*qq+j}, v{r+4*qq+2+j}")
    def unp(src, first):
        for j in range(8):
            d = S if first else T
            e(f"v_lshlrev_b32 v{d+2*j}, 16, v{src+j}")
            e(f"v_and_b32 v{d+2*j+1}, s15, v{src+j}")
        if not first:
            for j in range(16): e(f"v_add_f32 v{S+j}, v{S+j}, v{T+j}")
    unp(X, True)
    unp(B2, False)
    for kq in range(4):
        A.wait_vm(tok[kq])
        unp(P[kq], False)
    A.ts()
    e("s_barrier")
    A.ts()
    rk = {}
    for q in range(4):
        for k in range(2): rk[q] = e(f"ds_read_b128 {vr(acc[k]+4*q,4)}, v{xw} offset:{k*16384+q*1024}")
    for qq in range(2):
        for q in (2 * qq, 2 * qq + 1):
            A.wait_ld(rk[q])
            for k in range(2):
                for j in range(4 * q, 4 * q + 4): e(f"v_fma_f32 v{S+j}, v{acc[k]+j}, s14, v{S+j}")
        for j in range(4 * qq, 4 * qq + 4): e(f"v_cvt_pk_bf16_f32 v{X+j}, v{S+2*j}, v{S+2*j+1}")
        for j in range(2): e(f"v_permlane32_swap_b32 v{X+4*qq+j}, v{X+4*qq+2+j}")
        e(f"buffer_store_dwordx4 {vr(X+4*qq,4)}, v{vx}, s[52:55], s59 offen offset:{qq*32}")
    A.ts_flush(kidx)
    e("s_endpgm")
    return nv

def prolog(A, name, nwg, vd):
    header(A, name)
    A.e(f"s_cmp_ge_u32 s2, {nwg}")
    A.e(f"s_cbranch_scc1 {name}_end")
    load_args(A)
    code_pf(A, name, vd)
    A.nts = 0; A.ts(True); A.ts()
    A.e("v_lshrrev_b32 v2, 6, v0")
    A.e("v_and_b32 v1, 63, v0")
    A.e("v_readfirstlane_b32 s3, v2")
    A.e("s_nop 3")

def epilog(A, name):
    A.label(f"{name}_end")
    A.e("s_endpgm")
```

```python
import sys
from asmlib import *
from k1 import *
from k2 import *

def build(mode="v3", PD=12, bar_at=17, LD="", ST=" sc0 sc1", dbg=0, ra=7, rd=4, ST1=None, NX0=7, NQ1=1, PFW2=1, prio=1, PRIO=3, HPK=0, cpf=1, GS=0, XD=2, PC=2, PF=6, r1=0, r2=0, fb=1010130, STF=None, b0=0, NG0=4, SLP=2, MS=0, HS=0, NH1=14, HP2=3, BP=14):
    fb = [int(c) for c in str(fb)[1:]]
    A = Asm()
    A.dbg = bool(dbg); A.cpf = cpf
    L = []
    K = []
    A.raw('.amdgcn_target "amdgcn-amd-amdhsa--gfx950"\n.text')
    nv = gen_k1(A, "k1_kernel", ST if ST1 is None else ST1, NX0, NQ1, PFW2, PRIO, HPK, GS, XD, MS, HS, NH1, HP2, BP)
    assert nv <= 251; nv = 252
    L.append(("k1_kernel", 256, 512, K1_LDS)); K.append(kd("k1_kernel", nv, 102))
    if mode == "v3":
        gl = 114688
        prolog(A, "k2_kernel", 256, 231)
        A.e("s_cmp_ge_u32 s3, 4")
        A.e("s_cbranch_scc1 k2_fft")
        nv = gemm4(A, 1, PC, PF, LD, ST, 1, (r1, r2), b0)
        A.label("k2_fft"); A.reset_counts()
        A.e("s_cmp_ge_u32 s2, 225")
        A.e("s_cbranch_scc1 k2_kernel_end")
        A.e("s_sub_u32 s3, s3, 4")
        if prio: A.e("s_setprio 3")
        nv = max(nv, fft_block(A, 1, gl, lambda: A.e("s_barrier"), LD, ST if STF is None else STF, 1, 4, False, 6 + b0 - sum(fb), fb))
        epilog(A, "k2_kernel"); assert nv <= 231; nv = 232
        L.append(("k2_kernel", 256, 512, gl + 16384)); K.append(kd("k2_kernel", nv, 102))
        prolog(A, "k3_kernel", 224, 143)
        nv = k3_block(A, 1, LD, 2, NG0, SLP)
        epilog(A, "k3_kernel"); assert nv <= 143; nv = 144
        A.raw("code_end:")
        L.append(("k3_kernel", 224, 512, 57344 + 32768)); K.append(kd("k3_kernel", nv, 102))
    else:
        gl = max(PD*8192, 69632)
        prolog(A, "k2_kernel", 225, 207)
        A.e("s_cmp_ge_u32 s3, 4")
        A.e("s_cbranch_scc1 k2_fft")
        A.e("s_cmp_ge_u32 s2, 224")
        A.e("s_cbranch_scc1 k2_kernel_end")
        nv = gemm_block(A, 1, 28, 0, 'part', PD, bar_at, LD, ST, 1, (ra, rd), not prio)
        A.label("k2_fft"); A.reset_counts()
        A.e("s_sub_u32 s3, s3, 4")
        if prio: A.e("s_setprio 3")
        nv = max(nv, fft_block(A, 1, gl, lambda: A.e("s_barrier"), LD, ST, 1, 4, not prio))
        epilog(A, "k2_kernel"); assert nv <= 207; nv = 208
        L.append(("k2_kernel", 225, 512, gl + 8192)); K.append(kd("k2_kernel", nv, 102))
        prolog(A, "k3_kernel", 224, 167)
        nv = gemm_block(A, 1, 0, 7, 'final', 7, None, LD, ST)
        epilog(A, "k3_kernel"); assert nv <= 167; nv = 168
        A.raw("code_end:")
        L.append(("k3_kernel", 224, 256, 69632)); K.append(kd("k3_kernel", nv, 102))
    hdr = "".join(f"; @launch kernel={n} grid=({g},1,1) block=({b},1,1) lds={l}\n" for n, g, b, l in L)
    return hdr + A.text() + '.section .rodata,"a"\n' + "".join(K)

if __name__ == "__main__":
    out = sys.argv[1]
    kw = {}
    for a in sys.argv[2:]:
        k, v = a.split("=")
        kw[k] = int(v) if v.lstrip("-").isdigit() else v.replace("_", " ")
    open(out, "w").write(build(**kw))
```

```python
from asmlib import *
from k1 import *

def fft_block(A, lane, LB, barrier, LD="", ST="", kidx=1, wofs=0, bar0=False, xbar=0, fb=(0,0,0,0)):
    def bars(i):
        for _ in range(fb[i]): A.e("s_barrier")
    e = A.e
    R = Regs(lane + 1)
    i15, g, l16, va, t0, t1, t2, vst, vw = [R.alloc() for _ in range(9)]
    XA = [[[R.alloc(4) for Q in range(2)] for T in range(2)] for c in range(2)]
    F1 = [[R.alloc(4) for cs in range(3)] for Q in range(2)]
    F2 = [[R.alloc(4) for cs in range(3)] for T in range(2)]
    W = [R.alloc(4) for T in range(2)]
    WR = R.alloc(8); WI = R.alloc(8)
    C1 = R.alloc(8); S1 = R.alloc(8); C2 = R.alloc(8); S2 = R.alloc(8)
    DR = R.alloc(8); DI = R.alloc(8)
    TR = R.alloc(8); TI = R.alloc(8)
    ZR = R.alloc(4); ZI = R.alloc(4)
    e(f"v_and_b32 v{i15}, 15, v{lane}")
    e(f"v_lshrrev_b32 v{g}, 4, v{lane}")
    e(f"v_lshlrev_b32 v{l16}, 4, v{lane}")
    e(f"v_lshlrev_b32 v{va}, 4, v{i15}")
    e(f"v_lshl_add_u32 v{va}, v{g}, 9, v{va}")
    e("s_lshl_b32 s4, s2, 13")
    e("s_add_u32 s5, s4, 4096")
    e("s_cmp_eq_u32 s2, 224")
    e("s_cselect_b32 s4, 4096, s4")
    e(f"s_cselect_b32 s5, {OOB}, s5")
    e("s_cmp_eq_u32 s2, 0")
    e(f"s_cselect_b32 s5, {OOB}, s5")
    e(f"s_add_u32 s6, s4, {X1F}")
    e(f"s_add_u32 s7, s5, {X1F}")
    e(f"s_add_u32 s8, s4, {Y1T}")
    e(f"s_add_u32 s9, s5, {Y1T}")
    e("s_lshl_b32 s11, s2, 13")
    e("s_lshl_b32 s12, s3, 11")
    e("s_add_u32 s11, s11, s12")
    e(f"s_add_u32 s11, s11, {WT}")
    e("s_cmp_lt_u32 s3, 2")
    e("s_cselect_b32 s10, s6, s7")
    e("s_and_b32 s13, s12, 2048")
    e("s_add_u32 s10, s10, s13")
    e(f"s_add_u32 m0, s12, {LB + 8192}")
    lm = R.alloc()
    e(f"v_lshlrev_b32 v{lm}, 31, v{lane}")
    e(f"v_lshrrev_b32 v{t0}, 16, v{lm}")
    e(f"v_or_b32 v{lm}, v{lm}, v{t0}")
    e("s_mov_b32 s15, 0x80008000")
    e("s_brev_b32 s12, 1")
    e("s_lshl_b32 s13, s3, 4")
    e(f"v_add_u32 v{t0}, s13, v{i15}")
    e(f"v_cvt_f32_u32 v{t0}, v{t0}")
    e(f"v_mul_f32 v{t0}, {f32(1/2048)}, v{t0}")
    e(f"v_lshlrev_b32 v{t1}, 2, v{g}")
    e(f"v_add_u32 v{vst}, s13, v{t1}")
    e(f"v_cvt_f32_u32 v{t1}, v{t1}")
    e(f"v_mul_f32 v{t1}, v{t1}, v{t0}")
    for j in range(8):
        e(f"v_fma_f32 v{C1+j}, v{t0}, {f32(float(16*(j>>2)+(j&3)))}, v{t1}" if False else
          f"v_fmamk_f32 v{C1+j}, v{t0}, {f32(float(16*(j>>2)+(j&3)))}, v{t1}")
    for j in range(8):
        e(f"v_sin_f32 v{S1+j}, v{C1+j}")
        e(f"v_cos_f32 v{C1+j}, v{C1+j}")
    e("s_waitcnt lgkmcnt(0)")
    mk_srd(A, 44, 34, WS_BYTES)
    tk = {}
    bars(0)
    for h in range(2):
        tk['x'] = e(f"buffer_load_dwordx4 v{l16}, s[44:47], s10 offen offset:{h*1024} lds{LD}")
    for T in range(2):
        tk['w'] = e(f"buffer_load_dwordx4 {vr(W[T],4)}, v{l16}, s[44:47], s11 offen offset:{T*1024}{LD}")
    A.nts = 2; A.ts()
    e(f"v_cvt_f32_u32 v{t0}, v{i15}")
    e(f"v_mul_f32 v{t0}, {f32(1/2048)}, v{t0}")
    e(f"v_add_f32 v{t2}, {f32(16/2048)}, v{t0}")
    e(f"v_cvt_f32_u32 v{t1}, v{vst}")
    for j in range(8):
        tt = t2 if j >> 2 else t0
        e(f"v_add_f32 v{C2+j}, {f32(float(j&3))}, v{t1}")
        e(f"v_mul_f32 v{C2+j}, v{C2+j}, v{tt}")
    for j in range(8):
        e(f"v_sin_f32 v{S2+j}, v{C2+j}")
        e(f"v_cos_f32 v{C2+j}, v{C2+j}")
    e(f"v_mul_f32 v{t0}, {f32(64.0)}, v{t0}")
    e(f"v_lshlrev_b32 v{t1}, 2, v{g}")
    e(f"v_cvt_f32_u32 v{t1}, v{t1}")
    e(f"v_mul_f32 v{TR}, v{t1}, v{t0}")
    for j in range(1, 4): e(f"v_fmamk_f32 v{TR+j}, v{t0}, {f32(float(j))}, v{TR}")
    for j in range(4):
        e(f"v_sin_f32 v{TI+j}, v{TR+j}")
        e(f"v_cos_f32 v{TR+j}, v{TR+j}")
    for cs, src in ((0, TR), (1, TI)):
        for z in range(2): e(f"v_cvt_pk_bf16_f32 v{F2[0][cs]+z}, v{src+2*z}, v{src+2*z+1}")
        for z in range(2): e(f"v_xor_b32 v{F2[0][cs]+2+z}, v{F2[0][cs]+z}, v{lm}")
        for z in range(4): e(f"v_xor_b32 v{F2[1][cs]+z}, s12, v{F2[0][cs]+z}")
    for T in range(2):
        for z in range(4): e(f"v_xor_b32 v{F2[T][2]+z}, s15, v{F2[T][1]+z}")
    e(f"v_add_u32 v{t0}, s13, v{i15}")
    e(f"v_cvt_f32_u32 v{t0}, v{t0}")
    e(f"v_mul_f32 v{t0}, {f32(1/64)}, v{t0}")
    e(f"v_lshrrev_b32 v{t1}, 1, v{g}")
    e(f"v_lshlrev_b32 v{t1}, 3, v{t1}")
    e(f"v_lshl_add_u32 v{t1}, v{g}, 2, v{t1}")
    e(f"v_cvt_f32_u32 v{t1}, v{t1}")
    e(f"v_mul_f32 v{TR}, v{t1}, v{t0}")
    for j in range(1, 8): e(f"v_fmamk_f32 v{TR+j}, v{t0}, {f32(float((j&3)+8*(j>>2)))}, v{TR}")
    for j in range(8):
        e(f"v_sin_f32 v{TI+j}, v{TR+j}")
        e(f"v_cos_f32 v{TR+j}, v{TR+j}")
    for cs, src in ((0, TR), (1, TI)):
        for z in range(4): e(f"v_cvt_pk_bf16_f32 v{F1[0][cs]+z}, v{src+2*z}, v{src+2*z+1}")
        for z in range(4): e(f"v_xor_b32 v{F1[1][cs]+z}, v{F1[0][cs]+z}, v{lm}")
    for Q in range(2):
        for z in range(4): e(f"v_xor_b32 v{F1[Q][2]+z}, s15, v{F1[Q][1]+z}")
    e(f"v_add_u32 v{t2}, {LB + 8192}, v{va}")
    e(f"v_lshlrev_b32 v{vst}, 1, v{vst}")
    e(f"v_lshl_add_u32 v{vst}, v{i15}, 7, v{vst}")
    e(f"v_and_b32 v{t0}, 1, v{g}")
    e(f"v_lshlrev_b32 v{t0}, 8, v{t0}")
    e(f"v_lshl_add_u32 v{t0}, v{i15}, 4, v{t0}")
    e(f"v_lshrrev_b32 v{t1}, 1, v{g}")
    e(f"v_lshl_add_u32 v{t0}, v{t1}, 3, v{t0}")
    e("s_lshl_b32 s14, s3, 9")
    e(f"s_add_u32 s14, s14, {LB}")
    e(f"v_add_u32 v{vw}, s14, v{t0}")
    e(f"v_add_u32 v{va}, {LB}, v{l16}")
    M = "v_mfma_f32_16x16x32_bf16"
    def mm(d, a, b, first):
        e(f"{M} {vr(d,4)}, {vr(a,4)}, {vr(b,4)}, {'0' if first else vr(d,4)}")
    def cmul(c, s, sgn):
        for p in range(8):
            e(f"v_mul_f32 v{TR+p}, v{DR+p}, v{c+p}")
            e(f"v_mul_f32 v{TI+p}, v{DI+p}, v{c+p}")
        for p in range(8):
            e(f"v_fma_f32 v{TR+p}, v{DI+p}, {'-' if sgn > 0 else ''}v{s+p}, v{TR+p}")
            e(f"v_fma_f32 v{TI+p}, v{DR+p}, {'-' if sgn < 0 else ''}v{s+p}, v{TI+p}")
        for p in range(4):
            e(f"v_cvt_pk_bf16_f32 v{ZR+p}, v{TR+2*p}, v{TR+2*p+1}")
            e(f"v_cvt_pk_bf16_f32 v{ZI+p}, v{TI+2*p}, v{TI+2*p+1}")
    A.wait_vm(tk['x'])
    assert fb[1] >= 1
    bars(1)
    A.ts()
    for Q in range(2):
        for c in range(2):
            for T in range(2):
                tk['x', c, T, Q] = e(f"ds_read_b128 {vr(XA[c][T][Q],4)}, v{t2} offset:{c*4096+Q*2048+T*256}")
    e(f"s_cmp_lt_u32 s5, {OOB}")
    e("s_cbranch_scc1 fft_nz")
    e("s_waitcnt lgkmcnt(0)")
    for T in range(2):
        for Q in range(2):
            for z in range(4): e(f"v_mov_b32 v{XA[1][T][Q]+z}, 0")
    A.label("fft_nz")
    for Q in range(2):
        for T in range(2):
            A.wait_ld(tk['x', 0, T, Q])
            mm(DR+4*T, XA[0][T][Q], F1[Q][0], Q == 0)
            mm(DI+4*T, XA[0][T][Q], F1[Q][2], Q == 0)
        for T in range(2):
            A.wait_ld(tk['x', 1, T, Q])
            mm(DR+4*T, XA[1][T][Q], F1[Q][1], False)
            mm(DI+4*T, XA[1][T][Q], F1[Q][0], False)
    bars(2)
    A.ts()
    cmul(C1, S1, -1)
    for T in range(2):
        mm(DR+4*T, F2[T][0], ZR, True)
        mm(DI+4*T, F2[T][0], ZI, True)
    for T in range(2):
        mm(DR+4*T, F2[T][1], ZI, False)
        mm(DI+4*T, F2[T][2], ZR, False)
    bars(3)
    A.wait_vm(tk['w'])
    for j in range(8):
        e(f"v_lshlrev_b32 v{WR+j}, 16, v{W[j>>2]+(j&3)}")
        e(f"v_and_b32 v{WI+j}, 0xffff0000, v{W[j>>2]+(j&3)}")
    cmul(WR, WI, +1)
    for T in range(2):
        mm(DR+4*T, ZR, F2[T][0], True)
        mm(DI+4*T, ZI, F2[T][0], True)
    for T in range(2):
        mm(DR+4*T, ZI, F2[T][2], False)
        mm(DI+4*T, ZR, F2[T][1], False)
    bars(5)
    cmul(C2, S2, +1)
    for T in range(2):
        e(f"ds_write_b64 v{vw}, {vr(ZR+2*T,2)} offset:{T*2048}")
        e(f"ds_write_b64 v{vw}, {vr(ZI+2*T,2)} offset:{4096+T*2048}")
    A.wait_all_ld()
    A.ts()
    barrier()
    A.ts()
    for Q in range(2):
        for c in range(2):
            for T in range(2):
                tk['u', c, T, Q] = e(f"ds_read_b128 {vr(XA[c][T][Q],4)}, v{va} offset:{(c*2+T)*2048+Q*1024}")
    for Q in range(2):
        for T in range(2):
            A.wait_ld(tk['u', 0, T, Q])
            mm(DR+4*T, F1[Q][0], XA[0][T][Q], Q == 0)
            mm(DI+4*T, F1[Q][1], XA[0][T][Q], Q == 0)
        for T in range(2):
            A.wait_ld(tk['u', 1, T, Q])
            mm(DR+4*T, F1[Q][2], XA[1][T][Q], False)
            mm(DI+4*T, F1[Q][0], XA[1][T][Q], False)
    for p in range(4):
        e(f"v_cvt_pk_bf16_f32 v{ZR+p}, v{DR+2*p}, v{DR+2*p+1}")
        e(f"v_cvt_pk_bf16_f32 v{ZI+p}, v{DI+2*p}, v{DI+2*p+1}")
    bars(4)
    for T in range(2):
        e(f"buffer_store_dwordx2 {vr(ZR+2*T,2)}, v{vst}, s[44:47], s8 offen offset:{T*2048}{ST}")
        e(f"buffer_store_dwordx2 {vr(ZI+2*T,2)}, v{vst}, s[44:47], s9 offen offset:{T*2048}{ST}")
    A.ts()
    for _ in range(xbar): e("s_barrier")
    A.ts_flush(kidx, "s3", wofs)
    e("s_endpgm")
    return R.n

PB = WS_END

def gemm_block(A, lane, nf, ni, epi, PD, bar_at=None, LD="", ST="", kidx=2, ROT=(7, 4), bar0=False):
    e = A.e
    R = Regs(lane + 1)
    t0, t1, t2, l16, vw2, vy, tid = [R.alloc() for _ in range(7)]
    ta = [R.alloc(), R.alloc()]
    acc = [[R.alloc(16) for u in range(2)] for h in range(2)]
    LF = [[R.alloc(4) for h in range(2)] for p in range(2)]
    GF = [[R.alloc(4) for h in range(2)] for p in range(PD)]
    XR = R.alloc(8)
    BR = R.alloc(8)
    e("s_and_b32 s4, s2, 7")
    e("s_lshr_b32 s5, s2, 3")
    e("s_and_b32 s6, s5, 3")
    e("s_lshr_b32 s7, s5, 2")
    e("s_lshl_b32 s8, s4, 2")
    e("s_add_u32 s8, s8, s6")
    e(f"v_lshrrev_b32 v{t0}, 3, v{lane}")
    e(f"v_and_b32 v{t1}, 7, v{lane}")
    e(f"v_lshlrev_b32 v{t2}, 1, v{t0}")
    e(f"v_and_b32 v{t2}, 4, v{t2}")
    e(f"v_xor_b32 v{t2}, v{t2}, v{t1}")
    e(f"v_lshlrev_b32 v{t2}, 4, v{t2}")
    e(f"v_mad_u32_u24 v{vw2}, v{t0}, 896, v{t2}" if False else f"v_mul_u32_u24 v{vw2}, 896, v{t0}")
    e(f"v_add_u32 v{vw2}, v{vw2}, v{t2}")
    e(f"v_lshl_add_u32 v{vy}, v{t0}, 12, v{t2}")
    e(f"v_lshlrev_b32 v{l16}, 4, v{lane}")
    e("s_lshl_b32 s9, s7, 7")
    e(f"s_mul_i32 s10, s3, {28*16*896}")
    e("s_add_u32 s10, s10, s9")
    e("s_mul_i32 s11, s8, 229376")
    e("s_mul_i32 s12, s3, 28672")
    e("s_add_u32 s11, s11, s12")
    e("s_add_u32 s12, s11, 114688")
    e(f"s_mul_i32 s13, s3, {7*16*4096}")
    e("s_lshl_b32 s14, s8, 7")
    e("s_add_u32 s13, s13, s14")
    e(f"s_add_u32 s13, s13, {Y1T}")
    e("s_mul_i32 s14, s7, 57344")
    e("s_mul_i32 s15, s3, 7168")
    e("s_add_u32 s14, s14, s15")
    e(f"s_add_u32 s14, s14, {IDF}")
    e("s_add_u32 s15, s14, 28672")
    e(f"s_mul_i32 s57, s3, {PD*2048}")
    e(f"s_mul_i32 s62, s6, {ROT[0]}")
    e(f"s_mul_i32 s63, s7, {ROT[1]}")
    e("s_add_u32 s62, s62, s63")
    e("s_cmp_ge_u32 s62, 28")
    e("s_cselect_b32 s63, 28, 0")
    e("s_sub_u32 s62, s62, s63")
    e("s_mul_i32 s63, s62, 14336")
    e("s_add_u32 s63, s63, s10")
    e("s_lshl_b32 s64, s62, 10")
    e("s_add_u32 s64, s64, s11")
    e("s_waitcnt lgkmcnt(0)")
    mk_srd(A, 44, 34, WS_BYTES)
    mk_srd(A, 40, 28, 1605632)
    mk_srd(A, 36, 16, 1835008)
    mk_srd(A, 48, 30, 896)
    mk_srd(A, 52, 32, 1835008)
    steps = [('i', k) for k in range(ni)] + [('f', k) for k in range(nf)]
    if epi == 'full':
        steps = [('f', k) for k in range(nf)] + [('i', k) for k in range(ni)]
    N = len(steps)
    tok = {}
    def issue(n):
        if n >= N: return
        kind, k = steps[n]
        sl = n % PD
        for hf in range(2):
            e(f"s_add_u32 m0, s57, {sl*2048 + hf*1024}")
            if kind == 'f':
                if hf: e(f"s_add_u32 s58, s63, {8*896}")
                e(f"buffer_load_dwordx4 v{vw2}, s[40:43], s{58 if hf else 63} offen lds")
            else:
                e(f"s_add_u32 s58, s13, {(k*16+hf*8)*4096}")
                e(f"buffer_load_dwordx4 v{vy}, s[44:47], s58 offen lds{LD}")
        if kind == 'f':
            e("s_add_u32 s58, s64, 114688")
            for hf in range(2):
                tok[n] = e(f"buffer_load_dwordx4 {vr(GF[sl][hf],4)}, v{l16}, s[44:47], s{58 if hf else 64} offen{LD}")
            e("s_add_u32 s62, s62, 1")
            e("s_add_u32 s63, s63, 14336")
            e("s_add_u32 s64, s64, 1024")
            e("s_cmp_eq_u32 s62, 28")
            e("s_cselect_b32 s62, 0, s62")
            e("s_cselect_b32 s63, s10, s63")
            e("s_cselect_b32 s64, s11, s64")
            return
        for hf in range(2):
            sb = (11 + hf) if kind == 'f' else (14 + hf)
            if k % 4 == 0 and k:
                e(f"s_add_u32 s{sb}, s{sb}, 4096")
            tok[n] = e(f"buffer_load_dwordx4 {vr(GF[sl][hf],4)}, v{l16}, s[44:47], s{sb} offen offset:{(k%4)*1024}{LD}")
    if bar0: e("s_barrier")
    if epi == 'final4':
        PR = [[R.alloc(8) for u in range(2)] for h in range(2)]
        e("s_lshl_b32 s60, s3, 5")
        e("s_add_u32 s60, s60, s8")
        e("s_mul_i32 s60, s60, 57344")
        e("s_lshl_b32 s61, s7, 12")
        e("s_add_u32 s60, s60, s61")
        e(f"s_add_u32 s60, s60, {PB}")
        e("s_add_u32 s61, s60, 28672")
        for u in range(2):
            for h in range(2):
                for qq in range(2):
                    tok['p', h, u] = e(f"buffer_load_dwordx4 {vr(PR[h][u]+4*qq,4)}, v{l16}, s[44:47], s{60+u} offen offset:{h*2048+qq*1024}{LD}")
    for n in range(PD):
        issue(n)
    A.nts = 2; A.ts()
    e(f"v_and_b32 v{tid}, 255, v0")
    e(f"v_lshrrev_b32 v{t0}, 2, v{tid}")
    e(f"v_and_b32 v{t1}, 3, v{tid}")
    e(f"v_mul_u32_u24 v{t2}, 28672, v{t0}")
    e(f"v_lshl_add_u32 v{t2}, v{t1}, 5, v{t2}")
    e("s_mul_i32 s59, s8, 896")
    e("s_add_u32 s59, s59, s9")
    e(f"s_add_u32 s60, s59, {PB}")
    e(f"v_mul_u32_u24 v{tid}, 272, v{t0}")
    e(f"v_lshl_add_u32 v{tid}, v{t1}, 6, v{tid}")
    e(f"v_lshlrev_b32 v{t1}, 5, v{t1}")
    def epi_loads():
        for hf in range(2):
            if epi == 'final':
                tok['x'] = e(f"buffer_load_dwordx4 {vr(XR+4*hf,4)}, v{t2}, s[44:47], s60 offen offset:{hf*16}{LD}")
            else:
                e(f"buffer_load_dwordx4 {vr(XR+4*hf,4)}, v{t2}, s[36:39], s59 offen offset:{hf*16}")
                tok['x'] = e(f"buffer_load_dwordx4 {vr(BR+4*hf,4)}, v{t1}, s[48:51], s9 offen offset:{hf*16}")
    e(f"v_bfe_u32 v{t0}, v{lane}, 2, 2")
    e(f"v_lshrrev_b32 v{ta[1]}, 5, v{lane}")
    e(f"v_lshl_add_u32 v{t0}, v{ta[1]}, 2, v{t0}")
    e(f"v_lshlrev_b32 v{t0}, 7, v{t0}")
    e(f"v_bfe_u32 v{ta[1]}, v{lane}, 3, 1")
    e(f"v_lshl_add_u32 v{t0}, v{ta[1]}, 6, v{t0}")
    e(f"v_bfe_u32 v{ta[1]}, v{lane}, 4, 1")
    e(f"v_lshl_add_u32 v{t0}, v{ta[1]}, 5, v{t0}")
    e(f"v_and_b32 v{ta[1]}, 3, v{lane}")
    e(f"v_lshl_add_u32 v{t0}, v{ta[1]}, 3, v{t0}")
    e(f"v_add_u32 v{ta[0]}, s57, v{t0}")
    e(f"v_xor_b32 v{ta[1]}, 64, v{ta[0]}")
    rt = {}
    def rd(n):
        if n >= N: return
        A.wait_vm(tok[n])
        sl = n % PD
        for h in range(2):
            f = LF[n & 1][h]
            e(f"ds_read_b64_tr_b16 {vr(f,2)}, v{ta[h]} offset:{sl*2048}")
            rt[n] = e(f"ds_read_b64_tr_b16 {vr(f+2,2)}, v{ta[h]} offset:{sl*2048+1024}")
    if epi == 'final4':
        for u in range(2):
            for h in range(2):
                A.wait_vm(tok['p', h, u])
                for j in range(8):
                    e(f"v_lshlrev_b32 v{acc[h][u]+2*j}, 16, v{PR[h][u]+j}")
                    e(f"v_and_b32 v{acc[h][u]+2*j+1}, 0xffff0000, v{PR[h][u]+j}")
    rd(0)
    for n in range(N):
        kind, k = steps[n]
        A.wait_ld(rt[n])
        if n % 7 == 0: A.ts()
        rd(n + 1)
        L = LF[n & 1]; G = GF[n % PD]
        for h in range(2):
            for u in range(2):
                a, b = (L[h], G[u]) if kind == 'f' else (G[h], L[u])
                c = '0' if n == 0 and epi != 'final4' else vr(acc[h][u], 16)
                e(f"v_mfma_f32_32x32x16_bf16 {vr(acc[h][u],16)}, {vr(a,4)}, {vr(b,4)}, {c}")
        issue(n + PD)
        if n == max(N - PD, 0): epi_loads()
        if bar_at is not None and n == bar_at: e("s_barrier")
    e(f"v_and_b32 v{t0}, 31, v{lane}")
    e(f"v_mul_u32_u24 v{t0}, 272, v{t0}")
    e(f"v_lshrrev_b32 v{t1}, 5, v{lane}")
    e(f"v_lshl_add_u32 v{t0}, v{t1}, 4, v{t0}")
    e(f"s_mul_i32 s61, s3, {64*272}")
    e(f"v_add_u32 v{t0}, s61, v{t0}")
    A.ts()
    e("s_barrier")
    A.ts()
    for h in range(2):
        for u in range(2):
            for q in range(4):
                e(f"ds_write_b128 v{t0}, {vr(acc[h][u]+4*q,4)} offset:{u*32*272 + h*128 + q*32}")
    A.wait_all_ld()
    e("s_barrier")
    A.ts()
    flat = [acc[0][0], acc[0][1], acc[1][0], acc[1][1]]
    tkk = []
    for q in range(4):
        for w in range(4):
            tkk.append(e(f"ds_read_b128 {vr(flat[w]+4*q,4)}, v{tid} offset:{w*64*272 + q*16}"))
    A.wait_vm(tok['x'])
    O = LF[0][0]
    assert LF[0][1] == O + 4
    for q in range(4):
        A.wait_ld(tkk[4*q+3])
        for p in range(2):
            a = [f + 4*q + 2*p for f in flat]
            e(f"v_pk_add_f32 {vr(a[0],2)}, {vr(a[0],2)}, {vr(a[1],2)}")
            e(f"v_pk_add_f32 {vr(a[2],2)}, {vr(a[2],2)}, {vr(a[3],2)}")
            xr = XR + 2*q + p
            e(f"v_lshlrev_b32 v{a[1]}, 16, v{xr}")
            e(f"v_and_b32 v{a[1]+1}, 0xffff0000, v{xr}")
            e(f"v_pk_add_f32 {vr(a[0],2)}, {vr(a[0],2)}, {vr(a[2],2)}")
            if epi != 'final':
                br = BR + 2*q + p
                e(f"v_lshlrev_b32 v{a[3]}, 16, v{br}")
                e(f"v_and_b32 v{a[3]+1}, 0xffff0000, v{br}")
                e(f"v_pk_add_f32 {vr(a[0],2)}, {vr(a[0],2)}, {vr(a[3],2)}")
            e(f"v_pk_add_f32 {vr(a[0],2)}, {vr(a[0],2)}, {vr(a[1],2)}")
            e(f"v_cvt_pk_bf16_f32 v{O+2*q+p}, v{a[0]}, v{a[0]+1}")
    for hf in range(2):
        if epi == 'part':
            e(f"buffer_store_dwordx4 {vr(O+4*hf,4)}, v{t2}, s[44:47], s60 offen offset:{hf*16}{ST}")
        else:
            e(f"buffer_store_dwordx4 {vr(O+4*hf,4)}, v{t2}, s[52:55], s59 offen offset:{hf*16}")
    A.ts_flush(kidx)
    e("s_endpgm")
    return R.n

def gemm4(A, lane, PC=3, PF=6, LD="", ST="", kidx=1, ROT=(1, 2), bar_c=0):
    e = A.e
    R = Regs(lane + 1)
    t0, t1, t2, l16, vw2 = [R.alloc() for _ in range(5)]
    ta = [R.alloc() for _ in range(4)]
    acc = [R.alloc(16) for b in range(4)]
    LF = [R.alloc(4) for _ in range(8)]
    GF = [[R.alloc(4) for k in range(4)] for c in range(7)]
    e("s_bfe_u32 s4, s2, 0x20001")
    e("s_and_b32 s5, s2, 1")
    e("s_bfe_u32 s6, s2, 0x30003")
    e("s_lshr_b32 s7, s2, 6")
    e("s_lshl_b32 s8, s5, 3")
    e("s_add_u32 s8, s8, s6")
    e("s_lshl_b32 s8, s8, 2")
    e("s_add_u32 s8, s8, s3")
    e(f"v_lshrrev_b32 v{t0}, 3, v{lane}")
    e(f"v_and_b32 v{t1}, 7, v{lane}")
    e(f"v_lshlrev_b32 v{t2}, 1, v{t0}")
    e(f"v_and_b32 v{t2}, 4, v{t2}")
    e(f"v_xor_b32 v{t2}, v{t2}, v{t1}")
    e(f"v_lshlrev_b32 v{t2}, 4, v{t2}")
    e(f"v_mul_u32_u24 v{vw2}, 896, v{t0}")
    e(f"v_add_u32 v{vw2}, v{vw2}, v{t2}")
    e(f"v_lshlrev_b32 v{l16}, 4, v{lane}")
    e("s_lshl_b32 s9, s7, 2")
    e("s_min_u32 s9, s9, 10")
    e(f"s_mul_i32 s10, s4, {448*896}")
    e(f"s_mul_i32 s11, s3, {16*896}")
    e("s_add_u32 s10, s10, s11")
    e("s_lshl_b32 s11, s9, 6")
    e("s_add_u32 s10, s10, s11")
    e("s_mul_i32 s11, s8, 114688")
    e("s_mul_i32 s12, s4, 28672")
    e("s_add_u32 s11, s11, s12")
    e("s_lshl_b32 s57, s3, 12")
    e(f"s_mul_i32 s62, s6, {ROT[0]}")
    e(f"s_mul_i32 s63, s7, {ROT[1]}")
    e("s_add_u32 s62, s62, s63")
    for _ in range((7 * ROT[0] + 3 * ROT[1]) // 7):
        e("s_cmp_ge_u32 s62, 7")
        e("s_cselect_b32 s63, 7, 0")
        e("s_sub_u32 s62, s62, s63")
    e(f"s_mul_i32 s63, s62, {64*896}")
    e("s_add_u32 s63, s63, s10")
    e("s_lshl_b32 s64, s62, 12")
    e("s_add_u32 s64, s64, s11")
    e("s_waitcnt lgkmcnt(0)")
    mk_srd(A, 44, 34, WS_BYTES)
    mk_srd(A, 40, 28, 1605632)
    dt, ht = {}, {}
    def issue(c):
        if c >= 7: return []
        F = []
        def dma(ch, rh):
            e(f"s_add_u32 m0, s57, {c*16384 + ch*2048 + rh*1024}")
            if ch or rh: e(f"s_add_u32 s58, s63, {rh*7168 + ch*128}")
            dt[c] = e(f"buffer_load_dwordx4 v{vw2}, s[40:43], s{58 if ch or rh else 63} offen lds")
        def hl(k):
            ht[c, k] = e(f"buffer_load_dwordx4 {vr(GF[c][k],4)}, v{l16}, s[44:47], s64 offen offset:{k*1024}{LD}")
            if k == 3:
                e("s_add_u32 s62, s62, 1")
                e(f"s_add_u32 s63, s63, {64*896}")
                e("s_add_u32 s64, s64, 4096")
                e("s_cmp_eq_u32 s62, 7")
                e("s_cselect_b32 s62, 0, s62")
                e("s_cselect_b32 s63, s10, s63")
                e("s_cselect_b32 s64, s11, s64")
        return [(lambda ch=ch, rh=rh: dma(ch, rh)) for rh in range(2) for ch in range(2)] + [(lambda k=k: hl(k)) for k in range(4)]
    for c in range(PC):
        for f in issue(c): f()
    A.nts = 2; A.ts()
    e("s_lshl_b32 s60, s4, 6")
    e("s_add_u32 s60, s60, s8")
    e("s_mul_i32 s60, s60, 14")
    e("s_add_u32 s60, s60, s9")
    e("s_lshl_b32 s60, s60, 11")
    e(f"s_add_u32 s60, s60, {PB}")
    e("s_add_u32 s61, s60, 4096")
    e(f"v_bfe_u32 v{t0}, v{lane}, 2, 2")
    e(f"v_lshrrev_b32 v{t1}, 5, v{lane}")
    e(f"v_lshl_add_u32 v{t0}, v{t1}, 2, v{t0}")
    e(f"v_lshlrev_b32 v{t0}, 7, v{t0}")
    e(f"v_bfe_u32 v{t1}, v{lane}, 3, 1")
    e(f"v_lshl_add_u32 v{t0}, v{t1}, 6, v{t0}")
    e(f"v_bfe_u32 v{t1}, v{lane}, 4, 1")
    e(f"v_lshl_add_u32 v{t0}, v{t1}, 5, v{t0}")
    e(f"v_and_b32 v{t1}, 3, v{lane}")
    e(f"v_lshl_add_u32 v{ta[0]}, v{t1}, 3, v{t0}")
    e(f"v_xor_b32 v{ta[1]}, 64, v{ta[0]}")
    e(f"v_add_u32 v{ta[2]}, 65536, v{ta[0]}")
    e(f"v_add_u32 v{ta[3]}, 65536, v{ta[1]}")
    if bar_c: e("s_barrier")
    rt = {}
    pend = []
    def rd(n):
        if n >= 112: return
        c, ks, b = n // 16, (n // 4) % 4, n % 4
        if n % 16 == 0:
            A.wait_vm(dt[c]); e("s_barrier"); A.ts()
            pend.extend(issue(c + PC))
        o = (c % 4) * 16384 + ks * 4096 + (b >> 1) * 2048
        f = LF[n % 8]; a = ta[(b & 1) + 2 * (c // 4)]
        e(f"ds_read_b64_tr_b16 {vr(f,2)}, v{a} offset:{o}")
        rt[n] = e(f"ds_read_b64_tr_b16 {vr(f+2,2)}, v{a} offset:{o+1024}")
    for n in range(PF): rd(n)
    for n in range(112):
        c, ks, b = n // 16, (n // 4) % 4, n % 4
        rd(n + PF)
        if n % 2 == 0: A.wait_ld(rt[n + 1])
        if b == 0: A.wait_vm(ht[c, ks])
        e(f"v_mfma_f32_32x32x16_bf16 {vr(acc[b],16)}, {vr(LF[n%8],4)}, {vr(GF[c][ks],4)}, {'0' if n < 4 else vr(acc[b],16)}")
        if pend: pend.pop(0)()
    A.ts()
    e("s_cmp_eq_u32 s7, 3")
    e("s_cbranch_scc1 g4_skip")
    for b in range(4):
        if b == 2: A.label("g4_skip"); e("s_nop 7"); e("s_nop 7")
        for qq in range(2):
            O = GF[b >> 1][2 * (b & 1) + qq]
            for j in range(4):
                e(f"v_cvt_pk_bf16_f32 v{O+j}, v{acc[b]+8*qq+2*j}, v{acc[b]+8*qq+2*j+1}")
            e(f"buffer_store_dwordx4 {vr(O,4)}, v{l16}, s[44:47], s{60 + (b >> 1)} offen offset:{(b&1)*2048 + qq*1024}{ST}")
    A.ts_flush(kidx)
    e("s_endpgm")
    return R.n

def k3_block(A, lane, LD="", kidx=2, NG0=6, SLP=2, EB=0, D2=0, ST3=""):
    e = A.e
    R = Regs(lane + 1)
    t0, t1, t2, t3, l16, vy, vx, vb, hh, dl, vk, xw = [R.alloc() for _ in range(12)]
    ta = [R.alloc(), R.alloc()]
    bs = R.alloc(4); cs = R.alloc(4); sn = R.alloc(4)
    acc = [R.alloc(16) for u in range(2)]
    Rs = R.n
    LF = [[R.alloc(4) for u in range(2)] for p in range(3)]
    G = [R.alloc(4) for _ in range(14)]
    nv = R.n; R.n = Rs
    P = [R.alloc(8) for kq in range(4)]
    X = R.alloc(8); B2 = R.alloc(8); S = R.alloc(16); T = R.alloc(16)
    nv = max(nv, R.n)
    e("s_and_b32 s4, s2, 7")
    e("s_lshr_b32 s5, s2, 3")
    e("s_and_b32 s6, s5, 3")
    e("s_lshr_b32 s7, s5, 2")
    e("s_lshl_b32 s8, s4, 2")
    e("s_add_u32 s8, s8, s6")
    e("s_and_b32 s4, s3, 1")
    e("s_bfe_u32 s5, s3, 0x10001")
    e("s_lshl_b32 s9, s7, 1")
    e("s_add_u32 s9, s9, s4")
    e(f"v_and_b32 v{t0}, 31, v{lane}")
    e(f"v_lshrrev_b32 v{hh}, 5, v{lane}")
    e(f"v_lshlrev_b32 v{l16}, 4, v{lane}")
    e("s_cmp_ge_u32 s3, 4")
    e("s_cbranch_scc1 k3_epi")
    e(f"s_mov_b32 s15, {f32(1.0/448)}")
    e(f"s_mov_b32 s60, {f32(-448.0)}")
    e("s_lshl_b32 s10, s9, 5")
    e("s_mul_i32 s11, s5, 112")
    e(f"v_add_u32 v{t2}, s10, v{t0}")
    e(f"v_cvt_f32_u32 v{t2}, v{t2}")
    e(f"v_lshl_add_u32 v{t3}, v{hh}, 1, s11")
    e(f"v_cmp_eq_u32 vcc, 0, v{t3}")
    e(f"v_cvt_f32_u32 v{t3}, v{t3}")
    for z, off in enumerate((0.0, 1.0, 4.0, 5.0)):
        e(f"v_add_f32 v{bs+z}, {f32(off)}, v{t3}")
    for z in range(4): e(f"v_mul_f32 v{bs+z}, v{bs+z}, v{t2}")
    e(f"v_mul_f32 v{dl}, {f32(8.0)}, v{t2}")
    Z = [(bs + z, cs + z) for z in range(4)] + [(dl, t1)]
    for r, t in Z: e(f"v_mul_f32 v{t}, s15, v{r}")
    for r, t in Z: e(f"v_floor_f32 v{t}, v{t}")
    for r, t in Z: e(f"v_fma_f32 v{r}, v{t}, s60, v{r}")
    for r, t in Z: e(f"v_mul_f32 v{r}, s15, v{r}")
    e(f"v_lshlrev_b32 v{vk}, 31, v{lane}")
    e(f"v_or_b32 v{vk}, 0x3f003f00, v{vk}")
    def gen(n):
        for z in range(4):
            if n: e(f"v_fmamk_f32 v{cs+z}, v{dl}, {f32(float(n))}, v{bs+z}")
        for z in range(4):
            e(f"v_sin_f32 v{sn+z}, v{(cs if n else bs)+z}")
            e(f"v_cos_f32 v{cs+z}, v{(cs if n else bs)+z}")
        for z in range(4): e(f"v_cvt_pk_bf16_f32 v{G[n]+z}, v{cs+z}, -v{sn+z}")
        if n == 0: e(f"v_cndmask_b32 v{G[0]}, v{G[0]}, v{vk}, vcc")
    e(f"v_lshrrev_b32 v{t0}, 3, v{lane}")
    e(f"v_and_b32 v{t1}, 7, v{lane}")
    e(f"v_lshlrev_b32 v{t2}, 1, v{t0}")
    e(f"v_and_b32 v{t2}, 4, v{t2}")
    e(f"v_xor_b32 v{t2}, v{t2}, v{t1}")
    e(f"v_lshlrev_b32 v{t2}, 4, v{t2}")
    e(f"v_lshl_add_u32 v{vy}, v{t0}, 12, v{t2}")
    e(f"s_mul_i32 s13, s3, {7*16*4096}")
    e("s_lshl_b32 s14, s8, 7")
    e("s_add_u32 s13, s13, s14")
    e(f"s_add_u32 s13, s13, {Y1T}")
    e(f"s_mul_i32 s57, s3, {7*2048}")
    for n in range(NG0): gen(n)
    e("s_waitcnt lgkmcnt(0)")
    mk_srd(A, 44, 34, WS_BYTES)
    for i in range(14):
        e(f"s_add_u32 m0, s57, {i*1024}")
        if i: e(f"s_add_u32 s13, s13, {8*4096}")
        ty = e(f"buffer_load_dwordx4 v{vy}, s[44:47], s13 offen lds{LD}")
    A.nts = 2; A.ts()
    for n in range(NG0, 14): gen(n)
    e(f"v_bfe_u32 v{t0}, v{lane}, 2, 2")
    e(f"v_lshl_add_u32 v{t0}, v{hh}, 2, v{t0}")
    e(f"v_lshlrev_b32 v{t0}, 7, v{t0}")
    e(f"v_bfe_u32 v{t1}, v{lane}, 3, 1")
    e(f"v_lshl_add_u32 v{t0}, v{t1}, 6, v{t0}")
    e(f"v_bfe_u32 v{t1}, v{lane}, 4, 1")
    e(f"v_lshl_add_u32 v{t0}, v{t1}, 5, v{t0}")
    e(f"v_and_b32 v{t1}, 3, v{lane}")
    e(f"v_lshl_add_u32 v{t0}, v{t1}, 3, v{t0}")
    e("s_mul_i32 s12, s5, 28672")
    e(f"v_add_u32 v{ta[0]}, s12, v{t0}")
    e(f"v_xor_b32 v{ta[1]}, 64, v{ta[0]}")
    e("s_lshl_b32 s12, s3, 13")
    e("s_add_u32 s12, s12, 57344")
    e(f"v_add_u32 v{xw}, s12, v{l16}")
    A.ts()
    A.wait_vm(ty)
    e("s_barrier")
    A.ts()
    rt = {}
    def rd(n):
        if n >= 14: return
        for u in range(2):
            f = LF[n % 3][u]
            e(f"ds_read_b64_tr_b16 {vr(f,2)}, v{ta[u]} offset:{n*2048}")
            rt[n] = e(f"ds_read_b64_tr_b16 {vr(f+2,2)}, v{ta[u]} offset:{n*2048+1024}")
    rd(0); rd(1)
    for n in range(14):
        rd(n + 2)
        A.wait_ld(rt[n])
        for u in range(2):
            e(f"v_mfma_f32_32x32x16_bf16 {vr(acc[u],16)}, {vr(G[n],4)}, {vr(LF[n%3][u],4)}, {'0' if n == 0 else vr(acc[u],16)}")
    A.ts()
    for u in range(2):
        for q in range(4): e(f"ds_write_b128 v{xw}, {vr(acc[u]+4*q,4)} offset:{u*4096+q*1024}")
    A.wait_all_ld()
    e("s_barrier")
    A.ts_flush(kidx)
    e("s_endpgm")
    A.label("k3_epi"); A.reset_counts()
    e(f"v_mul_u32_u24 v{vx}, 28672, v{t0}")
    e(f"v_lshlrev_b32 v{vb}, 4, v{hh}")
    e(f"v_add_u32 v{vx}, v{vx}, v{vb}")
    e("s_lshl_b32 s61, s8, 1")
    e("s_add_u32 s61, s61, s5")
    e("s_mul_i32 s61, s61, 14")
    e("s_add_u32 s61, s61, s9")
    e("s_lshl_b32 s61, s61, 11")
    e(f"s_add_u32 s61, s61, {PB}")
    e("s_lshl_b32 s10, s9, 6")
    e("s_lshl_b32 s59, s5, 10")
    e("s_add_u32 s59, s59, s8")
    e("s_mul_i32 s59, s59, 896")
    e("s_add_u32 s59, s59, s10")
    e("s_lshl_b32 s12, s4, 13")
    e("s_lshl_b32 s13, s5, 12")
    e("s_add_u32 s12, s12, s13")
    e("s_add_u32 s12, s12, 57344")
    e(f"v_add_u32 v{xw}, s12, v{l16}")
    e(f"s_mov_b32 s14, {f32(2.0 / (2048 * 448))}")
    e("s_mov_b32 s15, 0xffff0000")
    e("s_waitcnt lgkmcnt(0)")
    mk_srd(A, 44, 34, WS_BYTES)
    mk_srd(A, 36, 16, 1835008)
    mk_srd(A, 48, 30, 896)
    mk_srd(A, 52, 32, 1835008)
    if SLP: e(f"s_sleep {SLP}")
    tok = {}
    for qq in range(2):
        e(f"buffer_load_dwordx4 {vr(B2+4*qq,4)}, v{vb}, s[48:51], s10 offen offset:{qq*32}")
        tok['x'] = e(f"buffer_load_dwordx4 {vr(X+4*qq,4)}, v{vx}, s[36:39], s59 offen offset:{qq*32}")
    for kq in range(4):
        if kq: e(f"s_add_u32 s61, s61, {64*28672}")
        for qq in range(2):
            tok[kq] = e(f"buffer_load_dwordx4 {vr(P[kq]+4*qq,4)}, v{l16}, s[44:47], s61 offen offset:{qq*1024}{LD}")
    A.nts = 2; A.ts()
    e("s_mov_b32 s62, 0x3f80")
    e("s_mov_b32 s63, 0x3f800000")
    if EB == 0: e("s_barrier"); A.ts()
    A.wait_vm(tok['x'])
    for r in (X, B2):
        for qq in range(2):
            for j in range(2): e(f"v_permlane32_swap_b32 v{r+4*qq+j}, v{r+4*qq+2+j}")
    def unp(src, first):
        if D2 and not first:
            for j in range(8):
                e(f"v_dot2c_f32_bf16 v{S+2*j}, s62, v{src+j}")
                e(f"v_dot2c_f32_bf16 v{S+2*j+1}, s63, v{src+j}")
            return
        for j in range(8):
            d = S if first else T
            e(f"v_lshlrev_b32 v{d+2*j}, 16, v{src+j}")
            e(f"v_and_b32 v{d+2*j+1}, s15, v{src+j}")
        if not first:
            for j in range(16): e(f"v_add_f32 v{S+j}, v{S+j}, v{T+j}")
    unp(X, True)
    unp(B2, False)
    for kq in range(4):
        if EB == kq + 1: e("s_barrier"); A.ts()
        A.wait_vm(tok[kq])
        unp(P[kq], False)
    if EB == 5: e("s_barrier"); A.ts()
    A.ts()
    e("s_barrier")
    A.ts()
    rk = {}
    for q in range(4):
        for k in range(2): rk[q] = e(f"ds_read_b128 {vr(acc[k]+4*q,4)}, v{xw} offset:{k*16384+q*1024}")
    for qq in range(2):
        for q in (2 * qq, 2 * qq + 1):
            A.wait_ld(rk[q])
            for k in range(2):
                for j in range(4 * q, 4 * q + 4): e(f"v_fma_f32 v{S+j}, v{acc[k]+j}, s14, v{S+j}")
        for j in range(4 * qq, 4 * qq + 4): e(f"v_cvt_pk_bf16_f32 v{X+j}, v{S+2*j}, v{S+2*j+1}")
        for j in range(2): e(f"v_permlane32_swap_b32 v{X+4*qq+j}, v{X+4*qq+2+j}")
        e(f"buffer_store_dwordx4 {vr(X+4*qq,4)}, v{vx}, s[52:55], s59 offen offset:{qq*32}{ST3}")
    A.ts_flush(kidx)
    e("s_endpgm")
    return nv

def prolog(A, name, nwg, vd):
    header(A, name)
    A.e(f"s_cmp_ge_u32 s2, {nwg}")
    A.e(f"s_cbranch_scc1 {name}_end")
    load_args(A)
    code_pf(A, name, vd)
    A.nts = 0; A.ts(True); A.ts()
    A.e("v_lshrrev_b32 v2, 6, v0")
    A.e("v_and_b32 v1, 63, v0")
    A.e("v_readfirstlane_b32 s3, v2")
    A.e("s_nop 3")

def epilog(A, name):
    A.label(f"{name}_end")
    A.e("s_endpgm")

def k2_warm(A, WM):
    e = A.e
    A.label("k2_warm")
    e("s_cmp_lt_u32 s2, 232")
    e("s_cbranch_scc1 k2_kernel_end")
    e("s_and_b32 s4, s2, 7")
    e("s_mul_i32 s4, s4, 3584")
    e("s_sub_u32 s5, s2, 232")
    e("s_lshr_b32 s5, s5, 3")
    e("s_lshl_b32 s5, s5, 2")
    e("s_add_u32 s5, s5, s3")
    e("s_sub_u32 s5, s5, 4")
    e(f"s_mul_i32 s5, s5, {6*28672}")
    e("s_add_u32 s5, s5, s4")
    e("v_and_b32 v2, 31, v1")
    e("v_min_u32 v2, 27, v2")
    e("v_lshlrev_b32 v2, 7, v2")
    e("v_lshrrev_b32 v3, 5, v1")
    e("v_mul_u32_u24 v3, 28672, v3")
    e("v_add3_u32 v2, v2, v3, s5")
    e(f"v_add_u32 v3, {2*28672}, v2")
    e(f"v_add_u32 v4, {4*28672}, v2")
    e("v_mul_u32_u24 v5, 28672, v1")
    e("v_add_u32 v5, s4, v5")
    e("v_lshlrev_b32 v6, 7, v1")
    e("s_waitcnt lgkmcnt(0)")
    mk_srd(A, 36, 16, 1835008)
    mk_srd(A, 48, 30, 896)
    mk_srd(A, 52, 32, 1835008)
    if WM & 1:
        e("buffer_load_dword v5, v5, s[52:55], 0 offen")
        e("buffer_load_dword v6, v6, s[48:51], 0 offen")
    if WM & 2:
        for r in (2, 3, 4): e(f"buffer_load_dword v{r}, v{r}, s[36:39], 0 offen")
    e("s_endpgm")
```

```python
import sys
from asmlib import *
from k1 import *
from k2 import *

def build(mode="v3", PD=12, bar_at=17, LD="", ST=" sc0 sc1", dbg=0, ra=7, rd=4, ST1=None, NX0=7, NQ1=1, PFW2=1, prio=1, PRIO=3, HPK=0, cpf=1, GS=0, XD=2, PC=2, PF=6, r1=0, r2=0, fb=1010130, STF=None, b0=0, NG0=4, SLP=2, MS=0, HS=0, NH1=14, HP2=3, BP=14, EB=0, D2=0, ST3="", WM=0):
    fb = [int(c) for c in str(fb)[1:]]
    A = Asm()
    A.dbg = bool(dbg); A.cpf = cpf
    L = []
    K = []
    A.raw('.amdgcn_target "amdgcn-amd-amdhsa--gfx950"\n.text')
    nv = gen_k1(A, "k1_kernel", ST if ST1 is None else ST1, NX0, NQ1, PFW2, PRIO, HPK, GS, XD, MS, HS, NH1, HP2, BP)
    assert nv <= 251; nv = 252
    L.append(("k1_kernel", 256, 512, K1_LDS)); K.append(kd("k1_kernel", nv, 102))
    if mode == "v3":
        gl = 114688
        prolog(A, "k2_kernel", 256, 231)
        A.e("s_cmp_ge_u32 s3, 4")
        A.e("s_cbranch_scc1 k2_fft")
        nv = gemm4(A, 1, PC, PF, LD, ST, 1, (r1, r2), b0)
        A.label("k2_fft"); A.reset_counts()
        A.e("s_cmp_ge_u32 s2, 225")
        A.e("s_cbranch_scc1 k2_warm" if WM else "s_cbranch_scc1 k2_kernel_end")
        A.e("s_sub_u32 s3, s3, 4")
        if prio: A.e("s_setprio 3")
        nv = max(nv, fft_block(A, 1, gl, lambda: A.e("s_barrier"), LD, ST if STF is None else STF, 1, 4, False, 6 + b0 - sum(fb), fb))
        if WM: A.e("s_endpgm"); k2_warm(A, WM)
        epilog(A, "k2_kernel"); assert nv <= 231; nv = 232
        L.append(("k2_kernel", 256, 512, gl + 16384)); K.append(kd("k2_kernel", nv, 102))
        prolog(A, "k3_kernel", 224, 143)
        nv = k3_block(A, 1, LD, 2, NG0, SLP, EB, D2, ST3)
        epilog(A, "k3_kernel"); assert nv <= 143; nv = 144
        A.raw("code_end:")
        L.append(("k3_kernel", 224, 512, 57344 + 32768)); K.append(kd("k3_kernel", nv, 102))
    else:
        gl = max(PD*8192, 69632)
        prolog(A, "k2_kernel", 225, 207)
        A.e("s_cmp_ge_u32 s3, 4")
        A.e("s_cbranch_scc1 k2_fft")
        A.e("s_cmp_ge_u32 s2, 224")
        A.e("s_cbranch_scc1 k2_kernel_end")
        nv = gemm_block(A, 1, 28, 0, 'part', PD, bar_at, LD, ST, 1, (ra, rd), not prio)
        A.label("k2_fft"); A.reset_counts()
        A.e("s_sub_u32 s3, s3, 4")
        if prio: A.e("s_setprio 3")
        nv = max(nv, fft_block(A, 1, gl, lambda: A.e("s_barrier"), LD, ST, 1, 4, not prio))
        epilog(A, "k2_kernel"); assert nv <= 207; nv = 208
        L.append(("k2_kernel", 225, 512, gl + 8192)); K.append(kd("k2_kernel", nv, 102))
        prolog(A, "k3_kernel", 224, 167)
        nv = gemm_block(A, 1, 0, 7, 'final', 7, None, LD, ST)
        epilog(A, "k3_kernel"); assert nv <= 167; nv = 168
        A.raw("code_end:")
        L.append(("k3_kernel", 224, 256, 69632)); K.append(kd("k3_kernel", nv, 102))
    hdr = "".join(f"; @launch kernel={n} grid=({g},1,1) block=({b},1,1) lds={l}\n" for n, g, b, l in L)
    return hdr + A.text() + '.section .rodata,"a"\n' + "".join(K)

if __name__ == "__main__":
    out = sys.argv[1]
    kw = {}
    for a in sys.argv[2:]:
        k, v = a.split("=")
        kw[k] = int(v) if v.lstrip("-").isdigit() else v.replace("_", " ")
    open(out, "w").write(build(**kw))
```

```python
from asmlib import *
from k1 import *

def fft_block(A, lane, LB, barrier, LD="", ST="", kidx=1, wofs=0, bar0=False, xbar=0, fb=(0,0,0,0)):
    def bars(i):
        for _ in range(fb[i]): A.e("s_barrier")
    e = A.e
    R = Regs(lane + 1)
    i15, g, l16, va, t0, t1, t2, vst, vw = [R.alloc() for _ in range(9)]
    XA = [[[R.alloc(4) for Q in range(2)] for T in range(2)] for c in range(2)]
    F1 = [[R.alloc(4) for cs in range(3)] for Q in range(2)]
    F2 = [[R.alloc(4) for cs in range(3)] for T in range(2)]
    W = [R.alloc(4) for T in range(2)]
    WR = R.alloc(8); WI = R.alloc(8)
    C1 = R.alloc(8); S1 = R.alloc(8); C2 = R.alloc(8); S2 = R.alloc(8)
    DR = R.alloc(8); DI = R.alloc(8)
    TR = R.alloc(8); TI = R.alloc(8)
    ZR = R.alloc(4); ZI = R.alloc(4)
    e(f"v_and_b32 v{i15}, 15, v{lane}")
    e(f"v_lshrrev_b32 v{g}, 4, v{lane}")
    e(f"v_lshlrev_b32 v{l16}, 4, v{lane}")
    e(f"v_lshlrev_b32 v{va}, 4, v{i15}")
    e(f"v_lshl_add_u32 v{va}, v{g}, 9, v{va}")
    e("s_lshl_b32 s4, s2, 13")
    e("s_add_u32 s5, s4, 4096")
    e("s_cmp_eq_u32 s2, 224")
    e("s_cselect_b32 s4, 4096, s4")
    e(f"s_cselect_b32 s5, {OOB}, s5")
    e("s_cmp_eq_u32 s2, 0")
    e(f"s_cselect_b32 s5, {OOB}, s5")
    e(f"s_add_u32 s6, s4, {X1F}")
    e(f"s_add_u32 s7, s5, {X1F}")
    e(f"s_add_u32 s8, s4, {Y1T}")
    e(f"s_add_u32 s9, s5, {Y1T}")
    e("s_lshl_b32 s11, s2, 13")
    e("s_lshl_b32 s12, s3, 11")
    e("s_add_u32 s11, s11, s12")
    e(f"s_add_u32 s11, s11, {WT}")
    e("s_cmp_lt_u32 s3, 2")
    e("s_cselect_b32 s10, s6, s7")
    e("s_and_b32 s13, s12, 2048")
    e("s_add_u32 s10, s10, s13")
    e(f"s_add_u32 m0, s12, {LB + 8192}")
    lm = R.alloc()
    e(f"v_lshlrev_b32 v{lm}, 31, v{lane}")
    e(f"v_lshrrev_b32 v{t0}, 16, v{lm}")
    e(f"v_or_b32 v{lm}, v{lm}, v{t0}")
    e("s_mov_b32 s15, 0x80008000")
    e("s_brev_b32 s12, 1")
    e("s_lshl_b32 s13, s3, 4")
    e(f"v_add_u32 v{t0}, s13, v{i15}")
    e(f"v_cvt_f32_u32 v{t0}, v{t0}")
    e(f"v_mul_f32 v{t0}, {f32(1/2048)}, v{t0}")
    e(f"v_lshlrev_b32 v{t1}, 2, v{g}")
    e(f"v_add_u32 v{vst}, s13, v{t1}")
    e(f"v_cvt_f32_u32 v{t1}, v{t1}")
    e(f"v_mul_f32 v{t1}, v{t1}, v{t0}")
    for j in range(8):
        e(f"v_fma_f32 v{C1+j}, v{t0}, {f32(float(16*(j>>2)+(j&3)))}, v{t1}" if False else
          f"v_fmamk_f32 v{C1+j}, v{t0}, {f32(float(16*(j>>2)+(j&3)))}, v{t1}")
    for j in range(8):
        e(f"v_sin_f32 v{S1+j}, v{C1+j}")
        e(f"v_cos_f32 v{C1+j}, v{C1+j}")
    e("s_waitcnt lgkmcnt(0)")
    mk_srd(A, 44, 34, WS_BYTES)
    tk = {}
    bars(0)
    for h in range(2):
        tk['x'] = e(f"buffer_load_dwordx4 v{l16}, s[44:47], s10 offen offset:{h*1024} lds{LD}")
    for T in range(2):
        tk['w'] = e(f"buffer_load_dwordx4 {vr(W[T],4)}, v{l16}, s[44:47], s11 offen offset:{T*1024}{LD}")
    A.nts = 2; A.ts()
    e(f"v_cvt_f32_u32 v{t0}, v{i15}")
    e(f"v_mul_f32 v{t0}, {f32(1/2048)}, v{t0}")
    e(f"v_add_f32 v{t2}, {f32(16/2048)}, v{t0}")
    e(f"v_cvt_f32_u32 v{t1}, v{vst}")
    for j in range(8):
        tt = t2 if j >> 2 else t0
        e(f"v_add_f32 v{C2+j}, {f32(float(j&3))}, v{t1}")
        e(f"v_mul_f32 v{C2+j}, v{C2+j}, v{tt}")
    for j in range(8):
        e(f"v_sin_f32 v{S2+j}, v{C2+j}")
        e(f"v_cos_f32 v{C2+j}, v{C2+j}")
    e(f"v_mul_f32 v{t0}, {f32(64.0)}, v{t0}")
    e(f"v_lshlrev_b32 v{t1}, 2, v{g}")
    e(f"v_cvt_f32_u32 v{t1}, v{t1}")
    e(f"v_mul_f32 v{TR}, v{t1}, v{t0}")
    for j in range(1, 4): e(f"v_fmamk_f32 v{TR+j}, v{t0}, {f32(float(j))}, v{TR}")
    for j in range(4):
        e(f"v_sin_f32 v{TI+j}, v{TR+j}")
        e(f"v_cos_f32 v{TR+j}, v{TR+j}")
    for cs, src in ((0, TR), (1, TI)):
        for z in range(2): e(f"v_cvt_pk_bf16_f32 v{F2[0][cs]+z}, v{src+2*z}, v{src+2*z+1}")
        for z in range(2): e(f"v_xor_b32 v{F2[0][cs]+2+z}, v{F2[0][cs]+z}, v{lm}")
        for z in range(4): e(f"v_xor_b32 v{F2[1][cs]+z}, s12, v{F2[0][cs]+z}")
    for T in range(2):
        for z in range(4): e(f"v_xor_b32 v{F2[T][2]+z}, s15, v{F2[T][1]+z}")
    e(f"v_add_u32 v{t0}, s13, v{i15}")
    e(f"v_cvt_f32_u32 v{t0}, v{t0}")
    e(f"v_mul_f32 v{t0}, {f32(1/64)}, v{t0}")
    e(f"v_lshrrev_b32 v{t1}, 1, v{g}")
    e(f"v_lshlrev_b32 v{t1}, 3, v{t1}")
    e(f"v_lshl_add_u32 v{t1}, v{g}, 2, v{t1}")
    e(f"v_cvt_f32_u32 v{t1}, v{t1}")
    e(f"v_mul_f32 v{TR}, v{t1}, v{t0}")
    for j in range(1, 8): e(f"v_fmamk_f32 v{TR+j}, v{t0}, {f32(float((j&3)+8*(j>>2)))}, v{TR}")
    for j in range(8):
        e(f"v_sin_f32 v{TI+j}, v{TR+j}")
        e(f"v_cos_f32 v{TR+j}, v{TR+j}")
    for cs, src in ((0, TR), (1, TI)):
        for z in range(4): e(f"v_cvt_pk_bf16_f32 v{F1[0][cs]+z}, v{src+2*z}, v{src+2*z+1}")
        for z in range(4): e(f"v_xor_b32 v{F1[1][cs]+z}, v{F1[0][cs]+z}, v{lm}")
    for Q in range(2):
        for z in range(4): e(f"v_xor_b32 v{F1[Q][2]+z}, s15, v{F1[Q][1]+z}")
    e(f"v_add_u32 v{t2}, {LB + 8192}, v{va}")
    e(f"v_lshlrev_b32 v{vst}, 1, v{vst}")
    e(f"v_lshl_add_u32 v{vst}, v{i15}, 7, v{vst}")
    e(f"v_and_b32 v{t0}, 1, v{g}")
    e(f"v_lshlrev_b32 v{t0}, 8, v{t0}")
    e(f"v_lshl_add_u32 v{t0}, v{i15}, 4, v{t0}")
    e(f"v_lshrrev_b32 v{t1}, 1, v{g}")
    e(f"v_lshl_add_u32 v{t0}, v{t1}, 3, v{t0}")
    e("s_lshl_b32 s14, s3, 9")
    e(f"s_add_u32 s14, s14, {LB}")
    e(f"v_add_u32 v{vw}, s14, v{t0}")
    e(f"v_add_u32 v{va}, {LB}, v{l16}")
    M = "v_mfma_f32_16x16x32_bf16"
    def mm(d, a, b, first):
        e(f"{M} {vr(d,4)}, {vr(a,4)}, {vr(b,4)}, {'0' if first else vr(d,4)}")
    def cmul(c, s, sgn):
        for p in range(8):
            e(f"v_mul_f32 v{TR+p}, v{DR+p}, v{c+p}")
            e(f"v_mul_f32 v{TI+p}, v{DI+p}, v{c+p}")
        for p in range(8):
            e(f"v_fma_f32 v{TR+p}, v{DI+p}, {'-' if sgn > 0 else ''}v{s+p}, v{TR+p}")
            e(f"v_fma_f32 v{TI+p}, v{DR+p}, {'-' if sgn < 0 else ''}v{s+p}, v{TI+p}")
        for p in range(4):
            e(f"v_cvt_pk_bf16_f32 v{ZR+p}, v{TR+2*p}, v{TR+2*p+1}")
            e(f"v_cvt_pk_bf16_f32 v{ZI+p}, v{TI+2*p}, v{TI+2*p+1}")
    A.wait_vm(tk['x'])
    assert fb[1] >= 1
    bars(1)
    A.ts()
    for Q in range(2):
        for c in range(2):
            for T in range(2):
                tk['x', c, T, Q] = e(f"ds_read_b128 {vr(XA[c][T][Q],4)}, v{t2} offset:{c*4096+Q*2048+T*256}")
    e(f"s_cmp_lt_u32 s5, {OOB}")
    e("s_cbranch_scc1 fft_nz")
    e("s_waitcnt lgkmcnt(0)")
    for T in range(2):
        for Q in range(2):
            for z in range(4): e(f"v_mov_b32 v{XA[1][T][Q]+z}, 0")
    A.label("fft_nz")
    for Q in range(2):
        for T in range(2):
            A.wait_ld(tk['x', 0, T, Q])
            mm(DR+4*T, XA[0][T][Q], F1[Q][0], Q == 0)
            mm(DI+4*T, XA[0][T][Q], F1[Q][2], Q == 0)
        for T in range(2):
            A.wait_ld(tk['x', 1, T, Q])
            mm(DR+4*T, XA[1][T][Q], F1[Q][1], False)
            mm(DI+4*T, XA[1][T][Q], F1[Q][0], False)
    bars(2)
    A.ts()
    cmul(C1, S1, -1)
    for T in range(2):
        mm(DR+4*T, F2[T][0], ZR, True)
        mm(DI+4*T, F2[T][0], ZI, True)
    for T in range(2):
        mm(DR+4*T, F2[T][1], ZI, False)
        mm(DI+4*T, F2[T][2], ZR, False)
    bars(3)
    A.wait_vm(tk['w'])
    for j in range(8):
        e(f"v_lshlrev_b32 v{WR+j}, 16, v{W[j>>2]+(j&3)}")
        e(f"v_and_b32 v{WI+j}, 0xffff0000, v{W[j>>2]+(j&3)}")
    cmul(WR, WI, +1)
    for T in range(2):
        mm(DR+4*T, ZR, F2[T][0], True)
        mm(DI+4*T, ZI, F2[T][0], True)
    for T in range(2):
        mm(DR+4*T, ZI, F2[T][2], False)
        mm(DI+4*T, ZR, F2[T][1], False)
    bars(5)
    cmul(C2, S2, +1)
    for T in range(2):
        e(f"ds_write_b64 v{vw}, {vr(ZR+2*T,2)} offset:{T*2048}")
        e(f"ds_write_b64 v{vw}, {vr(ZI+2*T,2)} offset:{4096+T*2048}")
    A.wait_all_ld()
    A.ts()
    barrier()
    A.ts()
    for Q in range(2):
        for c in range(2):
            for T in range(2):
                tk['u', c, T, Q] = e(f"ds_read_b128 {vr(XA[c][T][Q],4)}, v{va} offset:{(c*2+T)*2048+Q*1024}")
    for Q in range(2):
        for T in range(2):
            A.wait_ld(tk['u', 0, T, Q])
            mm(DR+4*T, F1[Q][0], XA[0][T][Q], Q == 0)
            mm(DI+4*T, F1[Q][1], XA[0][T][Q], Q == 0)
        for T in range(2):
            A.wait_ld(tk['u', 1, T, Q])
            mm(DR+4*T, F1[Q][2], XA[1][T][Q], False)
            mm(DI+4*T, F1[Q][0], XA[1][T][Q], False)
    for p in range(4):
        e(f"v_cvt_pk_bf16_f32 v{ZR+p}, v{DR+2*p}, v{DR+2*p+1}")
        e(f"v_cvt_pk_bf16_f32 v{ZI+p}, v{DI+2*p}, v{DI+2*p+1}")
    bars(4)
    for T in range(2):
        e(f"buffer_store_dwordx2 {vr(ZR+2*T,2)}, v{vst}, s[44:47], s8 offen offset:{T*2048}{ST}")
        e(f"buffer_store_dwordx2 {vr(ZI+2*T,2)}, v{vst}, s[44:47], s9 offen offset:{T*2048}{ST}")
    A.ts()
    for _ in range(xbar): e("s_barrier")
    A.ts_flush(kidx, "s3", wofs)
    e("s_endpgm")
    return R.n

PB = WS_END

def gemm_block(A, lane, nf, ni, epi, PD, bar_at=None, LD="", ST="", kidx=2, ROT=(7, 4), bar0=False):
    e = A.e
    R = Regs(lane + 1)
    t0, t1, t2, l16, vw2, vy, tid = [R.alloc() for _ in range(7)]
    ta = [R.alloc(), R.alloc()]
    acc = [[R.alloc(16) for u in range(2)] for h in range(2)]
    LF = [[R.alloc(4) for h in range(2)] for p in range(2)]
    GF = [[R.alloc(4) for h in range(2)] for p in range(PD)]
    XR = R.alloc(8)
    BR = R.alloc(8)
    e("s_and_b32 s4, s2, 7")
    e("s_lshr_b32 s5, s2, 3")
    e("s_and_b32 s6, s5, 3")
    e("s_lshr_b32 s7, s5, 2")
    e("s_lshl_b32 s8, s4, 2")
    e("s_add_u32 s8, s8, s6")
    e(f"v_lshrrev_b32 v{t0}, 3, v{lane}")
    e(f"v_and_b32 v{t1}, 7, v{lane}")
    e(f"v_lshlrev_b32 v{t2}, 1, v{t0}")
    e(f"v_and_b32 v{t2}, 4, v{t2}")
    e(f"v_xor_b32 v{t2}, v{t2}, v{t1}")
    e(f"v_lshlrev_b32 v{t2}, 4, v{t2}")
    e(f"v_mad_u32_u24 v{vw2}, v{t0}, 896, v{t2}" if False else f"v_mul_u32_u24 v{vw2}, 896, v{t0}")
    e(f"v_add_u32 v{vw2}, v{vw2}, v{t2}")
    e(f"v_lshl_add_u32 v{vy}, v{t0}, 12, v{t2}")
    e(f"v_lshlrev_b32 v{l16}, 4, v{lane}")
    e("s_lshl_b32 s9, s7, 7")
    e(f"s_mul_i32 s10, s3, {28*16*896}")
    e("s_add_u32 s10, s10, s9")
    e("s_mul_i32 s11, s8, 229376")
    e("s_mul_i32 s12, s3, 28672")
    e("s_add_u32 s11, s11, s12")
    e("s_add_u32 s12, s11, 114688")
    e(f"s_mul_i32 s13, s3, {7*16*4096}")
    e("s_lshl_b32 s14, s8, 7")
    e("s_add_u32 s13, s13, s14")
    e(f"s_add_u32 s13, s13, {Y1T}")
    e("s_mul_i32 s14, s7, 57344")
    e("s_mul_i32 s15, s3, 7168")
    e("s_add_u32 s14, s14, s15")
    e(f"s_add_u32 s14, s14, {IDF}")
    e("s_add_u32 s15, s14, 28672")
    e(f"s_mul_i32 s57, s3, {PD*2048}")
    e(f"s_mul_i32 s62, s6, {ROT[0]}")
    e(f"s_mul_i32 s63, s7, {ROT[1]}")
    e("s_add_u32 s62, s62, s63")
    e("s_cmp_ge_u32 s62, 28")
    e("s_cselect_b32 s63, 28, 0")
    e("s_sub_u32 s62, s62, s63")
    e("s_mul_i32 s63, s62, 14336")
    e("s_add_u32 s63, s63, s10")
    e("s_lshl_b32 s64, s62, 10")
    e("s_add_u32 s64, s64, s11")
    e("s_waitcnt lgkmcnt(0)")
    mk_srd(A, 44, 34, WS_BYTES)
    mk_srd(A, 40, 28, 1605632)
    mk_srd(A, 36, 16, 1835008)
    mk_srd(A, 48, 30, 896)
    mk_srd(A, 52, 32, 1835008)
    steps = [('i', k) for k in range(ni)] + [('f', k) for k in range(nf)]
    if epi == 'full':
        steps = [('f', k) for k in range(nf)] + [('i', k) for k in range(ni)]
    N = len(steps)
    tok = {}
    def issue(n):
        if n >= N: return
        kind, k = steps[n]
        sl = n % PD
        for hf in range(2):
            e(f"s_add_u32 m0, s57, {sl*2048 + hf*1024}")
            if kind == 'f':
                if hf: e(f"s_add_u32 s58, s63, {8*896}")
                e(f"buffer_load_dwordx4 v{vw2}, s[40:43], s{58 if hf else 63} offen lds")
            else:
                e(f"s_add_u32 s58, s13, {(k*16+hf*8)*4096}")
                e(f"buffer_load_dwordx4 v{vy}, s[44:47], s58 offen lds{LD}")
        if kind == 'f':
            e("s_add_u32 s58, s64, 114688")
            for hf in range(2):
                tok[n] = e(f"buffer_load_dwordx4 {vr(GF[sl][hf],4)}, v{l16}, s[44:47], s{58 if hf else 64} offen{LD}")
            e("s_add_u32 s62, s62, 1")
            e("s_add_u32 s63, s63, 14336")
            e("s_add_u32 s64, s64, 1024")
            e("s_cmp_eq_u32 s62, 28")
            e("s_cselect_b32 s62, 0, s62")
            e("s_cselect_b32 s63, s10, s63")
            e("s_cselect_b32 s64, s11, s64")
            return
        for hf in range(2):
            sb = (11 + hf) if kind == 'f' else (14 + hf)
            if k % 4 == 0 and k:
                e(f"s_add_u32 s{sb}, s{sb}, 4096")
            tok[n] = e(f"buffer_load_dwordx4 {vr(GF[sl][hf],4)}, v{l16}, s[44:47], s{sb} offen offset:{(k%4)*1024}{LD}")
    if bar0: e("s_barrier")
    if epi == 'final4':
        PR = [[R.alloc(8) for u in range(2)] for h in range(2)]
        e("s_lshl_b32 s60, s3, 5")
        e("s_add_u32 s60, s60, s8")
        e("s_mul_i32 s60, s60, 57344")
        e("s_lshl_b32 s61, s7, 12")
        e("s_add_u32 s60, s60, s61")
        e(f"s_add_u32 s60, s60, {PB}")
        e("s_add_u32 s61, s60, 28672")
        for u in range(2):
            for h in range(2):
                for qq in range(2):
                    tok['p', h, u] = e(f"buffer_load_dwordx4 {vr(PR[h][u]+4*qq,4)}, v{l16}, s[44:47], s{60+u} offen offset:{h*2048+qq*1024}{LD}")
    for n in range(PD):
        issue(n)
    A.nts = 2; A.ts()
    e(f"v_and_b32 v{tid}, 255, v0")
    e(f"v_lshrrev_b32 v{t0}, 2, v{tid}")
    e(f"v_and_b32 v{t1}, 3, v{tid}")
    e(f"v_mul_u32_u24 v{t2}, 28672, v{t0}")
    e(f"v_lshl_add_u32 v{t2}, v{t1}, 5, v{t2}")
    e("s_mul_i32 s59, s8, 896")
    e("s_add_u32 s59, s59, s9")
    e(f"s_add_u32 s60, s59, {PB}")
    e(f"v_mul_u32_u24 v{tid}, 272, v{t0}")
    e(f"v_lshl_add_u32 v{tid}, v{t1}, 6, v{tid}")
    e(f"v_lshlrev_b32 v{t1}, 5, v{t1}")
    def epi_loads():
        for hf in range(2):
            if epi == 'final':
                tok['x'] = e(f"buffer_load_dwordx4 {vr(XR+4*hf,4)}, v{t2}, s[44:47], s60 offen offset:{hf*16}{LD}")
            else:
                e(f"buffer_load_dwordx4 {vr(XR+4*hf,4)}, v{t2}, s[36:39], s59 offen offset:{hf*16}")
                tok['x'] = e(f"buffer_load_dwordx4 {vr(BR+4*hf,4)}, v{t1}, s[48:51], s9 offen offset:{hf*16}")
    e(f"v_bfe_u32 v{t0}, v{lane}, 2, 2")
    e(f"v_lshrrev_b32 v{ta[1]}, 5, v{lane}")
    e(f"v_lshl_add_u32 v{t0}, v{ta[1]}, 2, v{t0}")
    e(f"v_lshlrev_b32 v{t0}, 7, v{t0}")
    e(f"v_bfe_u32 v{ta[1]}, v{lane}, 3, 1")
    e(f"v_lshl_add_u32 v{t0}, v{ta[1]}, 6, v{t0}")
    e(f"v_bfe_u32 v{ta[1]}, v{lane}, 4, 1")
    e(f"v_lshl_add_u32 v{t0}, v{ta[1]}, 5, v{t0}")
    e(f"v_and_b32 v{ta[1]}, 3, v{lane}")
    e(f"v_lshl_add_u32 v{t0}, v{ta[1]}, 3, v{t0}")
    e(f"v_add_u32 v{ta[0]}, s57, v{t0}")
    e(f"v_xor_b32 v{ta[1]}, 64, v{ta[0]}")
    rt = {}
    def rd(n):
        if n >= N: return
        A.wait_vm(tok[n])
        sl = n % PD
        for h in range(2):
            f = LF[n & 1][h]
            e(f"ds_read_b64_tr_b16 {vr(f,2)}, v{ta[h]} offset:{sl*2048}")
            rt[n] = e(f"ds_read_b64_tr_b16 {vr(f+2,2)}, v{ta[h]} offset:{sl*2048+1024}")
    if epi == 'final4':
        for u in range(2):
            for h in range(2):
                A.wait_vm(tok['p', h, u])
                for j in range(8):
                    e(f"v_lshlrev_b32 v{acc[h][u]+2*j}, 16, v{PR[h][u]+j}")
                    e(f"v_and_b32 v{acc[h][u]+2*j+1}, 0xffff0000, v{PR[h][u]+j}")
    rd(0)
    for n in range(N):
        kind, k = steps[n]
        A.wait_ld(rt[n])
        if n % 7 == 0: A.ts()
        rd(n + 1)
        L = LF[n & 1]; G = GF[n % PD]
        for h in range(2):
            for u in range(2):
                a, b = (L[h], G[u]) if kind == 'f' else (G[h], L[u])
                c = '0' if n == 0 and epi != 'final4' else vr(acc[h][u], 16)
                e(f"v_mfma_f32_32x32x16_bf16 {vr(acc[h][u],16)}, {vr(a,4)}, {vr(b,4)}, {c}")
        issue(n + PD)
        if n == max(N - PD, 0): epi_loads()
        if bar_at is not None and n == bar_at: e("s_barrier")
    e(f"v_and_b32 v{t0}, 31, v{lane}")
    e(f"v_mul_u32_u24 v{t0}, 272, v{t0}")
    e(f"v_lshrrev_b32 v{t1}, 5, v{lane}")
    e(f"v_lshl_add_u32 v{t0}, v{t1}, 4, v{t0}")
    e(f"s_mul_i32 s61, s3, {64*272}")
    e(f"v_add_u32 v{t0}, s61, v{t0}")
    A.ts()
    e("s_barrier")
    A.ts()
    for h in range(2):
        for u in range(2):
            for q in range(4):
                e(f"ds_write_b128 v{t0}, {vr(acc[h][u]+4*q,4)} offset:{u*32*272 + h*128 + q*32}")
    A.wait_all_ld()
    e("s_barrier")
    A.ts()
    flat = [acc[0][0], acc[0][1], acc[1][0], acc[1][1]]
    tkk = []
    for q in range(4):
        for w in range(4):
            tkk.append(e(f"ds_read_b128 {vr(flat[w]+4*q,4)}, v{tid} offset:{w*64*272 + q*16}"))
    A.wait_vm(tok['x'])
    O = LF[0][0]
    assert LF[0][1] == O + 4
    for q in range(4):
        A.wait_ld(tkk[4*q+3])
        for p in range(2):
            a = [f + 4*q + 2*p for f in flat]
            e(f"v_pk_add_f32 {vr(a[0],2)}, {vr(a[0],2)}, {vr(a[1],2)}")
            e(f"v_pk_add_f32 {vr(a[2],2)}, {vr(a[2],2)}, {vr(a[3],2)}")
            xr = XR + 2*q + p
            e(f"v_lshlrev_b32 v{a[1]}, 16, v{xr}")
            e(f"v_and_b32 v{a[1]+1}, 0xffff0000, v{xr}")
            e(f"v_pk_add_f32 {vr(a[0],2)}, {vr(a[0],2)}, {vr(a[2],2)}")
            if epi != 'final':
                br = BR + 2*q + p
                e(f"v_lshlrev_b32 v{a[3]}, 16, v{br}")
                e(f"v_and_b32 v{a[3]+1}, 0xffff0000, v{br}")
                e(f"v_pk_add_f32 {vr(a[0],2)}, {vr(a[0],2)}, {vr(a[3],2)}")
            e(f"v_pk_add_f32 {vr(a[0],2)}, {vr(a[0],2)}, {vr(a[1],2)}")
            e(f"v_cvt_pk_bf16_f32 v{O+2*q+p}, v{a[0]}, v{a[0]+1}")
    for hf in range(2):
        if epi == 'part':
            e(f"buffer_store_dwordx4 {vr(O+4*hf,4)}, v{t2}, s[44:47], s60 offen offset:{hf*16}{ST}")
        else:
            e(f"buffer_store_dwordx4 {vr(O+4*hf,4)}, v{t2}, s[52:55], s59 offen offset:{hf*16}")
    A.ts_flush(kidx)
    e("s_endpgm")
    return R.n

def gemm4(A, lane, PC=3, PF=6, LD="", ST="", kidx=1, ROT=(1, 2), bar_c=0):
    e = A.e
    R = Regs(lane + 1)
    t0, t1, t2, l16, vw2 = [R.alloc() for _ in range(5)]
    ta = [R.alloc() for _ in range(4)]
    acc = [R.alloc(16) for b in range(4)]
    LF = [R.alloc(4) for _ in range(8)]
    GF = [[R.alloc(4) for k in range(4)] for c in range(7)]
    e("s_bfe_u32 s4, s2, 0x20001")
    e("s_and_b32 s5, s2, 1")
    e("s_bfe_u32 s6, s2, 0x30003")
    e("s_lshr_b32 s7, s2, 6")
    e("s_lshl_b32 s8, s5, 3")
    e("s_add_u32 s8, s8, s6")
    e("s_lshl_b32 s8, s8, 2")
    e("s_add_u32 s8, s8, s3")
    e(f"v_lshrrev_b32 v{t0}, 3, v{lane}")
    e(f"v_and_b32 v{t1}, 7, v{lane}")
    e(f"v_lshlrev_b32 v{t2}, 1, v{t0}")
    e(f"v_and_b32 v{t2}, 4, v{t2}")
    e(f"v_xor_b32 v{t2}, v{t2}, v{t1}")
    e(f"v_lshlrev_b32 v{t2}, 4, v{t2}")
    e(f"v_mul_u32_u24 v{vw2}, 896, v{t0}")
    e(f"v_add_u32 v{vw2}, v{vw2}, v{t2}")
    e(f"v_lshlrev_b32 v{l16}, 4, v{lane}")
    e("s_lshl_b32 s9, s7, 2")
    e("s_min_u32 s9, s9, 10")
    e(f"s_mul_i32 s10, s4, {448*896}")
    e(f"s_mul_i32 s11, s3, {16*896}")
    e("s_add_u32 s10, s10, s11")
    e("s_lshl_b32 s11, s9, 6")
    e("s_add_u32 s10, s10, s11")
    e("s_mul_i32 s11, s8, 114688")
    e("s_mul_i32 s12, s4, 28672")
    e("s_add_u32 s11, s11, s12")
    e("s_lshl_b32 s57, s3, 12")
    e(f"s_mul_i32 s62, s6, {ROT[0]}")
    e(f"s_mul_i32 s63, s7, {ROT[1]}")
    e("s_add_u32 s62, s62, s63")
    for _ in range((7 * ROT[0] + 3 * ROT[1]) // 7):
        e("s_cmp_ge_u32 s62, 7")
        e("s_cselect_b32 s63, 7, 0")
        e("s_sub_u32 s62, s62, s63")
    e(f"s_mul_i32 s63, s62, {64*896}")
    e("s_add_u32 s63, s63, s10")
    e("s_lshl_b32 s64, s62, 12")
    e("s_add_u32 s64, s64, s11")
    e("s_waitcnt lgkmcnt(0)")
    mk_srd(A, 44, 34, WS_BYTES)
    mk_srd(A, 40, 28, 1605632)
    dt, ht = {}, {}
    def issue(c):
        if c >= 7: return []
        F = []
        def dma(ch, rh):
            e(f"s_add_u32 m0, s57, {c*16384 + ch*2048 + rh*1024}")
            if ch or rh: e(f"s_add_u32 s58, s63, {rh*7168 + ch*128}")
            dt[c] = e(f"buffer_load_dwordx4 v{vw2}, s[40:43], s{58 if ch or rh else 63} offen lds")
        def hl(k):
            ht[c, k] = e(f"buffer_load_dwordx4 {vr(GF[c][k],4)}, v{l16}, s[44:47], s64 offen offset:{k*1024}{LD}")
            if k == 3:
                e("s_add_u32 s62, s62, 1")
                e(f"s_add_u32 s63, s63, {64*896}")
                e("s_add_u32 s64, s64, 4096")
                e("s_cmp_eq_u32 s62, 7")
                e("s_cselect_b32 s62, 0, s62")
                e("s_cselect_b32 s63, s10, s63")
                e("s_cselect_b32 s64, s11, s64")
        return [(lambda ch=ch, rh=rh: dma(ch, rh)) for rh in range(2) for ch in range(2)] + [(lambda k=k: hl(k)) for k in range(4)]
    for c in range(PC):
        for f in issue(c): f()
    A.nts = 2; A.ts()
    e("s_lshl_b32 s60, s4, 6")
    e("s_add_u32 s60, s60, s8")
    e("s_mul_i32 s60, s60, 14")
    e("s_add_u32 s60, s60, s9")
    e("s_lshl_b32 s60, s60, 11")
    e(f"s_add_u32 s60, s60, {PB}")
    e("s_add_u32 s61, s60, 4096")
    e(f"v_bfe_u32 v{t0}, v{lane}, 2, 2")
    e(f"v_lshrrev_b32 v{t1}, 5, v{lane}")
    e(f"v_lshl_add_u32 v{t0}, v{t1}, 2, v{t0}")
    e(f"v_lshlrev_b32 v{t0}, 7, v{t0}")
    e(f"v_bfe_u32 v{t1}, v{lane}, 3, 1")
    e(f"v_lshl_add_u32 v{t0}, v{t1}, 6, v{t0}")
    e(f"v_bfe_u32 v{t1}, v{lane}, 4, 1")
    e(f"v_lshl_add_u32 v{t0}, v{t1}, 5, v{t0}")
    e(f"v_and_b32 v{t1}, 3, v{lane}")
    e(f"v_lshl_add_u32 v{ta[0]}, v{t1}, 3, v{t0}")
    e(f"v_xor_b32 v{ta[1]}, 64, v{ta[0]}")
    e(f"v_add_u32 v{ta[2]}, 65536, v{ta[0]}")
    e(f"v_add_u32 v{ta[3]}, 65536, v{ta[1]}")
    if bar_c: e("s_barrier")
    rt = {}
    pend = []
    def rd(n):
        if n >= 112: return
        c, ks, b = n // 16, (n // 4) % 4, n % 4
        if n % 16 == 0:
            A.wait_vm(dt[c]); e("s_barrier"); A.ts()
            pend.extend(issue(c + PC))
        o = (c % 4) * 16384 + ks * 4096 + (b >> 1) * 2048
        f = LF[n % 8]; a = ta[(b & 1) + 2 * (c // 4)]
        e(f"ds_read_b64_tr_b16 {vr(f,2)}, v{a} offset:{o}")
        rt[n] = e(f"ds_read_b64_tr_b16 {vr(f+2,2)}, v{a} offset:{o+1024}")
    for n in range(PF): rd(n)
    for n in range(112):
        c, ks, b = n // 16, (n // 4) % 4, n % 4
        rd(n + PF)
        if n % 2 == 0: A.wait_ld(rt[n + 1])
        if b == 0: A.wait_vm(ht[c, ks])
        e(f"v_mfma_f32_32x32x16_bf16 {vr(acc[b],16)}, {vr(LF[n%8],4)}, {vr(GF[c][ks],4)}, {'0' if n < 4 else vr(acc[b],16)}")
        if pend: pend.pop(0)()
    A.ts()
    e("s_cmp_eq_u32 s7, 3")
    e("s_cbranch_scc1 g4_skip")
    for b in range(4):
        if b == 2: A.label("g4_skip"); e("s_nop 7"); e("s_nop 7")
        for qq in range(2):
            O = GF[b >> 1][2 * (b & 1) + qq]
            for j in range(4):
                e(f"v_cvt_pk_bf16_f32 v{O+j}, v{acc[b]+8*qq+2*j}, v{acc[b]+8*qq+2*j+1}")
            e(f"buffer_store_dwordx4 {vr(O,4)}, v{l16}, s[44:47], s{60 + (b >> 1)} offen offset:{(b&1)*2048 + qq*1024}{ST}")
    A.ts_flush(kidx)
    e("s_endpgm")
    return R.n

def k3_block(A, lane, LD="", kidx=2, NG0=6, SLP=2, EB=0, D2=0, ST3=""):
    e = A.e
    R = Regs(lane + 1)
    t0, t1, t2, t3, l16, vy, vx, vb, hh, dl, vk, xw = [R.alloc() for _ in range(12)]
    ta = [R.alloc(), R.alloc()]
    bs = R.alloc(4); cs = R.alloc(4); sn = R.alloc(4)
    acc = [R.alloc(16) for u in range(2)]
    Rs = R.n
    LF = [[R.alloc(4) for u in range(2)] for p in range(3)]
    G = [R.alloc(4) for _ in range(14)]
    nv = R.n; R.n = Rs
    P = [R.alloc(8) for kq in range(4)]
    X = R.alloc(8); B2 = R.alloc(8); S = R.alloc(16); T = R.alloc(16)
    nv = max(nv, R.n)
    e("s_and_b32 s4, s2, 7")
    e("s_lshr_b32 s5, s2, 3")
    e("s_and_b32 s6, s5, 3")
    e("s_lshr_b32 s7, s5, 2")
    e("s_lshl_b32 s8, s4, 2")
    e("s_add_u32 s8, s8, s6")
    e("s_and_b32 s4, s3, 1")
    e("s_bfe_u32 s5, s3, 0x10001")
    e("s_lshl_b32 s9, s7, 1")
    e("s_add_u32 s9, s9, s4")
    e(f"v_and_b32 v{t0}, 31, v{lane}")
    e(f"v_lshrrev_b32 v{hh}, 5, v{lane}")
    e(f"v_lshlrev_b32 v{l16}, 4, v{lane}")
    e("s_cmp_ge_u32 s3, 4")
    e("s_cbranch_scc1 k3_epi")
    e(f"s_mov_b32 s15, {f32(1.0/448)}")
    e(f"s_mov_b32 s60, {f32(-448.0)}")
    e("s_lshl_b32 s10, s9, 5")
    e("s_mul_i32 s11, s5, 112")
    e(f"v_add_u32 v{t2}, s10, v{t0}")
    e(f"v_cvt_f32_u32 v{t2}, v{t2}")
    e(f"v_lshl_add_u32 v{t3}, v{hh}, 1, s11")
    e(f"v_cmp_eq_u32 vcc, 0, v{t3}")
    e(f"v_cvt_f32_u32 v{t3}, v{t3}")
    for z, off in enumerate((0.0, 1.0, 4.0, 5.0)):
        e(f"v_add_f32 v{bs+z}, {f32(off)}, v{t3}")
    for z in range(4): e(f"v_mul_f32 v{bs+z}, v{bs+z}, v{t2}")
    e(f"v_mul_f32 v{dl}, {f32(8.0)}, v{t2}")
    Z = [(bs + z, cs + z) for z in range(4)] + [(dl, t1)]
    for r, t in Z: e(f"v_mul_f32 v{t}, s15, v{r}")
    for r, t in Z: e(f"v_floor_f32 v{t}, v{t}")
    for r, t in Z: e(f"v_fma_f32 v{r}, v{t}, s60, v{r}")
    for r, t in Z: e(f"v_mul_f32 v{r}, s15, v{r}")
    e(f"v_lshlrev_b32 v{vk}, 31, v{lane}")
    e(f"v_or_b32 v{vk}, 0x3f003f00, v{vk}")
    def gen(n):
        for z in range(4):
            if n: e(f"v_fmamk_f32 v{cs+z}, v{dl}, {f32(float(n))}, v{bs+z}")
        for z in range(4):
            e(f"v_sin_f32 v{sn+z}, v{(cs if n else bs)+z}")
            e(f"v_cos_f32 v{cs+z}, v{(cs if n else bs)+z}")
        for z in range(4): e(f"v_cvt_pk_bf16_f32 v{G[n]+z}, v{cs+z}, -v{sn+z}")
        if n == 0: e(f"v_cndmask_b32 v{G[0]}, v{G[0]}, v{vk}, vcc")
    e(f"v_lshrrev_b32 v{t0}, 3, v{lane}")
    e(f"v_and_b32 v{t1}, 7, v{lane}")
    e(f"v_lshlrev_b32 v{t2}, 1, v{t0}")
    e(f"v_and_b32 v{t2}, 4, v{t2}")
    e(f"v_xor_b32 v{t2}, v{t2}, v{t1}")
    e(f"v_lshlrev_b32 v{t2}, 4, v{t2}")
    e(f"v_lshl_add_u32 v{vy}, v{t0}, 12, v{t2}")
    e(f"s_mul_i32 s13, s3, {7*16*4096}")
    e("s_lshl_b32 s14, s8, 7")
    e("s_add_u32 s13, s13, s14")
    e(f"s_add_u32 s13, s13, {Y1T}")
    e(f"s_mul_i32 s57, s3, {7*2048}")
    for n in range(NG0): gen(n)
    e("s_waitcnt lgkmcnt(0)")
    mk_srd(A, 44, 34, WS_BYTES)
    for i in range(14):
        e(f"s_add_u32 m0, s57, {i*1024}")
        if i: e(f"s_add_u32 s13, s13, {8*4096}")
        ty = e(f"buffer_load_dwordx4 v{vy}, s[44:47], s13 offen lds{LD}")
    A.nts = 2; A.ts()
    for n in range(NG0, 14): gen(n)
    e(f"v_bfe_u32 v{t0}, v{lane}, 2, 2")
    e(f"v_lshl_add_u32 v{t0}, v{hh}, 2, v{t0}")
    e(f"v_lshlrev_b32 v{t0}, 7, v{t0}")
    e(f"v_bfe_u32 v{t1}, v{lane}, 3, 1")
    e(f"v_lshl_add_u32 v{t0}, v{t1}, 6, v{t0}")
    e(f"v_bfe_u32 v{t1}, v{lane}, 4, 1")
    e(f"v_lshl_add_u32 v{t0}, v{t1}, 5, v{t0}")
    e(f"v_and_b32 v{t1}, 3, v{lane}")
    e(f"v_lshl_add_u32 v{t0}, v{t1}, 3, v{t0}")
    e("s_mul_i32 s12, s5, 28672")
    e(f"v_add_u32 v{ta[0]}, s12, v{t0}")
    e(f"v_xor_b32 v{ta[1]}, 64, v{ta[0]}")
    e("s_lshl_b32 s12, s3, 13")
    e("s_add_u32 s12, s12, 57344")
    e(f"v_add_u32 v{xw}, s12, v{l16}")
    A.ts()
    A.wait_vm(ty)
    e("s_barrier")
    A.ts()
    rt = {}
    def rd(n):
        if n >= 14: return
        for u in range(2):
            f = LF[n % 3][u]
            e(f"ds_read_b64_tr_b16 {vr(f,2)}, v{ta[u]} offset:{n*2048}")
            rt[n] = e(f"ds_read_b64_tr_b16 {vr(f+2,2)}, v{ta[u]} offset:{n*2048+1024}")
    rd(0); rd(1)
    for n in range(14):
        rd(n + 2)
        A.wait_ld(rt[n])
        for u in range(2):
            e(f"v_mfma_f32_32x32x16_bf16 {vr(acc[u],16)}, {vr(G[n],4)}, {vr(LF[n%3][u],4)}, {'0' if n == 0 else vr(acc[u],16)}")
    A.ts()
    for u in range(2):
        for q in range(4): e(f"ds_write_b128 v{xw}, {vr(acc[u]+4*q,4)} offset:{u*4096+q*1024}")
    A.wait_all_ld()
    e("s_barrier")
    A.ts_flush(kidx)
    e("s_endpgm")
    A.label("k3_epi"); A.reset_counts()
    e(f"v_mul_u32_u24 v{vx}, 28672, v{t0}")
    e(f"v_lshlrev_b32 v{vb}, 4, v{hh}")
    e(f"v_add_u32 v{vx}, v{vx}, v{vb}")
    e("s_lshl_b32 s61, s8, 1")
    e("s_add_u32 s61, s61, s5")
    e("s_mul_i32 s61, s61, 14")
    e("s_add_u32 s61, s61, s9")
    e("s_lshl_b32 s61, s61, 11")
    e(f"s_add_u32 s61, s61, {PB}")
    e("s_lshl_b32 s10, s9, 6")
    e("s_lshl_b32 s59, s5, 10")
    e("s_add_u32 s59, s59, s8")
    e("s_mul_i32 s59, s59, 896")
    e("s_add_u32 s59, s59, s10")
    e("s_lshl_b32 s12, s4, 13")
    e("s_lshl_b32 s13, s5, 12")
    e("s_add_u32 s12, s12, s13")
    e("s_add_u32 s12, s12, 57344")
    e(f"v_add_u32 v{xw}, s12, v{l16}")
    e(f"s_mov_b32 s14, {f32(2.0 / (2048 * 448))}")
    e("s_mov_b32 s15, 0xffff0000")
    e("s_waitcnt lgkmcnt(0)")
    mk_srd(A, 44, 34, WS_BYTES)
    mk_srd(A, 36, 16, 1835008)
    mk_srd(A, 48, 30, 896)
    mk_srd(A, 52, 32, 1835008)
    if SLP: e(f"s_sleep {SLP}")
    tok = {}
    for qq in range(2):
        e(f"buffer_load_dwordx4 {vr(B2+4*qq,4)}, v{vb}, s[48:51], s10 offen offset:{qq*32}")
        tok['x'] = e(f"buffer_load_dwordx4 {vr(X+4*qq,4)}, v{vx}, s[36:39], s59 offen offset:{qq*32}")
    for kq in range(4):
        if kq: e(f"s_add_u32 s61, s61, {64*28672}")
        for qq in range(2):
            tok[kq] = e(f"buffer_load_dwordx4 {vr(P[kq]+4*qq,4)}, v{l16}, s[44:47], s61 offen offset:{qq*1024}{LD}")
    A.nts = 2; A.ts()
    e("s_mov_b32 s62, 0x3f80")
    e("s_mov_b32 s63, 0x3f800000")
    if EB == 0: e("s_barrier"); A.ts()
    A.wait_vm(tok['x'])
    for r in (X, B2):
        for qq in range(2):
            for j in range(2): e(f"v_permlane32_swap_b32 v{r+4*qq+j}, v{r+4*qq+2+j}")
    def unp(src, first):
        if D2 and not first:
            for j in range(8):
                e(f"v_dot2c_f32_bf16 v{S+2*j}, s62, v{src+j}")
                e(f"v_dot2c_f32_bf16 v{S+2*j+1}, s63, v{src+j}")
            return
        for j in range(8):
            d = S if first else T
            e(f"v_lshlrev_b32 v{d+2*j}, 16, v{src+j}")
            e(f"v_and_b32 v{d+2*j+1}, s15, v{src+j}")
        if not first:
            for j in range(16): e(f"v_add_f32 v{S+j}, v{S+j}, v{T+j}")
    unp(X, True)
    unp(B2, False)
    for kq in range(4):
        if EB == kq + 1: e("s_barrier"); A.ts()
        A.wait_vm(tok[kq])
        unp(P[kq], False)
    if EB == 5: e("s_barrier"); A.ts()
    A.ts()
    e("s_barrier")
    A.ts()
    rk = {}
    for q in range(4):
        for k in range(2): rk[q] = e(f"ds_read_b128 {vr(acc[k]+4*q,4)}, v{xw} offset:{k*16384+q*1024}")
    for qq in range(2):
        for q in (2 * qq, 2 * qq + 1):
            A.wait_ld(rk[q])
            for k in range(2):
                for j in range(4 * q, 4 * q + 4): e(f"v_fma_f32 v{S+j}, v{acc[k]+j}, s14, v{S+j}")
        for j in range(4 * qq, 4 * qq + 4): e(f"v_cvt_pk_bf16_f32 v{X+j}, v{S+2*j}, v{S+2*j+1}")
        for j in range(2): e(f"v_permlane32_swap_b32 v{X+4*qq+j}, v{X+4*qq+2+j}")
        e(f"buffer_store_dwordx4 {vr(X+4*qq,4)}, v{vx}, s[52:55], s59 offen offset:{qq*32}{ST3}")
    A.ts_flush(kidx)
    e("s_endpgm")
    return nv

def prolog(A, name, nwg, vd):
    header(A, name)
    A.e(f"s_cmp_ge_u32 s2, {nwg}")
    A.e(f"s_cbranch_scc1 {name}_end")
    load_args(A)
    code_pf(A, name, vd)
    A.nts = 0; A.ts(True); A.ts()
    A.e("v_lshrrev_b32 v2, 6, v0")
    A.e("v_and_b32 v1, 63, v0")
    A.e("v_readfirstlane_b32 s3, v2")
    A.e("s_nop 3")

def epilog(A, name):
    A.label(f"{name}_end")
    A.e("s_endpgm")

def k2_warm(A, WM):
    e = A.e
    A.label("k2_warm")
    e("s_cmp_lt_u32 s2, 232")
    e("s_cbranch_scc1 k2_kernel_end")
    e("s_and_b32 s4, s2, 7")
    e("s_mul_i32 s4, s4, 3584")
    e("s_sub_u32 s5, s2, 232")
    e("s_lshr_b32 s5, s5, 3")
    e("s_lshl_b32 s5, s5, 2")
    e("s_add_u32 s5, s5, s3")
    e("s_sub_u32 s5, s5, 4")
    e(f"s_mul_i32 s5, s5, {6*28672}")
    e("s_add_u32 s5, s5, s4")
    e("v_and_b32 v2, 31, v1")
    e("v_min_u32 v2, 27, v2")
    e("v_lshlrev_b32 v2, 7, v2")
    e("v_lshrrev_b32 v3, 5, v1")
    e("v_mul_u32_u24 v3, 28672, v3")
    e("v_add3_u32 v2, v2, v3, s5")
    e(f"v_add_u32 v3, {2*28672}, v2")
    e(f"v_add_u32 v4, {4*28672}, v2")
    e("v_mul_u32_u24 v5, 28672, v1")
    e("v_add_u32 v5, s4, v5")
    e("v_lshlrev_b32 v6, 7, v1")
    e("s_waitcnt lgkmcnt(0)")
    mk_srd(A, 36, 16, 1835008)
    mk_srd(A, 48, 30, 896)
    mk_srd(A, 52, 32, 1835008)
    if WM & 1:
        e("buffer_load_dword v5, v5, s[52:55], 0 offen")
        e("buffer_load_dword v6, v6, s[48:51], 0 offen")
    if WM & 4:
        mk_srd(A, 44, 34, WS_BYTES)
        e("s_sub_u32 s5, s2, 232")
        e("s_lshr_b32 s5, s5, 3")
        e("s_lshl_b32 s5, s5, 2")
        e("s_add_u32 s5, s5, s3")
        e("s_sub_u32 s5, s5, 4")
        e("s_lshl_b32 s6, s5, 20")
        e(f"s_add_u32 s6, s6, {PB}")
        e("s_lshl_b32 s7, s5, 20")
        e(f"s_add_u32 s7, s7, {(Y1T - (7 << 20)) & 0xffffffff}")
        e("s_cmp_lt_u32 s5, 7")
        e("s_cselect_b32 s6, s6, s7")
        e("s_cmp_lt_u32 s5, 9")
        e(f"s_cselect_b32 s6, s6, {PB}")
        e("v_lshlrev_b32 v7, 14, v1")
        e("v_add_u32 v7, s6, v7")
        e("buffer_load_dword v7, v7, s[44:47], 0 offen")
    if WM & 2:
        for r in (2, 3, 4): e(f"buffer_load_dword v{r}, v{r}, s[36:39], 0 offen")
    e("s_endpgm")

def k3b_block(A, lane, LD="", kidx=2, NG0=6, SLP=2, D2=1, SP=4, ST3="", SB=0):
    e = A.e
    R = Regs(lane + 1)
    t0, t1, t2, t3, l16, vy, vx, vb, hh, vk, xw, ta = [R.alloc() for _ in range(12)]
    dl = R.alloc(2); bs = R.alloc(4); tm = R.alloc(4)
    CM = R.alloc(8); TT = R.alloc(8)
    acc = R.alloc(16)
    Rs = R.n
    LF = [R.alloc(4) for p in range(4)]
    G = [R.alloc(4) for _ in range(28)]
    nv = R.n; R.n = Rs
    P = [R.alloc(8) for kq in range(4)]
    X = R.alloc(8); B2 = R.alloc(8); S = R.alloc(16); T = R.alloc(16)
    nv = max(nv, R.n)
    assert dl % 2 == 0 and CM % 2 == 0 and TT % 2 == 0
    XO = 28672
    e("s_and_b32 s4, s2, 7")
    e("s_bfe_u32 s6, s2, 0x20003")
    e("s_lshl_b32 s8, s4, 2")
    e("s_add_u32 s8, s8, s6")
    e("s_bfe_u32 s5, s2, 0x10005")
    e("s_lshr_b32 s7, s2, 6")
    e("s_lshl_b32 s9, s7, 2")
    e("s_min_u32 s9, s9, 10")
    e("s_and_b32 s4, s3, 3")
    e("s_add_u32 s9, s9, s4")
    e("s_lshl_b32 s61, s8, 1")
    e("s_add_u32 s61, s61, s5")
    e("s_lshl_b32 s12, s4, 12")
    e(f"s_add_u32 s12, s12, {XO}")
    e(f"v_and_b32 v{t0}, 31, v{lane}")
    e(f"v_lshrrev_b32 v{hh}, 5, v{lane}")
    e(f"v_lshlrev_b32 v{l16}, 4, v{lane}")
    e(f"v_add_u32 v{xw}, s12, v{l16}")
    e("s_cmp_ge_u32 s3, 4")
    e("s_cbranch_scc1 k3_epi")
    e(f"v_lshrrev_b32 v{t2}, 2, v{lane}")
    e(f"v_and_b32 v{t1}, 3, v{lane}")
    e(f"v_lshlrev_b32 v{t1}, 4, v{t1}")
    e(f"v_lshl_add_u32 v{vy}, v{t2}, 12, v{t1}")
    e("s_lshl_b32 s13, s3, 16")
    e("s_lshl_b32 s14, s61, 6")
    e("s_add_u32 s13, s13, s14")
    e(f"s_add_u32 s13, s13, {Y1T}")
    e("s_lshl_b32 s57, s3, 10")
    e(f"s_mov_b32 s15, {f32(1.0/448)}")
    e(f"s_mov_b32 s60, {f32(-448.0)}")
    e("s_lshl_b32 s10, s9, 5")
    e(f"v_add_u32 v{t2}, s10, v{t0}")
    e(f"v_cvt_f32_u32 v{t2}, v{t2}")
    e(f"v_lshlrev_b32 v{t3}, 1, v{hh}")
    e(f"v_cmp_eq_u32 vcc, 0, v{t3}")
    e(f"v_cvt_f32_u32 v{t3}, v{t3}")
    for z, off in enumerate((0.0, 1.0, 4.0, 5.0)):
        e(f"v_add_f32 v{bs+z}, {f32(off)}, v{t3}")
    for z in range(4): e(f"v_mul_f32 v{bs+z}, v{bs+z}, v{t2}")
    e(f"v_mul_f32 v{t3}, {f32(8.0)}, v{t2}")
    Z = [(bs + z, tm + z) for z in range(4)] + [(t3, t1)]
    for r, t in Z: e(f"v_mul_f32 v{t}, s15, v{r}")
    for r, t in Z: e(f"v_floor_f32 v{t}, v{t}")
    for r, t in Z: e(f"v_fma_f32 v{r}, v{t}, s60, v{r}")
    for r, t in Z: e(f"v_mul_f32 v{r}, s15, v{r}")
    e(f"v_lshlrev_b32 v{vk}, 31, v{lane}")
    e(f"v_or_b32 v{vk}, 0x3f003f00, v{vk}")
    e(f"v_cos_f32 v{dl}, v{t3}")
    e(f"v_sin_f32 v{dl+1}, v{t3}")
    def gen(n):
        if n % 14 == 0:
            for z in range(4):
                if n: e(f"v_fmamk_f32 v{bs+z}, v{t3}, {f32(float(n))}, v{bs+z}")
            for z in range(4):
                e(f"v_cos_f32 v{CM+2*z}, v{bs+z}")
                e(f"v_sin_f32 v{CM+2*z+1}, -v{bs+z}")
        else:
            for z in range(4): e(f"v_pk_mul_f32 {vr(TT+2*z,2)}, {vr(CM+2*z,2)}, {vr(dl,2)} op_sel:[0,0] op_sel_hi:[1,0]")
            for z in range(4): e(f"v_pk_fma_f32 {vr(CM+2*z,2)}, {vr(CM+2*z,2)}, {vr(dl,2)}, {vr(TT+2*z,2)} op_sel:[1,1,0] op_sel_hi:[0,1,1] neg_hi:[0,1,0]")
        for z in range(4): e(f"v_cvt_pk_bf16_f32 v{G[n]+z}, v{CM+2*z}, v{CM+2*z+1}")
        if n == 0: e(f"v_cndmask_b32 v{G[0]}, v{G[0]}, v{vk}, vcc")
    for n in range(NG0): gen(n)
    e("s_waitcnt lgkmcnt(0)")
    mk_srd(A, 44, 34, WS_BYTES)
    ty = {}
    for i in range(7):
        e(f"s_add_u32 m0, s57, {i*4096}")
        if i: e(f"s_add_u32 s13, s13, {64*4096}")
        ty[i] = e(f"buffer_load_dwordx4 v{vy}, s[44:47], s13 offen lds{LD}")
    A.nts = 2; A.ts()
    for n in range(NG0, 28): gen(n)
    e(f"v_bfe_u32 v{t0}, v{lane}, 2, 2")
    e(f"v_lshl_add_u32 v{t0}, v{hh}, 2, v{t0}")
    e(f"v_lshlrev_b32 v{t0}, 6, v{t0}")
    e(f"v_bfe_u32 v{t1}, v{lane}, 4, 1")
    e(f"v_lshl_add_u32 v{t0}, v{t1}, 5, v{t0}")
    e(f"v_and_b32 v{t1}, 3, v{lane}")
    e(f"v_lshl_add_u32 v{ta}, v{t1}, 3, v{t0}")
    A.ts()
    rt = {}
    def rd(n):
        if n >= 28: return
        if n == 0 and SP: A.wait_vm(ty[SP - 1]); e("s_barrier"); A.ts()
        if n == 4 * SP: A.wait_vm(ty[6]); e("s_barrier"); A.ts()
        f = LF[n % 4]
        e(f"ds_read_b64_tr_b16 {vr(f,2)}, v{ta} offset:{n*1024}")
        rt[n] = e(f"ds_read_b64_tr_b16 {vr(f+2,2)}, v{ta} offset:{n*1024+512}")
    rd(0); rd(1); rd(2)
    for n in range(28):
        A.wait_ld(rt[n])
        e(f"v_mfma_f32_32x32x16_bf16 {vr(acc,16)}, {vr(G[n],4)}, {vr(LF[n%4],4)}, {'0' if n == 0 else vr(acc,16)}")
        rd(n + 3)
    A.ts()
    for q in range(4): e(f"ds_write_b128 v{xw}, {vr(acc+4*q,4)} offset:{q*1024}")
    A.wait_all_ld()
    e("s_barrier")
    A.ts_flush(kidx)
    e("s_endpgm")
    A.label("k3_epi"); A.reset_counts()
    e(f"v_mul_u32_u24 v{vx}, 28672, v{t0}")
    e(f"v_lshlrev_b32 v{vb}, 4, v{hh}")
    e(f"v_add_u32 v{vx}, v{vx}, v{vb}")
    e("s_mul_i32 s61, s61, 14")
    e("s_add_u32 s61, s61, s9")
    e("s_lshl_b32 s61, s61, 11")
    e(f"s_add_u32 s61, s61, {PB}")
    e("s_lshl_b32 s10, s9, 6")
    e("s_lshl_b32 s59, s5, 10")
    e("s_add_u32 s59, s59, s8")
    e("s_mul_i32 s59, s59, 896")
    e("s_add_u32 s59, s59, s10")
    e(f"s_mov_b32 s14, {f32(2.0 / (2048 * 448))}")
    e("s_mov_b32 s15, 0xffff0000")
    e("s_mov_b32 s62, 0x3f80")
    e("s_mov_b32 s63, 0x3f800000")
    e("s_waitcnt lgkmcnt(0)")
    mk_srd(A, 44, 34, WS_BYTES)
    mk_srd(A, 36, 16, 1835008)
    if SB: e("s_load_dwordx16 s[64:79], s[30:31], s10")
    else: mk_srd(A, 48, 30, 896)
    if SLP: e(f"s_sleep {SLP}")
    tok = {}
    for qq in range(2):
        if not SB: e(f"buffer_load_dwordx4 {vr(B2+4*qq,4)}, v{vb}, s[48:51], s10 offen offset:{qq*32}")
        tok['x'] = e(f"buffer_load_dwordx4 {vr(X+4*qq,4)}, v{vx}, s[36:39], s59 offen offset:{qq*32}")
    for kq in range(4):
        if kq: e(f"s_add_u32 s61, s61, {64*28672}")
        for qq in range(2):
            tok[kq] = e(f"buffer_load_dwordx4 {vr(P[kq]+4*qq,4)}, v{l16}, s[44:47], s61 offen offset:{qq*1024}{LD}")
    A.nts = 2; A.ts()
    mk_srd(A, 52, 32, 1835008)
    if SB:
        e("s_waitcnt lgkmcnt(0)")
        for hf in range(2):
            if hf: e("s_mov_b32 exec_lo, 0")
            for r in range(8): e(f"v_mov_b32 v{B2+r}, s{64 + 4*(r>>1) + 2*hf + (r&1)}")
        e("s_mov_b32 exec_lo, -1")
    if SP: e("s_barrier")
    e("s_barrier"); A.ts()
    A.wait_vm(tok['x'])
    for r in ((X,) if SB else (X, B2)):
        for qq in range(2):
            for j in range(2): e(f"v_permlane32_swap_b32 v{r+4*qq+j}, v{r+4*qq+2+j}")
    def unp(src, first):
        if D2 and not first:
            for j in range(8):
                e(f"v_dot2c_f32_bf16 v{S+2*j}, s62, v{src+j}")
                e(f"v_dot2c_f32_bf16 v{S+2*j+1}, s63, v{src+j}")
            return
        for j in range(8):
            d = S if first else T
            e(f"v_lshlrev_b32 v{d+2*j}, 16, v{src+j}")
            e(f"v_and_b32 v{d+2*j+1}, s15, v{src+j}")
        if not first:
            for j in range(16): e(f"v_add_f32 v{S+j}, v{S+j}, v{T+j}")
    unp(X, True)
    unp(B2, False)
    for kq in range(4):
        A.wait_vm(tok[kq])
        unp(P[kq], False)
    A.ts()
    e("s_barrier")
    A.ts()
    rk = {}
    for q in range(4): rk[q] = e(f"ds_read_b128 {vr(acc+4*q,4)}, v{xw} offset:{q*1024}")
    for qq in range(2):
        for q in (2 * qq, 2 * qq + 1):
            A.wait_ld(rk[q])
            for j in range(4 * q, 4 * q + 4): e(f"v_fma_f32 v{S+j}, v{acc+j}, s14, v{S+j}")
        for j in range(4 * qq, 4 * qq + 4): e(f"v_cvt_pk_bf16_f32 v{X+j}, v{S+2*j}, v{S+2*j+1}")
        for j in range(2): e(f"v_permlane32_swap_b32 v{X+4*qq+j}, v{X+4*qq+2+j}")
        e(f"buffer_store_dwordx4 {vr(X+4*qq,4)}, v{vx}, s[52:55], s59 offen offset:{qq*32}{ST3}")
    A.ts_flush(kidx)
    e("s_endpgm")
    return nv
```

```python
import sys
from asmlib import *
from k1 import *
from k2 import *

def build(mode="v3", PD=12, bar_at=17, LD="", ST=" sc0 sc1", dbg=0, ra=7, rd=4, ST1=None, NX0=7, NQ1=1, PFW2=1, prio=1, PRIO=3, HPK=0, cpf=1, GS=0, XD=2, PC=2, PF=6, r1=0, r2=0, fb=1010130, STF=None, b0=0, NG0=4, SLP=2, MS=0, HS=0, NH1=14, HP2=3, BP=14, EB=0, D2=0, ST3="", WM=1, K3B=0, SP=4, SB=0):
    fb = [int(c) for c in str(fb)[1:]]
    A = Asm()
    A.dbg = bool(dbg); A.cpf = cpf
    L = []
    K = []
    A.raw('.amdgcn_target "amdgcn-amd-amdhsa--gfx950"\n.text')
    nv = gen_k1(A, "k1_kernel", ST if ST1 is None else ST1, NX0, NQ1, PFW2, PRIO, HPK, GS, XD, MS, HS, NH1, HP2, BP)
    assert nv <= 251; nv = 252
    L.append(("k1_kernel", 256, 512, K1_LDS)); K.append(kd("k1_kernel", nv, 102))
    if mode == "v3":
        gl = 114688
        prolog(A, "k2_kernel", 256, 231)
        A.e("s_cmp_ge_u32 s3, 4")
        A.e("s_cbranch_scc1 k2_fft")
        nv = gemm4(A, 1, PC, PF, LD, ST, 1, (r1, r2), b0)
        A.label("k2_fft"); A.reset_counts()
        A.e("s_cmp_ge_u32 s2, 225")
        A.e("s_cbranch_scc1 k2_warm" if WM else "s_cbranch_scc1 k2_kernel_end")
        A.e("s_sub_u32 s3, s3, 4")
        if prio: A.e("s_setprio 3")
        nv = max(nv, fft_block(A, 1, gl, lambda: A.e("s_barrier"), LD, ST if STF is None else STF, 1, 4, False, 6 + b0 - sum(fb), fb))
        if WM: A.e("s_endpgm"); k2_warm(A, WM)
        epilog(A, "k2_kernel"); assert nv <= 231; nv = 232
        L.append(("k2_kernel", 256, 512, gl + 16384)); K.append(kd("k2_kernel", nv, 102))
        if K3B:
            prolog(A, "k3_kernel", 256, 191)
            nv = k3b_block(A, 1, LD, 2, NG0, SLP, 1, SP, ST3, SB)
            epilog(A, "k3_kernel"); assert nv <= 191; nv = 192
            A.raw("code_end:")
            L.append(("k3_kernel", 256, 512, 28672 + 16384)); K.append(kd("k3_kernel", nv, 102))
        else:
            prolog(A, "k3_kernel", 224, 143)
            nv = k3_block(A, 1, LD, 2, NG0, SLP, EB, D2, ST3)
            epilog(A, "k3_kernel"); assert nv <= 143; nv = 144
            A.raw("code_end:")
            L.append(("k3_kernel", 224, 512, 57344 + 32768)); K.append(kd("k3_kernel", nv, 102))
    else:
        gl = max(PD*8192, 69632)
        prolog(A, "k2_kernel", 225, 207)
        A.e("s_cmp_ge_u32 s3, 4")
        A.e("s_cbranch_scc1 k2_fft")
        A.e("s_cmp_ge_u32 s2, 224")
        A.e("s_cbranch_scc1 k2_kernel_end")
        nv = gemm_block(A, 1, 28, 0, 'part', PD, bar_at, LD, ST, 1, (ra, rd), not prio)
        A.label("k2_fft"); A.reset_counts()
        A.e("s_sub_u32 s3, s3, 4")
        if prio: A.e("s_setprio 3")
        nv = max(nv, fft_block(A, 1, gl, lambda: A.e("s_barrier"), LD, ST, 1, 4, not prio))
        epilog(A, "k2_kernel"); assert nv <= 207; nv = 208
        L.append(("k2_kernel", 225, 512, gl + 8192)); K.append(kd("k2_kernel", nv, 102))
        prolog(A, "k3_kernel", 224, 167)
        nv = gemm_block(A, 1, 0, 7, 'final', 7, None, LD, ST)
        epilog(A, "k3_kernel"); assert nv <= 167; nv = 168
        A.raw("code_end:")
        L.append(("k3_kernel", 224, 256, 69632)); K.append(kd("k3_kernel", nv, 102))
    hdr = "".join(f"; @launch kernel={n} grid=({g},1,1) block=({b},1,1) lds={l}\n" for n, g, b, l in L)
    return hdr + A.text() + '.section .rodata,"a"\n' + "".join(K)

if __name__ == "__main__":
    out = sys.argv[1]
    kw = {}
    for a in sys.argv[2:]:
        k, v = a.split("=")
        kw[k] = int(v) if v.lstrip("-").isdigit() else v.replace("_", " ")
    open(out, "w").write(build(**kw))
```

```python
from asmlib import *
import struct
def f32(x): return "0x%08x" % struct.unpack("<I", struct.pack("<f", x))[0]

HF = 0
import os
PRE = int(os.environ.get("PRE", "0"))
IL = int(os.environ.get("IL", "3"))
HS_ = 229376 if IL & 1 else 114688
X1F = HF + 64 * HS_
Y1T = X1F + (0 if IL & 2 else 448 * 4096)
WT = Y1T + 448 * 4096
IDF = WT + 225 * 8192
F1T = IDF + 14 * 28 * 1024
F2T = F1T + 16384
WS_END = F2T + 4096
WS_BYTES = 268435456
OOB = 0x10000000
W2C = 24 << 20
XC = 26 << 20

def mk_srd(A, d, src, nbytes):
    A.e(f"s_mov_b32 s{d}, s{src}")
    A.e(f"s_and_b32 s{d+1}, s{src+1}, 0xffff")
    A.e(f"s_mov_b32 s{d+2}, {nbytes}")
    A.e(f"s_mov_b32 s{d+3}, 0x00020000")

def header(A, name):
    A.raw(f".globl {name}\n.p2align 8\n.type {name},@function\n{name}:")
    A.reset_counts()

def load_args(A):
    A.e("s_load_dwordx16 s[16:31], s[0:1], 0")
    A.e("s_load_dwordx2 s[32:33], s[0:1], 64")
    A.e("s_load_dwordx2 s[34:35], s[0:1], 80")

def code_pf(A, name, vd):
    if not A.cpf: return
    A.e("s_getpc_b64 s[36:37]")
    A.raw(f"{name}_pc:")
    A.e(f"v_lshlrev_b32 v{vd}, 7, v0")
    A.e(f"v_min_u32 v{vd}, code_end-{name}_pc-4, v{vd}")
    A.e(f"global_load_dword v{vd}, v{vd}, s[36:37]")

GC0 = -2.0 * 0.7978845608028654 * 1.4426950408889634
GC1 = GC0 * 0.044715

L_W1 = 0
L_DF = 114688
L_XT = L_DF + 28 * 1024
L_CS = L_XT + 16384
L_RS = L_CS + 2048
K1_LDS = L_RS + 1024

def gen_k1(A, name, ST="", NX0=4, NQ1=1, PFW2=1, PRIO=0, HPK=0, GS=8, XD=0, MSL=0, HS=0, NH1=8, HP2=0, BP=14, CPY=0):
    header(A, name)
    e = A.e
    e("s_cmp_ge_u32 s2, 256")
    e(f"s_cbranch_scc1 {name}_end")
    load_args(A)
    code_pf(A, name, 251)
    A.nts = 0; A.ts(True); A.ts()
    R = Regs(1)
    lane = R.alloc()
    t0, t1, t2, t3 = [R.alloc() for _ in range(4)]
    e(f"v_lshrrev_b32 v{t0}, 6, v0")
    e(f"v_and_b32 v{lane}, 63, v0")
    e(f"v_readfirstlane_b32 s3, v{t0}")
    e("s_cmp_ge_u32 s2, 224")
    e(f"s_cbranch_scc1 {name}_misc")
    MF = "v_mfma_f32_32x32x16_bf16"
    MS = "v_mfma_f32_16x16x32_bf16"
    def mix(x, y):
        o = []
        nx, ny = len(x), len(y)
        i = j_ = 0
        while i < nx or j_ < ny:
            if j_ >= ny or (i < nx and i * ny <= j_ * nx): o.append(x[i]); i += 1
            else: o.append(y[j_]); j_ += 1
        return o
    l16, hh, t31 = [R.alloc() for _ in range(3)]
    SEL = R.alloc(4); HP = R.alloc(8); g8 = R.alloc(8); PC = R.alloc(2); PS = R.alloc(2)
    g = [g8 + i for i in range(8)]
    ta = [R.alloc() for _ in range(4)]
    e("s_and_b32 s69, s3, 3")
    e("s_and_b32 s4, s2, 7")
    e("s_lshr_b32 s5, s2, 3")
    e("s_and_b32 s6, s5, 1")
    e("s_bfe_u32 s12, s5, 0x10001")
    e("s_lshr_b32 s13, s5, 2")
    e("s_and_b32 s7, s4, 1")
    e("s_mul_i32 s7, s7, 7")
    e("s_add_u32 s7, s7, s13")
    e("s_lshr_b32 s8, s4, 1")
    e("s_lshl_b32 s8, s8, 1")
    e("s_add_u32 s8, s8, s12")
    e("s_lshl_b32 s8, s8, 2")
    e("s_add_u32 s8, s8, s69")
    def r8pc():
        e(f"v_lshrrev_b32 v{t0}, 3, v{lane}")
        e(f"v_and_b32 v{t1}, 7, v{lane}")
    def common2():
        e(f"v_lshlrev_b32 v{l16}, 4, v{lane}")
        e(f"v_and_b32 v{t31}, 31, v{lane}")
        e(f"v_lshrrev_b32 v{hh}, 5, v{lane}")
        e(f"s_mov_b32 s15, {f32(1.0/448)}")
        e("s_lshl_b32 s9, s69, 12")
        e(f"s_add_u32 s9, s9, {L_XT}")
        e("s_lshl_b32 s63, s8, 1")
        e("s_add_u32 s63, s63, s6")
        e(f"s_mul_i32 s63, s63, {HS_}")
        e("s_lshl_b32 s64, s7, 13")
        e("s_add_u32 s63, s63, s64")
        e("s_lshl_b32 s64, s6, 12")
        e("s_add_u32 s63, s63, s64")
        e("s_xor_b32 s64, s63, 4096")
        e("s_lshl_b32 s62, s69, 8")
        e(f"s_add_u32 s62, s62, {L_RS}")
    def common3():
        e(f"v_bfe_u32 v{t0}, v{lane}, 2, 2")
        e(f"v_lshl_add_u32 v{t1}, v{hh}, 3, v{t0}")
        e(f"v_lshlrev_b32 v{t1}, 7, v{t1}")
        e(f"v_bfe_u32 v{t2}, v{lane}, 3, 1")
        e(f"v_lshl_add_u32 v{t1}, v{t2}, 6, v{t1}")
        e(f"v_bfe_u32 v{t2}, v{lane}, 4, 1")
        e(f"v_lshl_add_u32 v{t1}, v{t2}, 5, v{t1}")
        e(f"v_and_b32 v{t2}, 3, v{lane}")
        e(f"v_lshl_add_u32 v{ta[0]}, v{t2}, 3, v{t1}")
        e(f"v_lshrrev_b32 v{t0}, 2, v{lane}")
        e(f"v_xor_b32 v{t0}, v{t0}, v{lane}")
        e(f"v_and_b32 v{t0}, 4, v{t0}")
        e(f"v_cmp_eq_u32 vcc, 0, v{t0}")
        e(f"v_mov_b32 v{t0}, 0x3f803f80")
        for i in range(4):
            e(f"v_cndmask_b32 v{SEL+i}, 0, v{t0}, vcc")
    def gelu(b, a, pk, qs):
        S = []
        for q in qs:
            if pk:
                ix = [a + 4 * q, a + 4 * q + 2]
                tm = [g[(q & 1) * 4], g[(q & 1) * 4 + 2]]
                S += [f"v_pk_mul_f32 {vr(t,2)}, {vr(x,2)}, {vr(x,2)}" for x, t in zip(ix, tm)]
                S += [f"v_pk_fma_f32 {vr(t,2)}, {vr(t,2)}, {vr(PC,2)}, {vr(PC,2)} op_sel:[0,0,1] op_sel_hi:[1,0,1]" for t in tm]
                S += [f"v_pk_mul_f32 {vr(t,2)}, {vr(t,2)}, {vr(x,2)}" for x, t in zip(ix, tm)]
                for t in tm: S += [f"v_exp_f32 v{t}, v{t}", f"v_exp_f32 v{t+1}, v{t+1}"]
                S += [f"v_pk_fma_f32 {vr(t,2)}, {vr(t,2)}, {vr(PS,2)}, {vr(PS,2)} op_sel_hi:[1,0,0]" for t in tm]
                for t in tm: S += [f"v_rcp_f32 v{t}, v{t}", f"v_rcp_f32 v{t+1}, v{t+1}"]
                S += [f"v_pk_mul_f32 {vr(t,2)}, {vr(t,2)}, {vr(x,2)}" for x, t in zip(ix, tm)]
            else:
                ix = [a + 4 * q + i for i in range(4)]
                tt = g[(q & 1) * 4:(q & 1) * 4 + 4]
                tm = [tt[0], tt[2]]
                Z = list(zip(ix, tt))
                S += [f"v_mul_f32 v{t}, v{x}, v{x}" for x, t in Z]
                S += [f"v_fma_f32 v{t}, v{t}, v{PC}, v{PC+1}" for x, t in Z]
                S += [f"v_mul_f32 v{t}, v{t}, v{x}" for x, t in Z]
                S += [f"v_exp_f32 v{t}, v{t}" for x, t in Z]
                S += [f"v_fma_f32 v{t}, v{t}, v{PS}, v{PS}" for x, t in Z]
                S += [f"v_rcp_f32 v{t}, v{t}" for x, t in Z]
                S += [f"v_mul_f32 v{t}, v{t}, v{x}" for x, t in Z]
            S += [f"v_cvt_pk_bf16_f32 v{HP+2*q+i}, v{tm[i]}, v{tm[i]+1}" for i in range(2)]
            if q & 1:
                o = (2 * b + (q >> 1)) * 1024
                S.append(f"buffer_store_dwordx4 {vr(HP+4*(q>>1),4)}, v{l16}, s[44:47], s{63 if o < 4096 else 64} offen offset:{o % 4096}{ST}")
        return S
    def gelu8(b, a, h_):
        Z = [(a + 8 * h_ + i, g[i]) for i in range(8)]
        S = [f"v_mul_f32 v{t}, v{x}, v{x}" for x, t in Z]
        S += [f"v_fma_f32 v{t}, v{t}, v{PC}, v{PC+1}" for x, t in Z]
        for x, t in Z: S += [f"v_mul_f32 v{t}, v{t}, v{x}"]
        S2 = []
        for x, t in Z: S2 += [f"v_exp_f32 v{t}, v{t}"]
        S3 = [f"v_fma_f32 v{t}, v{t}, v{PS}, v{PS}" for x, t in Z]
        S4 = [f"v_rcp_f32 v{t}, v{t}" for x, t in Z]
        S5 = [f"v_mul_f32 v{t}, v{t}, v{x}" for x, t in Z]
        S = S[:18] + mix(S2[:6], S[18:]) + S2[6:] if False else S + S2
        S += S3[:2] + mix(S4[:6], S3[2:]) + mix(S4[6:], S5[:2]) + S5[2:]
        S += [f"v_cvt_pk_bf16_f32 v{HP+4*h_+i}, v{g[2*i]}, v{g[2*i+1]}" for i in range(4)]
        o = (2 * b + h_) * 1024
        S.append(f"buffer_store_dwordx4 {vr(HP+4*h_,4)}, v{l16}, s[44:47], s{63 if o < 4096 else 64} offen offset:{o % 4096}{ST}")
        return S
    pcs = [f"v_mul_f32 v{PC+1}, {f32(GC0)}, v{PS+1}", f"v_mul_f32 v{PC}, v{PS+1}, v{PS+1}",
           f"v_mul_f32 v{PC}, v{PC}, v{PC+1}", f"v_mul_f32 v{PC}, {f32(0.044715)}, v{PC}"]
    XOFF = [0, L_DF - L_XT]
    Rsave = R.n
    CFg = [(Rsave + 3) // 4 * 4 + 4 * i for i in range(4)]
    jk = [CFg[3] + 4 + i for i in range(8)]
    common2()
    e("s_lshl_b32 s14, s7, 5")
    e(f"v_add_u32 v{t0}, s14, v{t31}")
    e(f"v_lshrrev_b32 v{t1}, 1, v{t0}")
    e(f"v_and_b32 v{t2}, 1, v{t0}")
    e(f"v_cmp_eq_u32 vcc, 1, v{t0}")
    e(f"v_mov_b32 v{t3}, 224")
    e(f"v_cndmask_b32 v{t1}, v{t1}, v{t3}, vcc")
    e(f"v_cndmask_b32 v{t2}, v{t2}, 0, vcc")
    e(f"v_cvt_f32_u32 v{t1}, v{t1}")
    e(f"v_cvt_f32_u32 v{t2}, v{t2}")
    e(f"v_mul_f32 v{t2}, 0x3e800000, v{t2}")
    for j_ in range(1, 8):
        e(f"v_mul_f32 v{jk[j_]}, {f32(j_/448.0)}, v{t1}")
    e("s_mul_i32 s10, s3, 3")
    e("s_sub_u32 s11, s3, 4")
    e("s_max_i32 s11, s11, 0")
    e("s_add_u32 s10, s10, s11")
    e("s_lshl_b32 s66, s10, 10")
    e("s_lshl_b32 s10, s10, 4")
    e("s_lshl_b32 s11, s13, 6")
    e("s_add_u32 s10, s10, s11")
    e(f"v_lshlrev_b32 v{t0}, 3, v{hh}")
    e(f"v_add_u32 v{t0}, s10, v{t0}")
    e(f"v_cvt_f32_u32 v{t0}, v{t0}")
    e(f"v_mul_f32 v{t0}, v{t0}, v{t1}")
    e(f"v_mul_f32 v{t1}, {f32(16.0)}, v{t1}")
    e(f"s_mov_b32 s65, {f32(-448.0)}")
    e(f"s_add_u32 s66, s66, {L_DF}")
    e(f"v_add_u32 v{jk[0]}, s66, v{l16}")
    def dgen(i):
        fr = CFg[i % 4]
        e(f"v_mul_f32 v{t3}, s15, v{t0}")
        e(f"v_floor_f32 v{t3}, v{t3}")
        e(f"v_fma_f32 v{t3}, v{t3}, s65, v{t0}")
        e(f"v_fma_f32 v{g[0]}, v{t3}, s15, v{t2}")
        for j_ in range(1, 8):
            e(f"v_add_f32 v{g[j_]}, v{g[0]}, v{jk[j_]}")
        for j_ in range(8):
            e(f"v_cos_f32 v{g[j_]}, v{g[j_]}")
        e(f"v_add_f32 v{t0}, v{t0}, v{t1}")
        for j_ in range(4):
            e(f"v_cvt_pk_bf16_f32 v{fr+j_}, v{g[2*j_]}, v{g[2*j_+1]}")
        e(f"ds_write_b128 v{jk[0]}, {vr(fr,4)} offset:{i*1024}")
    for i in range(3): dgen(i)
    e("s_cmp_ge_u32 s3, 4")
    e(f"s_cbranch_scc1 {name}_help")
    XF = R.alloc(112)
    acc = [R.alloc(16), R.alloc(16)]
    GR = R.alloc(16); SM = R.alloc(4)
    NB = 8
    AF = [R.alloc(4) for _ in range(NB)]
    AX = R.alloc(4); BX = R.alloc(4)
    xw0, xw1, vdf = HP, HP + 1, HP + 2
    xr = [acc[0] + i for i in range(4)]
    vxo, vxc = HP + 3, HP + 4
    vst, vrs, vgr, vax, vxa, vxb = [R.alloc() for _ in range(6)]
    if PRIO: e(f"s_setprio {PRIO}")
    r8pc()
    e("s_lshl_b32 s10, s6, 10")
    e("s_add_u32 s10, s10, s8")
    e("s_mul_i32 s52, s10, 896")
    for i in range(1, 4):
        e(f"s_add_u32 s{52+i}, s52, {i*(28672 if XD == 2 else 229376)}")
    e("s_lshl_b32 s59, s13, 7")
    if XD == 1:
        e(f"v_mul_u32_u24 v{vxo}, 28672, v{t31}")
        e(f"v_lshl_add_u32 v{vxo}, v{hh}, 4, v{vxo}")
    elif XD == 2:
        e(f"v_bfe_u32 v{t2}, v{lane}, 2, 3")
        e(f"v_mul_u32_u24 v{vxo}, {4*28672}, v{t2}")
        e(f"v_and_b32 v{t2}, 3, v{lane}")
        e(f"v_lshl_add_u32 v{vxo}, v{t2}, 5, v{vxo}")
        e(f"v_lshl_add_u32 v{vxo}, v{hh}, 4, v{vxo}")
        e("s_mov_b32 s48, 0x55555555"); e("s_mov_b32 s49, 0x55555555")
        e("s_mov_b32 s50, 0x33333333"); e("s_mov_b32 s51, 0x33333333")
    else:
        e(f"v_mul_u32_u24 v{vxo}, 28672, v{t0}")
        e(f"v_lshl_add_u32 v{vxo}, v{t1}, 4, v{vxo}")
    A.ts()
    e("s_waitcnt lgkmcnt(0)")
    A.ld_done = A.nld
    mk_srd(A, 36, 16, 1835008)
    xtok = {}
    def xload(c):
        e(f"v_add_u32 v{vxc}, s59, v{vxo}")
        for i in range(4):
            if XD == 1: xtok[c, i] = e(f"buffer_load_dwordx4 {vr(XF+16*c+4*i,4)}, v{vxc}, s[36:39], s52 offen offset:{32*i}")
            else: xtok[c, i] = e(f"buffer_load_dwordx4 {vr(XF+16*c+4*i,4)}, v{vxc}, s[36:39], s{52+i} offen")
        e("s_add_u32 s59, s59, 128")
        e("s_cmp_eq_u32 s59, 896")
        e("s_cselect_b32 s59, 0, s59")
    for c in range(NX0): xload(c)
    A.ts()
    if NX0 == 7: e("s_barrier")
    mk_srd(A, 44, 34, WS_BYTES)
    if not XD:
        e(f"v_lshrrev_b32 v{t2}, 1, v{t0}")
        e(f"v_xor_b32 v{t2}, v{t2}, v{t1}")
        e(f"v_lshlrev_b32 v{t2}, 4, v{t2}")
        e(f"v_lshl_add_u32 v{xw0}, v{t0}, 7, v{t2}")
        e(f"v_add_u32 v{xw0}, s9, v{xw0}")
        e(f"v_xor_b32 v{xw1}, 64, v{xw0}")
        e(f"v_bfe_u32 v{t2}, v{lane}, 1, 3")
        e(f"v_xor_b32 v{t2}, v{t2}, v{hh}")
        e(f"v_lshlrev_b32 v{t2}, 4, v{t2}")
        e(f"v_lshl_add_u32 v{xr[0]}, v{t31}, 7, v{t2}")
        e(f"v_add_u32 v{xr[0]}, s9, v{xr[0]}")
        for q in range(1, 4):
            e(f"v_xor_b32 v{xr[q]}, {q*32}, v{xr[0]}")
    common3()
    e(f"v_xor_b32 v{ta[1]}, 64, v{ta[0]}")
    e(f"v_add_u32 v{ta[2]}, 57344, v{ta[0]}")
    e(f"v_add_u32 v{ta[3]}, 57344, v{ta[1]}")
    e(f"v_lshrrev_b32 v{t0}, 3, v{t31}")
    e(f"v_lshlrev_b32 v{t0}, 10, v{t0}")
    e(f"v_lshl_add_u32 v{t0}, v{t31}, 4, v{t0}")
    e(f"v_bfe_u32 v{t1}, v{t31}, 2, 1")
    e(f"v_lshl_add_u32 v{t0}, v{t1}, 9, v{t0}")
    e(f"v_and_b32 v{t1}, 3, v{t31}")
    e(f"v_lshl_add_u32 v{t0}, v{t1}, 2, v{t0}")
    e(f"v_add_u32 v{vgr}, s9, v{t0}")
    for a_ in (AX, BX):
        e(f"v_mov_b32 v{a_+2}, 0")
        e(f"v_mov_b32 v{a_+3}, 0")
    e("s_lshl_b32 s14, s7, 5")
    e(f"v_add_u32 v{t0}, s14, v{t31}")
    e(f"v_cmp_eq_u32 vcc, 0, v{t0}")
    e(f"v_mov_b32 v{t3}, 0x43e0")
    e(f"v_mov_b32 v{AX+1}, 0")
    e(f"v_cndmask_b32 v{AX}, 0, v{t3}, vcc")
    e(f"v_add_u32 v{vdf}, {L_DF}, v{l16}")
    e(f"v_lshlrev_b32 v{vax}, 3, v{t31}")
    e(f"v_add_u32 v{vax}, {L_CS}, v{vax}")
    e(f"v_add_u32 v{vxa}, s9, v{l16}")
    e(f"v_add_u32 v{vxb}, {XOFF[1]}, v{vxa}")
    e(f"v_lshlrev_b32 v{vst}, 12, v{t31}")
    e(f"v_lshl_add_u32 v{vst}, v{hh}, 9, v{vst}")
    e("s_lshl_b32 s67, s7, 17")
    e("s_lshl_b32 s68, s6, 11")
    e("s_add_u32 s67, s67, s68")
    e("s_lshl_b32 s68, s8, 4")
    e("s_add_u32 s67, s67, s68")
    e(f"s_add_u32 s67, s67, {X1F}")
    e(f"v_lshl_add_u32 v{vrs}, v{hh}, 4, s62")
    D = acc[1]
    xt = {}; ft = {}
    def trw(c, i):
        A.wait_vm(xtok[c, i])
        e(f"ds_write_b128 v{xw1 if i&1 else xw0}, {vr(XF+16*c+4*i,4)} offset:{i*1024}")
    def trr(c, q): xt[4*c+q] = e(f"ds_read_b128 {vr(XF+16*c+4*q,4)}, v{xr[q]}")
    def dfr(c, q): ft[4*c+q] = e(f"ds_read_b128 {vr(AF[(4*c+q)%8],4)}, v{vdf} offset:{(4*c+q)*1024}")
    A.ts()
    if NX0 < 7: e("s_barrier")
    for q in range(4): dfr(0, q)
    def dtr(c):
        X = [XF + 16 * c + 4 * i for i in range(4)]; T = [acc[0] + 4 * i for i in range(4)]
        F = []
        def op(d, s0, s1, qp, pre=None, w=None):
            for j in range(4):
                def f(j=j):
                    if j == 0 and w is not None: A.wait_vm(xtok[c, w])
                    if j == 0 and pre: e(pre)
                    e(f"v_cndmask_b32_dpp v{d+j}, v{s0+j}, v{s1+j}, vcc quad_perm:{qp} row_mask:0xf bank_mask:0xf")
                F.append(f)
        p1, p2 = "[1,0,3,2]", "[2,3,0,1]"
        op(T[0], X[1], X[0], p1, "s_mov_b64 vcc, s[48:49]", 1); op(T[2], X[3], X[2], p1, None, 3)
        op(T[1], X[0], X[1], p1, "s_not_b64 vcc, vcc"); op(T[3], X[2], X[3], p1)
        op(X[0], T[2], T[0], p2, "s_mov_b64 vcc, s[50:51]"); op(X[1], T[3], T[1], p2)
        op(X[2], T[0], T[2], p2, "s_not_b64 vcc, vcc"); op(X[3], T[1], T[3], p2)
        return F
    if not XD:
        for i in range(4): trw(0, i)
        for q in range(4): trr(0, q)
    if XD == 2:
        for f in dtr(0): f()
        A.ts()
        for c in range(7):
            if c + NX0 < 7: xload(c + NX0)
            if c + NX0 == 6: e("s_barrier")
            ops = dtr(c + 1) if c < 6 else []
            def fl(k):
                for _ in range(k):
                    if ops: ops.pop(0)()
            for q in range(4):
                ks = 4 * c + q
                x_ = vr(XF+4*ks, 4)
                e(f"{MF} {vr(GR,16)}, {x_}, {x_}, {'0' if ks == 0 else vr(GR,16)}")
                fl(3)
                e(f"{MS} {vr(SM,4)}, {vr(SEL,4)}, {x_}, {'0' if ks == 0 else vr(SM,4)}")
                fl(1)
                A.wait_ld(ft[ks])
                e(f"{MF} {vr(D,16)}, {x_}, {vr(AF[ks%8],4)}, {'0' if ks == 0 else vr(D,16)}")
                if c < 6: dfr(c + 1, q)
                fl(4)
    if XD != 2: A.ts()
    for c in range(7 if XD != 2 else 0):
        ops = []
        if c < 6:
            ops = [(lambda i=i: trw(c + 1, i)) for i in range(4)] + [(lambda q=q: trr(c + 1, q)) for q in range(4)] + [(lambda q=q: dfr(c + 1, q)) for q in range(4)]
            if XD: ops = [None] * 8 + ops[8:]
        if c + NX0 < 7: xload(c + NX0)
        for q in range(4):
            ks = 4 * c + q
            x_ = vr(XF+4*ks, 4)
            if XD: A.wait_vm(xtok[c, q])
            else: A.wait_ld(xt[ks])
            e(f"{MF} {vr(GR,16)}, {x_}, {x_}, {'0' if ks == 0 else vr(GR,16)}")
            for _ in range(2):
                if ops:
                    o_ = ops.pop(0)
                    if o_: o_()
            e(f"{MS} {vr(SM,4)}, {vr(SEL,4)}, {x_}, {'0' if ks == 0 else vr(SM,4)}")
        for q in range(4):
            ks = 4 * c + q
            A.wait_ld(ft[ks])
            e(f"{MF} {vr(D,16)}, {vr(XF+4*ks,4)}, {vr(AF[ks%8],4)}, {'0' if ks == 0 else vr(D,16)}")
            if ops: ops.pop(0)()
    A.ts()
    e("s_barrier")
    def stats():
        ssum, ssq = g[0], g[1]
        F = [(lambda q=q: e(f"ds_write_b128 v{vxa}, {vr(GR+4*q,4)} offset:{q*1024}")) for q in range(4)]
        tk = {}
        def rd(): tk[0] = e(f"ds_read_b32 v{ssq}, v{vgr}")
        F += [rd, lambda: e(f"v_mul_f32 v{ssum}, s15, v{SM}"),
              lambda: e(f"v_cmp_gt_u32 vcc, 32, v{lane}"), lambda: e(f"v_lshl_add_u32 v{t1}, v{t31}, 2, s62"),
              lambda: e(f"v_cvt_pk_bf16_f32 v{BX}, -v{ssum}, -v{ssum}"), None, None, None, None, None, None,
              lambda: A.wait_ld(tk[0])]
        seq = [f"v_mul_f32 v{ssq}, s15, v{ssq}",
            f"v_fma_f32 v{ssq}, -v{ssum}, v{ssum}, v{ssq}",
            f"v_max_f32 v{ssq}, 0, v{ssq}",
            f"v_cvt_pk_bf16_f32 v{t0}, v{ssq}, v{ssq}",
            f"v_lshlrev_b32 v{t0}, 16, v{t0}",
            f"v_add_f32 v{t0}, {f32(1e-5)}, v{t0}",
            f"v_cvt_pk_bf16_f32 v{t0}, v{t0}, v{t0}",
            f"v_lshlrev_b32 v{t0}, 16, v{t0}",
            f"v_sqrt_f32 v{t0}, v{t0}",
            f"v_cndmask_b32 v{BX}, 0, v{BX}, vcc",
            f"v_cvt_pk_bf16_f32 v{BX+1}, -v{ssum}, v{t0}",
            f"v_and_b32 v{PS}, 0xffff0000, v{BX+1}",
            f"v_rcp_f32 v{PS+1}, v{PS}",
            f"v_cndmask_b32 v{BX+1}, 0, v{BX+1}, vcc",
            f"ds_write_b32 v{t1}, v{PS} offset:128",
            f"ds_write_b32 v{t1}, v{PS+1}",
            f"{MF} {vr(D,16)}, {vr(BX,4)}, {vr(AX,4)}, {vr(D,16)}"]
        return F + [(lambda s=s: e(s)) for s in seq]
    def dft_epi():
        F = []
        tk = {}
        for h_ in range(2):
            def rd(h_=h_):
                e(f"ds_read_b128 {vr(g8,4)}, v{vrs} offset:{h_*64}")
                tk[h_] = e(f"ds_read_b128 {vr(g8+4,4)}, v{vrs} offset:{h_*64+32}")
            F += [rd, None, None, None, None]
            def ml(i, h_=h_):
                def f():
                    A.wait_ld(tk[h_])
                    e(f"v_mul_f32 v{g8+i}, v{g8+i}, v{D+8*h_+i}")
                return f
            F += [ml(i) for i in range(8)]
            F += [(lambda i=i, h_=h_: e(f"v_cvt_pk_bf16_f32 v{HP+4*h_+i}, v{g8+2*i}, v{g8+2*i+1}")) for i in range(4)]
            F.append(lambda h_=h_: e(f"buffer_store_dwordx4 {vr(HP+4*h_,4)}, v{vst}, s[44:47], s67 offen offset:{h_*1024}{ST}"))
        return F
    steps = [(b, ks) for b in range(4) for ks in range(28)]
    rtok = {}
    def issue_read(n):
        if n >= len(steps): return
        b, ks = steps[n]
        f = AF[n % NB]
        e(f"ds_read_b64_tr_b16 {vr(f,2)}, v{ta[b]} offset:{ks*2048}")
        rtok[n] = e(f"ds_read_b64_tr_b16 {vr(f+2,2)}, v{ta[b]} offset:{ks*2048+512}")
    PF = 4
    for n in range(PF):
        issue_read(n)
    n = 0
    axt = {}
    for b in range(4):
        A.ts()
        def axr(b=b): axt[b] = e(f"ds_read_b64 {vr(AX,2)}, v{vax} offset:{b*512}")
        if b == 0:
            fill = stats() + dft_epi() + [(lambda s=s: e(s)) for s in pcs]
            fill.insert(len(fill) - BP, lambda: e("s_barrier"))
            fill += [lambda: e("s_barrier"), axr] + [None] * 5
        else:
            wt = {}
            def aw(q, b=b): wt[0] = e(f"ds_write_b128 v{vxb if (b-1)&1 else vxa}, {vr(acc[(b-1)&1]+4*q,4)} offset:{q*1024}")
            def bar():
                A.wait_ld(wt[0]); e("s_barrier")
            gl = []
            for s_ in gelu8(b - 1, acc[(b-1)&1], 1): gl += [(lambda s_=s_: e(s_))] + ([None] if s_.startswith(TRANS) else [])
            fill = [None] * 5 + [(lambda q=q: aw(q)) for q in range(2)] + gl[:6] + [bar, axr] + gl[6:] + [None] * 4
            if GS == 0: fill = [None] + [(lambda q=q: aw(q)) for q in range(4)] + [None, bar, axr] + [None] * 20
        nf = len(fill)
        fi = 0
        for ks in range(28):
            issue_read(n + PF)
            if n % 2 == 0: A.wait_ld(rtok[n + 1])
            f = AF[n % NB]
            c_ = "0" if ks == 0 else vr(acc[b & 1], 16)
            e(f"{MF} {vr(acc[b&1],16)}, {vr(f,4)}, {vr(XF+4*ks,4)}, {c_}")
            tgt = (nf * (ks + 1) + 27) // 28
            while fi < tgt:
                if fill[fi]: fill[fi]()
                fi += 1
            n += 1
        A.wait_ld(axt[b])
        e(f"{MF} {vr(acc[b&1],16)}, {vr(AX,4)}, {vr(BX,4)}, {vr(acc[b&1],16)}")
    A.ts()
    for q in range(2): wt3 = e(f"ds_write_b128 v{vxb}, {vr(acc[1]+4*q,4)} offset:{q*1024}")
    gl = gelu(3, acc[1], True, (2, 3))
    for s_ in gl[:6]: e(s_)
    A.wait_ld(wt3)
    e("s_barrier")
    for s_ in gl[6:]: e(s_)
    A.ts_flush(0)
    e("s_endpgm")
    nv0 = R.n
    A.label(f"{name}_help")
    A.reset_counts()
    A.nts = 2
    R.n = Rsave
    CF = [R.alloc(4) for _ in range(8)]
    if HPK: e(f"s_setprio {HPK}")
    CA = R.alloc(4); HA = R.alloc(16)
    vwA, vwB, b1r, vxa, vax, vpw, vpr = [R.alloc() for _ in range(7)]
    dgen(3)
    r8pc()
    e(f"v_lshlrev_b32 v{t2}, 1, v{t0}")
    e(f"v_and_b32 v{t2}, 4, v{t2}")
    e(f"v_xor_b32 v{t2}, v{t2}, v{t1}")
    e(f"v_mul_u32_u24 v{vwA}, 3584, v{t0}")
    e(f"v_lshl_add_u32 v{vwA}, v{t2}, 4, v{vwA}")
    e("s_lshl_b32 s14, s6, 7")
    e(f"v_add_u32 v{vwA}, s14, v{vwA}")
    e(f"v_xor_b32 v{vwB}, 128, v{vwA}")
    e("s_mul_i32 s56, s69, 28672")
    e("s_lshl_b32 s10, s7, 8")
    e("s_add_u32 s56, s56, s10")
    e("s_add_u32 s10, s10, s14")
    e("s_lshl_b32 s11, s69, 6")
    e("s_xor_b32 s10, s10, s11")
    e("s_mul_i32 s57, s12, 28672")
    e("s_lshl_b32 s58, s69, 10")
    e("s_add_u32 s57, s57, s58")
    e("s_xor_b32 s58, s57, 28672")
    e("s_mul_i32 s60, s12, 7")
    e("s_lshl_b32 s61, s13, 1")
    e("s_add_u32 s60, s60, s61")
    e("s_cmp_ge_u32 s60, 14")
    e("s_cselect_b32 s61, 14, 0")
    e("s_sub_u32 s60, s60, s61")
    e("s_mul_i32 s60, s60, 114688")
    e("s_add_u32 s60, s60, s56")
    e(f"s_add_u32 s61, s56, {14*114688}")
    common3()
    e(f"v_mul_u32_u24 v{t0}, {28672-1024}, v{hh}")
    e("s_lshl_b32 s12, s69, 10")
    e(f"v_add3_u32 v{ta[0]}, v{ta[0]}, v{t0}, s12")
    e(f"v_xor_b32 v{ta[1]}, 64, v{ta[0]}")
    e(f"v_add_u32 v{ta[2]}, 57344, v{ta[0]}")
    e(f"v_add_u32 v{ta[3]}, 57344, v{ta[1]}")
    e(f"v_add_u32 v{vxa}, s9, v{l16}")
    e("s_lshl_b32 s12, s69, 2")
    e(f"s_add_u32 s12, s12, {L_CS}")
    e(f"v_lshl_add_u32 v{vpw}, v{t31}, 4, s12")
    e("s_lshl_b32 s12, s69, 9")
    e(f"s_add_u32 s12, s12, {L_CS}")
    e(f"v_lshl_add_u32 v{vpr}, v{t31}, 4, s12")
    e(f"v_lshl_add_u32 v{vax}, v{t31}, 3, s12")
    e(f"v_lshl_add_u32 v{t3}, v{t31}, 2, s62")
    e("s_waitcnt lgkmcnt(0)")
    A.ld_done = A.nld
    mk_srd(A, 40, 24, 1605632)
    mk_srd(A, 44, 34, WS_BYTES)
    mk_srd(A, 48, 26, 3584)
    A.ts()
    if NX0 < 7: e("s_barrier")
    e("s_barrier")
    wtok = {}
    def wload(p, i):
        if p == 0:
            if i == 0:
                e("s_mov_b32 s16, s60")
            else:
                e(f"s_add_u32 s{16+i}, s{15+i}, 114688")
                e(f"s_cmp_eq_u32 s{16+i}, s61")
                e(f"s_cselect_b32 s{16+i}, s56, s{16+i}")
        e(f"s_add_u32 m0, s{57 if i < 7 else 58}, {L_W1 + p*57344 + (i%7)*4096}")
        wtok[p] = e(f"buffer_load_dwordx4 v{vwB if p else vwA}, s[40:43], s{16+i} offen lds")
    if HS: e(f"s_sleep {HS}")
    e(f"v_lshlrev_b32 v{t2}, 1, v{t31}")
    e(f"buffer_load_ushort v{b1r}, v{t2}, s[48:51], s10 offen")
    for i in range(14): wload(0, i)
    for i in range(NH1): wload(1, i)
    A.ts()
    tk = {}
    def rdc(n_):
        b_, i = n_ // 7, n_ % 7
        if n_ % 14 == 0:
            A.wait_vm(wtok[n_ // 14]); A.ts()
        c_ = CF[n_ % 8]
        e(f"ds_read_b64_tr_b16 {vr(c_,2)}, v{ta[b_]} offset:{i*4096}")
        tk[n_] = e(f"ds_read_b64_tr_b16 {vr(c_+2,2)}, v{ta[b_]} offset:{i*4096+512}")
    def colsum(hf):
        for i in range(6): rdc(14 * hf + i)
        for i in range(14):
            n_ = 14 * hf + i
            A.wait_ld(tk[n_])
            ca = vr(HA + 4 * (n_ // 7), 4)
            e(f"{MS} {ca}, {vr(SEL,4)}, {vr(CF[n_%8],4)}, {'0' if n_ % 7 == 0 else ca}")
            if i + 6 < 14: rdc(n_ + 6)
        if hf:
            for b_ in range(4): e(f"ds_write_b32 v{vpw}, v{HA+4*b_} offset:{b_*512}")
            A.wait_all_ld()
    def axbuild():
        e(f"ds_read_b128 {vr(CA,4)}, v{vpr}")
        A.wait_all_ld()
        for s_ in [f"v_add_f32 v{CA}, v{CA}, v{CA+1}", f"v_add_f32 v{CA+2}, v{CA+2}, v{CA+3}", f"v_add_f32 v{CA}, v{CA}, v{CA+2}",
                   f"v_cvt_pk_bf16_f32 v{CA+1}, v{CA}, v{CA}",
                   f"v_lshlrev_b32 v{CA+2}, 16, v{CA+1}",
                   f"v_sub_f32 v{CA+3}, v{CA}, v{CA+2}",
                   f"v_cvt_pk_bf16_f32 v{g8}, v{CA}, v{CA+3}",
                   f"v_and_b32 v{CA+2}, 0xffff0000, v{g8}",
                   f"v_sub_f32 v{CA+3}, v{CA+3}, v{CA+2}",
                   f"v_cvt_pk_bf16_f32 v{g8+1}, v{CA+3}, 0",
                   f"v_lshl_or_b32 v{g8+1}, v{b1r}, 16, v{g8+1}",
                   f"ds_write_b64 v{vax}, {vr(g8,2)}"]: e(s_)
        A.wait_all_ld()
    A.wait_vm(wtok[0])
    e("s_barrier")
    for i in range(NH1, 14): wload(1, i)
    if HP2: e(f"s_setprio {HP2}")
    colsum(0)
    colsum(1)
    A.ts()
    e("s_barrier")
    axbuild()
    e("s_barrier")
    if HP2: e(f"s_setprio {HPK}")
    e(f"ds_read_b32 v{PS}, v{t3} offset:128")
    e(f"ds_read_b32 v{PS+1}, v{t3}")
    e(f"v_add_u32 v{t0}, {XOFF[1]}, v{vxa}")
    A.wait_all_ld()
    for s_ in pcs: e(s_)
    for b in range(4):
        e("s_barrier")
        A.ts()
        full = GS == 0 and b < 3
        tks = [e(f"ds_read_b128 {vr(HA+4*q,4)}, v{t0 if b&1 else vxa} offset:{q*1024}") for q in range(4 if full else 2)]
        A.wait_ld(tks[1])
        for s_ in (gelu(b, HA, True, (0, 1)) if b == 3 else gelu8(b, HA, 0)): e(s_)
        if full:
            A.wait_ld(tks[3])
            for s_ in gelu8(b, HA, 1): e(s_)
    A.ts_flush(0)
    e("s_endpgm")
    A.nts = 2
    R.n = nv0
    nv = R.n
    A.label(f"{name}_misc")
    A.reset_counts()
    e("s_nop 4")
    R = Regs(6)
    l16, i15, kk, va, vo, vk = [R.alloc() for _ in range(6)]
    P = R.alloc(4)
    ra = [R.alloc() for _ in range(16)]
    q_ = [R.alloc() for _ in range(12)]
    e("s_cmp_ge_u32 s3, 4")
    e(f"s_cbranch_scc1 {name}_{'pf' if PFW2 >= 2 else 'end'}")
    e("s_sub_u32 s4, s2, 224")
    e("s_and_b32 s5, s4, 3")
    e("s_lshr_b32 s6, s4, 2")
    e(f"v_lshlrev_b32 v{l16}, 4, v{lane}")
    e("s_waitcnt lgkmcnt(0)")
    mk_srd(A, 36, 18, 921600)
    mk_srd(A, 40, 20, 921600)
    mk_srd(A, 44, 34, WS_BYTES)
    e("s_lshl_b32 s7, s6, 2")
    e("s_add_u32 s7, s7, s3")
    e("s_lshl_b32 s7, s7, 2")
    e("s_add_u32 s7, s7, s5")
    e("s_mul_i32 s7, s7, 7200")
    e("s_lshl_b32 s8, s3, 13")
    if MSL: e(f"s_sleep {MSL}")
    for arr in range(2):
        for it in range(8):
            e(f"s_add_u32 m0, s8, {arr*32768 + it*1024}")
            e(f"s_add_u32 s9, s7, {it*1024}")
            e(f"buffer_load_dwordx4 v{l16}, s[{36+4*arr}:{39+4*arr}], s9 offen lds")
    e("s_lshl_b32 s10, s4, 2")
    e("s_add_u32 s10, s10, s3")
    A.ts()
    e(f"v_and_b32 v{i15}, 15, v{lane}")
    e(f"v_lshrrev_b32 v{kk}, 4, v{lane}")
    e(f"v_mul_u32_u24 v{va}, 450, v{i15}")
    e("s_lshl_b32 s11, s3, 2")
    e(f"v_add_u32 v{t0}, s11, v{kk}")
    e(f"v_lshl_add_u32 v{va}, v{t0}, 1, v{va}")
    e(f"v_lshlrev_b32 v{vo}, 13, v{t0}")
    e(f"v_lshl_add_u32 v{vo}, v{i15}, 4, v{vo}")
    e("s_lshl_b32 s12, s5, 11")
    e("s_lshl_b32 s13, s6, 8")
    e("s_add_u32 s12, s12, s13")
    e(f"s_add_u32 s12, s12, {WT}")
    e(f"v_cmp_eq_u32 vcc, 0, v{t0}")
    e(f"v_mov_b32 v{t1}, {OOB}")
    A.ts()
    e("s_waitcnt vmcnt(0)")
    e("s_barrier")
    A.ts()
    A.reset_counts()
    P2 = [P, R.alloc(4)]
    toks = {}
    def rdw(n_):
        o = (n_ & 1) * 8
        for r_ in range(4):
            e(f"ds_read_u16 v{ra[o+r_]}, v{va} offset:{r_*8192 + n_*32}")
            toks[n_] = e(f"ds_read_u16 v{ra[o+4+r_]}, v{va} offset:{32768 + r_*8192 + n_*32}")
    rdw(0)
    for n_ in range(15):
        A.wait_ld(toks[n_])
        if n_ + 1 < 15: rdw(n_ + 1)
        o = (n_ & 1) * 8
        for r_ in range(4):
            e(f"v_lshl_or_b32 v{P2[n_&1]+r_}, v{ra[o+4+r_]}, 16, v{ra[o+r_]}")
        if n_ == 14:
            e(f"v_cndmask_b32 v{vo}, v{t1}, v{vo}, vcc")
        e(f"buffer_store_dwordx4 {vr(P2[n_&1],4)}, v{vo}, s[44:47], s12 offen")
        e(f"s_add_u32 s12, s12, {16*8192}")
    if CPY:
        CB = [R.alloc(4) for _ in range(14)]
        for bit, ptr, nb, nl, dst in ((1, 28, 1605632, 13, W2C), (2, 16, 1835008, 14, XC)):
            mk_srd(A, 36, ptr, nb)
            e(f"s_mul_i32 s11, s10, {nl*1024}")
            e(f"v_add_u32 v{va}, s11, v{l16}")
            e(f"s_mov_b32 s12, {dst}")
            tk = []
            for it in range(nl if (CPY | 1) & bit else 0):
                if it % 4 == 0 and it: e(f"v_add_u32 v{va}, 4096, v{va}")
                tk.append(e(f"buffer_load_dwordx4 {vr(CB[it],4)}, v{va}, s[36:39], 0 offen offset:{(it%4)*1024}"))
            if CPY & bit:
                e(f"v_add_u32 v{vo}, s11, v{l16}")
                for it in range(nl):
                    if it % 4 == 0 and it: e(f"v_add_u32 v{vo}, 4096, v{vo}")
                    A.wait_vm(tk[it])
                    e(f"buffer_store_dwordx4 {vr(CB[it],4)}, v{vo}, s[44:47], s12 offen offset:{(it%4)*1024}{ST}")
                e("s_waitcnt vmcnt(0)")
                A.reset_counts()
        e("s_waitcnt vmcnt(0)")
    elif PFW2 == 1:
        mk_srd(A, 36, 28, 1605632)
        e("s_mul_i32 s11, s10, 13312")
        for it in range(13):
            e(f"buffer_load_dwordx4 {vr(P2[it&1],4)}, v{l16}, s[36:39], s11 offen")
            e("s_add_u32 s11, s11, 1024")
        e("s_waitcnt vmcnt(0)")
    A.ts_flush(0)
    if PFW2 >= 2:
        e("s_endpgm")
        A.label(f"{name}_pf"); A.reset_counts()
        e("s_sub_u32 s4, s2, 224")
        e("s_lshl_b32 s4, s4, 2")
        e("s_add_u32 s4, s4, s3")
        e("s_sub_u32 s4, s4, 4")
        e("s_mul_i32 s11, s4, 13312")
        e(f"v_lshlrev_b32 v{l16}, 4, v{lane}")
        e(f"v_add_u32 v{l16}, s11, v{l16}")
        e("s_waitcnt lgkmcnt(0)")
        mk_srd(A, 36, 28, 1605632)
        mk_srd(A, 44, 34, WS_BYTES)
        e("s_lshr_b32 s5, s4, 1")
        e("s_mul_i32 s5, s5, 229376")
        e("s_and_b32 s6, s4, 1")
        e("s_mul_i32 s6, s6, 57344")
        e("s_add_u32 s5, s5, s6")
        e(f"v_lshlrev_b32 v{va}, 7, v{lane}")
        def pre(off):
            for it in range(7):
                e(f"s_add_u32 s6, s5, {off + it*8192}")
                e(f"buffer_load_dword v{vo}, v{va}, s[44:47], s6 offen sc0 sc1")
        if PRE & 4: e(f"s_sleep {PRE >> 3}")
        if PRE & 2: pre(0)
        if PFW2 > 2: e(f"s_sleep {PFW2 - 2}")
        for it in range(13):
            if it % 4 == 0 and it: e(f"v_add_u32 v{l16}, 4096, v{l16}")
            e(f"buffer_load_dwordx4 {vr(P,4)}, v{l16}, s[36:39], 0 offen offset:{(it%4)*1024}")
        if PRE & 1: pre(114688)
    A.label(f"{name}_end")
    e("s_endpgm")
    return max(nv, R.n)
```

```python
from asmlib import *
from k1 import *

def fft_block(A, lane, LB, barrier, LD="", ST="", kidx=1, wofs=0, bar0=False, xbar=0, fb=(0,0,0,0)):
    def bars(i):
        for _ in range(fb[i]): A.e("s_barrier")
    e = A.e
    R = Regs(lane + 1)
    i15, g, l16, va, t0, t1, t2, vst, vw = [R.alloc() for _ in range(9)]
    XA = [[[R.alloc(4) for Q in range(2)] for T in range(2)] for c in range(2)]
    F1 = [[R.alloc(4) for cs in range(3)] for Q in range(2)]
    F2 = [[R.alloc(4) for cs in range(3)] for T in range(2)]
    W = [R.alloc(4) for T in range(2)]
    WR = R.alloc(8); WI = R.alloc(8)
    C1 = R.alloc(8); S1 = R.alloc(8); C2 = R.alloc(8); S2 = R.alloc(8)
    DR = R.alloc(8); DI = R.alloc(8)
    TR = R.alloc(8); TI = R.alloc(8)
    ZR = R.alloc(4); ZI = R.alloc(4)
    e(f"v_and_b32 v{i15}, 15, v{lane}")
    e(f"v_lshrrev_b32 v{g}, 4, v{lane}")
    e(f"v_lshlrev_b32 v{l16}, 4, v{lane}")
    e(f"v_lshlrev_b32 v{va}, 4, v{i15}")
    e(f"v_lshl_add_u32 v{va}, v{g}, 9, v{va}")
    e("s_lshl_b32 s4, s2, 13")
    e("s_add_u32 s5, s4, 4096")
    e("s_cmp_eq_u32 s2, 224")
    e("s_cselect_b32 s4, 4096, s4")
    e(f"s_cselect_b32 s5, {OOB}, s5")
    e("s_cmp_eq_u32 s2, 0")
    e(f"s_cselect_b32 s5, {OOB}, s5")
    e(f"s_add_u32 s6, s4, {X1F}")
    e(f"s_add_u32 s7, s5, {X1F}")
    e(f"s_add_u32 s8, s4, {Y1T}")
    e(f"s_add_u32 s9, s5, {Y1T}")
    e("s_lshl_b32 s11, s2, 13")
    e("s_lshl_b32 s12, s3, 11")
    e("s_add_u32 s11, s11, s12")
    e(f"s_add_u32 s11, s11, {WT}")
    e("s_cmp_lt_u32 s3, 2")
    e("s_cselect_b32 s10, s6, s7")
    e("s_and_b32 s13, s12, 2048")
    e("s_add_u32 s10, s10, s13")
    e(f"s_add_u32 m0, s12, {LB + 8192}")
    lm = R.alloc()
    e(f"v_lshlrev_b32 v{lm}, 31, v{lane}")
    e(f"v_lshrrev_b32 v{t0}, 16, v{lm}")
    e(f"v_or_b32 v{lm}, v{lm}, v{t0}")
    e("s_mov_b32 s15, 0x80008000")
    e("s_brev_b32 s12, 1")
    e("s_lshl_b32 s13, s3, 4")
    e(f"v_add_u32 v{t0}, s13, v{i15}")
    e(f"v_cvt_f32_u32 v{t0}, v{t0}")
    e(f"v_mul_f32 v{t0}, {f32(1/2048)}, v{t0}")
    e(f"v_lshlrev_b32 v{t1}, 2, v{g}")
    e(f"v_add_u32 v{vst}, s13, v{t1}")
    e(f"v_cvt_f32_u32 v{t1}, v{t1}")
    e(f"v_mul_f32 v{t1}, v{t1}, v{t0}")
    for j in range(8):
        e(f"v_fma_f32 v{C1+j}, v{t0}, {f32(float(16*(j>>2)+(j&3)))}, v{t1}" if False else
          f"v_fmamk_f32 v{C1+j}, v{t0}, {f32(float(16*(j>>2)+(j&3)))}, v{t1}")
    for j in range(8):
        e(f"v_sin_f32 v{S1+j}, v{C1+j}")
        e(f"v_cos_f32 v{C1+j}, v{C1+j}")
    e("s_waitcnt lgkmcnt(0)")
    mk_srd(A, 44, 34, WS_BYTES)
    tk = {}
    bars(0)
    for h in range(2):
        tk['x'] = e(f"buffer_load_dwordx4 v{l16}, s[44:47], s10 offen offset:{h*1024} lds{LD}")
    for T in range(2):
        tk['w'] = e(f"buffer_load_dwordx4 {vr(W[T],4)}, v{l16}, s[44:47], s11 offen offset:{T*1024}{LD}")
    A.nts = 2; A.ts()
    e(f"v_cvt_f32_u32 v{t0}, v{i15}")
    e(f"v_mul_f32 v{t0}, {f32(1/2048)}, v{t0}")
    e(f"v_add_f32 v{t2}, {f32(16/2048)}, v{t0}")
    e(f"v_cvt_f32_u32 v{t1}, v{vst}")
    for j in range(8):
        tt = t2 if j >> 2 else t0
        e(f"v_add_f32 v{C2+j}, {f32(float(j&3))}, v{t1}")
        e(f"v_mul_f32 v{C2+j}, v{C2+j}, v{tt}")
    for j in range(8):
        e(f"v_sin_f32 v{S2+j}, v{C2+j}")
        e(f"v_cos_f32 v{C2+j}, v{C2+j}")
    e(f"v_mul_f32 v{t0}, {f32(64.0)}, v{t0}")
    e(f"v_lshlrev_b32 v{t1}, 2, v{g}")
    e(f"v_cvt_f32_u32 v{t1}, v{t1}")
    e(f"v_mul_f32 v{TR}, v{t1}, v{t0}")
    for j in range(1, 4): e(f"v_fmamk_f32 v{TR+j}, v{t0}, {f32(float(j))}, v{TR}")
    for j in range(4):
        e(f"v_sin_f32 v{TI+j}, v{TR+j}")
        e(f"v_cos_f32 v{TR+j}, v{TR+j}")
    for cs, src in ((0, TR), (1, TI)):
        for z in range(2): e(f"v_cvt_pk_bf16_f32 v{F2[0][cs]+z}, v{src+2*z}, v{src+2*z+1}")
        for z in range(2): e(f"v_xor_b32 v{F2[0][cs]+2+z}, v{F2[0][cs]+z}, v{lm}")
        for z in range(4): e(f"v_xor_b32 v{F2[1][cs]+z}, s12, v{F2[0][cs]+z}")
    for T in range(2):
        for z in range(4): e(f"v_xor_b32 v{F2[T][2]+z}, s15, v{F2[T][1]+z}")
    e(f"v_add_u32 v{t0}, s13, v{i15}")
    e(f"v_cvt_f32_u32 v{t0}, v{t0}")
    e(f"v_mul_f32 v{t0}, {f32(1/64)}, v{t0}")
    e(f"v_lshrrev_b32 v{t1}, 1, v{g}")
    e(f"v_lshlrev_b32 v{t1}, 3, v{t1}")
    e(f"v_lshl_add_u32 v{t1}, v{g}, 2, v{t1}")
    e(f"v_cvt_f32_u32 v{t1}, v{t1}")
    e(f"v_mul_f32 v{TR}, v{t1}, v{t0}")
    for j in range(1, 8): e(f"v_fmamk_f32 v{TR+j}, v{t0}, {f32(float((j&3)+8*(j>>2)))}, v{TR}")
    for j in range(8):
        e(f"v_sin_f32 v{TI+j}, v{TR+j}")
        e(f"v_cos_f32 v{TR+j}, v{TR+j}")
    for cs, src in ((0, TR), (1, TI)):
        for z in range(4): e(f"v_cvt_pk_bf16_f32 v{F1[0][cs]+z}, v{src+2*z}, v{src+2*z+1}")
        for z in range(4): e(f"v_xor_b32 v{F1[1][cs]+z}, v{F1[0][cs]+z}, v{lm}")
    for Q in range(2):
        for z in range(4): e(f"v_xor_b32 v{F1[Q][2]+z}, s15, v{F1[Q][1]+z}")
    e(f"v_add_u32 v{t2}, {LB + 8192}, v{va}")
    e(f"v_lshlrev_b32 v{vst}, 1, v{vst}")
    e(f"v_lshl_add_u32 v{vst}, v{i15}, 7, v{vst}")
    e(f"v_and_b32 v{t0}, 1, v{g}")
    e(f"v_lshlrev_b32 v{t0}, 8, v{t0}")
    e(f"v_lshl_add_u32 v{t0}, v{i15}, 4, v{t0}")
    e(f"v_lshrrev_b32 v{t1}, 1, v{g}")
    e(f"v_lshl_add_u32 v{t0}, v{t1}, 3, v{t0}")
    e("s_lshl_b32 s14, s3, 9")
    e(f"s_add_u32 s14, s14, {LB}")
    e(f"v_add_u32 v{vw}, s14, v{t0}")
    e(f"v_add_u32 v{va}, {LB}, v{l16}")
    M = "v_mfma_f32_16x16x32_bf16"
    def mm(d, a, b, first):
        e(f"{M} {vr(d,4)}, {vr(a,4)}, {vr(b,4)}, {'0' if first else vr(d,4)}")
    def cmul(c, s, sgn):
        for p in range(8):
            e(f"v_mul_f32 v{TR+p}, v{DR+p}, v{c+p}")
            e(f"v_mul_f32 v{TI+p}, v{DI+p}, v{c+p}")
        for p in range(8):
            e(f"v_fma_f32 v{TR+p}, v{DI+p}, {'-' if sgn > 0 else ''}v{s+p}, v{TR+p}")
            e(f"v_fma_f32 v{TI+p}, v{DR+p}, {'-' if sgn < 0 else ''}v{s+p}, v{TI+p}")
        for p in range(4):
            e(f"v_cvt_pk_bf16_f32 v{ZR+p}, v{TR+2*p}, v{TR+2*p+1}")
            e(f"v_cvt_pk_bf16_f32 v{ZI+p}, v{TI+2*p}, v{TI+2*p+1}")
    A.wait_vm(tk['x'])
    assert fb[1] >= 1
    bars(1)
    A.ts()
    for Q in range(2):
        for c in range(2):
            for T in range(2):
                tk['x', c, T, Q] = e(f"ds_read_b128 {vr(XA[c][T][Q],4)}, v{t2} offset:{c*4096+Q*2048+T*256}")
    e(f"s_cmp_lt_u32 s5, {OOB}")
    e("s_cbranch_scc1 fft_nz")
    e("s_waitcnt lgkmcnt(0)")
    for T in range(2):
        for Q in range(2):
            for z in range(4): e(f"v_mov_b32 v{XA[1][T][Q]+z}, 0")
    A.label("fft_nz")
    for Q in range(2):
        for T in range(2):
            A.wait_ld(tk['x', 0, T, Q])
            mm(DR+4*T, XA[0][T][Q], F1[Q][0], Q == 0)
            mm(DI+4*T, XA[0][T][Q], F1[Q][2], Q == 0)
        for T in range(2):
            A.wait_ld(tk['x', 1, T, Q])
            mm(DR+4*T, XA[1][T][Q], F1[Q][1], False)
            mm(DI+4*T, XA[1][T][Q], F1[Q][0], False)
    bars(2)
    A.ts()
    cmul(C1, S1, -1)
    for T in range(2):
        mm(DR+4*T, F2[T][0], ZR, True)
        mm(DI+4*T, F2[T][0], ZI, True)
    for T in range(2):
        mm(DR+4*T, F2[T][1], ZI, False)
        mm(DI+4*T, F2[T][2], ZR, False)
    bars(3)
    A.wait_vm(tk['w'])
    for j in range(8):
        e(f"v_lshlrev_b32 v{WR+j}, 16, v{W[j>>2]+(j&3)}")
        e(f"v_and_b32 v{WI+j}, 0xffff0000, v{W[j>>2]+(j&3)}")
    cmul(WR, WI, +1)
    for T in range(2):
        mm(DR+4*T, ZR, F2[T][0], True)
        mm(DI+4*T, ZI, F2[T][0], True)
    for T in range(2):
        mm(DR+4*T, ZI, F2[T][2], False)
        mm(DI+4*T, ZR, F2[T][1], False)
    bars(5)
    cmul(C2, S2, +1)
    for T in range(2):
        e(f"ds_write_b64 v{vw}, {vr(ZR+2*T,2)} offset:{T*2048}")
        e(f"ds_write_b64 v{vw}, {vr(ZI+2*T,2)} offset:{4096+T*2048}")
    A.wait_all_ld()
    A.ts()
    barrier()
    A.ts()
    for Q in range(2):
        for c in range(2):
            for T in range(2):
                tk['u', c, T, Q] = e(f"ds_read_b128 {vr(XA[c][T][Q],4)}, v{va} offset:{(c*2+T)*2048+Q*1024}")
    for Q in range(2):
        for T in range(2):
            A.wait_ld(tk['u', 0, T, Q])
            mm(DR+4*T, F1[Q][0], XA[0][T][Q], Q == 0)
            mm(DI+4*T, F1[Q][1], XA[0][T][Q], Q == 0)
        for T in range(2):
            A.wait_ld(tk['u', 1, T, Q])
            mm(DR+4*T, F1[Q][2], XA[1][T][Q], False)
            mm(DI+4*T, F1[Q][0], XA[1][T][Q], False)
    for p in range(4):
        e(f"v_cvt_pk_bf16_f32 v{ZR+p}, v{DR+2*p}, v{DR+2*p+1}")
        e(f"v_cvt_pk_bf16_f32 v{ZI+p}, v{DI+2*p}, v{DI+2*p+1}")
    bars(4)
    for T in range(2):
        e(f"buffer_store_dwordx2 {vr(ZR+2*T,2)}, v{vst}, s[44:47], s8 offen offset:{T*2048}{ST}")
        e(f"buffer_store_dwordx2 {vr(ZI+2*T,2)}, v{vst}, s[44:47], s9 offen offset:{T*2048}{ST}")
    A.ts()
    for _ in range(xbar): e("s_barrier")
    A.ts_flush(kidx, "s3", wofs)
    e("s_endpgm")
    return R.n

PB = WS_END

def gemm_block(A, lane, nf, ni, epi, PD, bar_at=None, LD="", ST="", kidx=2, ROT=(7, 4), bar0=False):
    e = A.e
    R = Regs(lane + 1)
    t0, t1, t2, l16, vw2, vy, tid = [R.alloc() for _ in range(7)]
    ta = [R.alloc(), R.alloc()]
    acc = [[R.alloc(16) for u in range(2)] for h in range(2)]
    LF = [[R.alloc(4) for h in range(2)] for p in range(2)]
    GF = [[R.alloc(4) for h in range(2)] for p in range(PD)]
    XR = R.alloc(8)
    BR = R.alloc(8)
    e("s_and_b32 s4, s2, 7")
    e("s_lshr_b32 s5, s2, 3")
    e("s_and_b32 s6, s5, 3")
    e("s_lshr_b32 s7, s5, 2")
    e("s_lshl_b32 s8, s4, 2")
    e("s_add_u32 s8, s8, s6")
    e(f"v_lshrrev_b32 v{t0}, 3, v{lane}")
    e(f"v_and_b32 v{t1}, 7, v{lane}")
    e(f"v_lshlrev_b32 v{t2}, 1, v{t0}")
    e(f"v_and_b32 v{t2}, 4, v{t2}")
    e(f"v_xor_b32 v{t2}, v{t2}, v{t1}")
    e(f"v_lshlrev_b32 v{t2}, 4, v{t2}")
    e(f"v_mad_u32_u24 v{vw2}, v{t0}, 896, v{t2}" if False else f"v_mul_u32_u24 v{vw2}, 896, v{t0}")
    e(f"v_add_u32 v{vw2}, v{vw2}, v{t2}")
    e(f"v_lshl_add_u32 v{vy}, v{t0}, 12, v{t2}")
    e(f"v_lshlrev_b32 v{l16}, 4, v{lane}")
    e("s_lshl_b32 s9, s7, 7")
    e(f"s_mul_i32 s10, s3, {28*16*896}")
    e("s_add_u32 s10, s10, s9")
    e("s_mul_i32 s11, s8, 229376")
    e("s_mul_i32 s12, s3, 28672")
    e("s_add_u32 s11, s11, s12")
    e("s_add_u32 s12, s11, 114688")
    e(f"s_mul_i32 s13, s3, {7*16*4096}")
    e("s_lshl_b32 s14, s8, 7")
    e("s_add_u32 s13, s13, s14")
    e(f"s_add_u32 s13, s13, {Y1T}")
    e("s_mul_i32 s14, s7, 57344")
    e("s_mul_i32 s15, s3, 7168")
    e("s_add_u32 s14, s14, s15")
    e(f"s_add_u32 s14, s14, {IDF}")
    e("s_add_u32 s15, s14, 28672")
    e(f"s_mul_i32 s57, s3, {PD*2048}")
    e(f"s_mul_i32 s62, s6, {ROT[0]}")
    e(f"s_mul_i32 s63, s7, {ROT[1]}")
    e("s_add_u32 s62, s62, s63")
    e("s_cmp_ge_u32 s62, 28")
    e("s_cselect_b32 s63, 28, 0")
    e("s_sub_u32 s62, s62, s63")
    e("s_mul_i32 s63, s62, 14336")
    e("s_add_u32 s63, s63, s10")
    e("s_lshl_b32 s64, s62, 10")
    e("s_add_u32 s64, s64, s11")
    e("s_waitcnt lgkmcnt(0)")
    mk_srd(A, 44, 34, WS_BYTES)
    mk_srd(A, 40, 28, 1605632)
    mk_srd(A, 36, 16, 1835008)
    mk_srd(A, 48, 30, 896)
    mk_srd(A, 52, 32, 1835008)
    steps = [('i', k) for k in range(ni)] + [('f', k) for k in range(nf)]
    if epi == 'full':
        steps = [('f', k) for k in range(nf)] + [('i', k) for k in range(ni)]
    N = len(steps)
    tok = {}
    def issue(n):
        if n >= N: return
        kind, k = steps[n]
        sl = n % PD
        for hf in range(2):
            e(f"s_add_u32 m0, s57, {sl*2048 + hf*1024}")
            if kind == 'f':
                if hf: e(f"s_add_u32 s58, s63, {8*896}")
                e(f"buffer_load_dwordx4 v{vw2}, s[40:43], s{58 if hf else 63} offen lds")
            else:
                e(f"s_add_u32 s58, s13, {(k*16+hf*8)*4096}")
                e(f"buffer_load_dwordx4 v{vy}, s[44:47], s58 offen lds{LD}")
        if kind == 'f':
            e("s_add_u32 s58, s64, 114688")
            for hf in range(2):
                tok[n] = e(f"buffer_load_dwordx4 {vr(GF[sl][hf],4)}, v{l16}, s[44:47], s{58 if hf else 64} offen{LD}")
            e("s_add_u32 s62, s62, 1")
            e("s_add_u32 s63, s63, 14336")
            e("s_add_u32 s64, s64, 1024")
            e("s_cmp_eq_u32 s62, 28")
            e("s_cselect_b32 s62, 0, s62")
            e("s_cselect_b32 s63, s10, s63")
            e("s_cselect_b32 s64, s11, s64")
            return
        for hf in range(2):
            sb = (11 + hf) if kind == 'f' else (14 + hf)
            if k % 4 == 0 and k:
                e(f"s_add_u32 s{sb}, s{sb}, 4096")
            tok[n] = e(f"buffer_load_dwordx4 {vr(GF[sl][hf],4)}, v{l16}, s[44:47], s{sb} offen offset:{(k%4)*1024}{LD}")
    if bar0: e("s_barrier")
    if epi == 'final4':
        PR = [[R.alloc(8) for u in range(2)] for h in range(2)]
        e("s_lshl_b32 s60, s3, 5")
        e("s_add_u32 s60, s60, s8")
        e("s_mul_i32 s60, s60, 57344")
        e("s_lshl_b32 s61, s7, 12")
        e("s_add_u32 s60, s60, s61")
        e(f"s_add_u32 s60, s60, {PB}")
        e("s_add_u32 s61, s60, 28672")
        for u in range(2):
            for h in range(2):
                for qq in range(2):
                    tok['p', h, u] = e(f"buffer_load_dwordx4 {vr(PR[h][u]+4*qq,4)}, v{l16}, s[44:47], s{60+u} offen offset:{h*2048+qq*1024}{LD}")
    for n in range(PD):
        issue(n)
    A.nts = 2; A.ts()
    e(f"v_and_b32 v{tid}, 255, v0")
    e(f"v_lshrrev_b32 v{t0}, 2, v{tid}")
    e(f"v_and_b32 v{t1}, 3, v{tid}")
    e(f"v_mul_u32_u24 v{t2}, 28672, v{t0}")
    e(f"v_lshl_add_u32 v{t2}, v{t1}, 5, v{t2}")
    e("s_mul_i32 s59, s8, 896")
    e("s_add_u32 s59, s59, s9")
    e(f"s_add_u32 s60, s59, {PB}")
    e(f"v_mul_u32_u24 v{tid}, 272, v{t0}")
    e(f"v_lshl_add_u32 v{tid}, v{t1}, 6, v{tid}")
    e(f"v_lshlrev_b32 v{t1}, 5, v{t1}")
    def epi_loads():
        for hf in range(2):
            if epi == 'final':
                tok['x'] = e(f"buffer_load_dwordx4 {vr(XR+4*hf,4)}, v{t2}, s[44:47], s60 offen offset:{hf*16}{LD}")
            else:
                e(f"buffer_load_dwordx4 {vr(XR+4*hf,4)}, v{t2}, s[36:39], s59 offen offset:{hf*16}")
                tok['x'] = e(f"buffer_load_dwordx4 {vr(BR+4*hf,4)}, v{t1}, s[48:51], s9 offen offset:{hf*16}")
    e(f"v_bfe_u32 v{t0}, v{lane}, 2, 2")
    e(f"v_lshrrev_b32 v{ta[1]}, 5, v{lane}")
    e(f"v_lshl_add_u32 v{t0}, v{ta[1]}, 2, v{t0}")
    e(f"v_lshlrev_b32 v{t0}, 7, v{t0}")
    e(f"v_bfe_u32 v{ta[1]}, v{lane}, 3, 1")
    e(f"v_lshl_add_u32 v{t0}, v{ta[1]}, 6, v{t0}")
    e(f"v_bfe_u32 v{ta[1]}, v{lane}, 4, 1")
    e(f"v_lshl_add_u32 v{t0}, v{ta[1]}, 5, v{t0}")
    e(f"v_and_b32 v{ta[1]}, 3, v{lane}")
    e(f"v_lshl_add_u32 v{t0}, v{ta[1]}, 3, v{t0}")
    e(f"v_add_u32 v{ta[0]}, s57, v{t0}")
    e(f"v_xor_b32 v{ta[1]}, 64, v{ta[0]}")
    rt = {}
    def rd(n):
        if n >= N: return
        A.wait_vm(tok[n])
        sl = n % PD
        for h in range(2):
            f = LF[n & 1][h]
            e(f"ds_read_b64_tr_b16 {vr(f,2)}, v{ta[h]} offset:{sl*2048}")
            rt[n] = e(f"ds_read_b64_tr_b16 {vr(f+2,2)}, v{ta[h]} offset:{sl*2048+1024}")
    if epi == 'final4':
        for u in range(2):
            for h in range(2):
                A.wait_vm(tok['p', h, u])
                for j in range(8):
                    e(f"v_lshlrev_b32 v{acc[h][u]+2*j}, 16, v{PR[h][u]+j}")
                    e(f"v_and_b32 v{acc[h][u]+2*j+1}, 0xffff0000, v{PR[h][u]+j}")
    rd(0)
    for n in range(N):
        kind, k = steps[n]
        A.wait_ld(rt[n])
        if n % 7 == 0: A.ts()
        rd(n + 1)
        L = LF[n & 1]; G = GF[n % PD]
        for h in range(2):
            for u in range(2):
                a, b = (L[h], G[u]) if kind == 'f' else (G[h], L[u])
                c = '0' if n == 0 and epi != 'final4' else vr(acc[h][u], 16)
                e(f"v_mfma_f32_32x32x16_bf16 {vr(acc[h][u],16)}, {vr(a,4)}, {vr(b,4)}, {c}")
        issue(n + PD)
        if n == max(N - PD, 0): epi_loads()
        if bar_at is not None and n == bar_at: e("s_barrier")
    e(f"v_and_b32 v{t0}, 31, v{lane}")
    e(f"v_mul_u32_u24 v{t0}, 272, v{t0}")
    e(f"v_lshrrev_b32 v{t1}, 5, v{lane}")
    e(f"v_lshl_add_u32 v{t0}, v{t1}, 4, v{t0}")
    e(f"s_mul_i32 s61, s3, {64*272}")
    e(f"v_add_u32 v{t0}, s61, v{t0}")
    A.ts()
    e("s_barrier")
    A.ts()
    for h in range(2):
        for u in range(2):
            for q in range(4):
                e(f"ds_write_b128 v{t0}, {vr(acc[h][u]+4*q,4)} offset:{u*32*272 + h*128 + q*32}")
    A.wait_all_ld()
    e("s_barrier")
    A.ts()
    flat = [acc[0][0], acc[0][1], acc[1][0], acc[1][1]]
    tkk = []
    for q in range(4):
        for w in range(4):
            tkk.append(e(f"ds_read_b128 {vr(flat[w]+4*q,4)}, v{tid} offset:{w*64*272 + q*16}"))
    A.wait_vm(tok['x'])
    O = LF[0][0]
    assert LF[0][1] == O + 4
    for q in range(4):
        A.wait_ld(tkk[4*q+3])
        for p in range(2):
            a = [f + 4*q + 2*p for f in flat]
            e(f"v_pk_add_f32 {vr(a[0],2)}, {vr(a[0],2)}, {vr(a[1],2)}")
            e(f"v_pk_add_f32 {vr(a[2],2)}, {vr(a[2],2)}, {vr(a[3],2)}")
            xr = XR + 2*q + p
            e(f"v_lshlrev_b32 v{a[1]}, 16, v{xr}")
            e(f"v_and_b32 v{a[1]+1}, 0xffff0000, v{xr}")
            e(f"v_pk_add_f32 {vr(a[0],2)}, {vr(a[0],2)}, {vr(a[2],2)}")
            if epi != 'final':
                br = BR + 2*q + p
                e(f"v_lshlrev_b32 v{a[3]}, 16, v{br}")
                e(f"v_and_b32 v{a[3]+1}, 0xffff0000, v{br}")
                e(f"v_pk_add_f32 {vr(a[0],2)}, {vr(a[0],2)}, {vr(a[3],2)}")
            e(f"v_pk_add_f32 {vr(a[0],2)}, {vr(a[0],2)}, {vr(a[1],2)}")
            e(f"v_cvt_pk_bf16_f32 v{O+2*q+p}, v{a[0]}, v{a[0]+1}")
    for hf in range(2):
        if epi == 'part':
            e(f"buffer_store_dwordx4 {vr(O+4*hf,4)}, v{t2}, s[44:47], s60 offen offset:{hf*16}{ST}")
        else:
            e(f"buffer_store_dwordx4 {vr(O+4*hf,4)}, v{t2}, s[52:55], s59 offen offset:{hf*16}")
    A.ts_flush(kidx)
    e("s_endpgm")
    return R.n

def gemm4(A, lane, PC=3, PF=6, LD="", ST="", kidx=1, ROT=(1, 2), bar_c=0, CPY=0):
    e = A.e
    R = Regs(lane + 1)
    t0, t1, t2, l16, vw2 = [R.alloc() for _ in range(5)]
    ta = [R.alloc() for _ in range(4)]
    acc = [R.alloc(16) for b in range(4)]
    LF = [R.alloc(4) for _ in range(8)]
    GF = [[R.alloc(4) for k in range(4)] for c in range(7)]
    e("s_bfe_u32 s4, s2, 0x20001")
    e("s_and_b32 s5, s2, 1")
    e("s_bfe_u32 s6, s2, 0x30003")
    e("s_lshr_b32 s7, s2, 6")
    e("s_lshl_b32 s8, s5, 3")
    e("s_add_u32 s8, s8, s6")
    e("s_lshl_b32 s8, s8, 2")
    e("s_add_u32 s8, s8, s3")
    e(f"v_lshrrev_b32 v{t0}, 3, v{lane}")
    e(f"v_and_b32 v{t1}, 7, v{lane}")
    e(f"v_lshlrev_b32 v{t2}, 1, v{t0}")
    e(f"v_and_b32 v{t2}, 4, v{t2}")
    e(f"v_xor_b32 v{t2}, v{t2}, v{t1}")
    e(f"v_lshlrev_b32 v{t2}, 4, v{t2}")
    e(f"v_mul_u32_u24 v{vw2}, 896, v{t0}")
    e(f"v_add_u32 v{vw2}, v{vw2}, v{t2}")
    e(f"v_lshlrev_b32 v{l16}, 4, v{lane}")
    e("s_lshl_b32 s9, s7, 2")
    e("s_min_u32 s9, s9, 10")
    e(f"s_mul_i32 s10, s4, {448*896}")
    e(f"s_mul_i32 s11, s3, {16*896}")
    e("s_add_u32 s10, s10, s11")
    e("s_lshl_b32 s11, s9, 6")
    e("s_add_u32 s10, s10, s11")
    if CPY & 1: e(f"s_add_u32 s10, s10, {W2C}")
    e(f"s_mul_i32 s11, s8, {HS_}")
    e("s_mul_i32 s12, s4, 28672")
    e("s_add_u32 s11, s11, s12")
    e("s_lshl_b32 s57, s3, 12")
    e(f"s_mul_i32 s62, s6, {ROT[0]}")
    e(f"s_mul_i32 s63, s7, {ROT[1]}")
    e("s_add_u32 s62, s62, s63")
    for _ in range((7 * ROT[0] + 3 * ROT[1]) // 7):
        e("s_cmp_ge_u32 s62, 7")
        e("s_cselect_b32 s63, 7, 0")
        e("s_sub_u32 s62, s62, s63")
    e(f"s_mul_i32 s63, s62, {64*896}")
    e("s_add_u32 s63, s63, s10")
    e("s_lshl_b32 s64, s62, 12")
    e("s_add_u32 s64, s64, s11")
    e("s_waitcnt lgkmcnt(0)")
    mk_srd(A, 44, 34, WS_BYTES)
    if CPY & 1: mk_srd(A, 40, 34, WS_BYTES)
    else: mk_srd(A, 40, 28, 1605632)
    dt, ht = {}, {}
    def issue(c):
        if c >= 7: return []
        F = []
        def dma(ch, rh):
            e(f"s_add_u32 m0, s57, {c*16384 + ch*2048 + rh*1024}")
            if ch or rh: e(f"s_add_u32 s58, s63, {rh*7168 + ch*128}")
            dt[c] = e(f"buffer_load_dwordx4 v{vw2}, s[40:43], s{58 if ch or rh else 63} offen lds")
        def hl(k):
            ht[c, k] = e(f"buffer_load_dwordx4 {vr(GF[c][k],4)}, v{l16}, s[44:47], s64 offen offset:{k*1024}{LD}")
            if k == 3:
                e("s_add_u32 s62, s62, 1")
                e(f"s_add_u32 s63, s63, {64*896}")
                e("s_add_u32 s64, s64, 4096")
                e("s_cmp_eq_u32 s62, 7")
                e("s_cselect_b32 s62, 0, s62")
                e("s_cselect_b32 s63, s10, s63")
                e("s_cselect_b32 s64, s11, s64")
        return [(lambda ch=ch, rh=rh: dma(ch, rh)) for rh in range(2) for ch in range(2)] + [(lambda k=k: hl(k)) for k in range(4)]
    for c in range(PC):
        for f in issue(c): f()
    A.nts = 2; A.ts()
    e("s_lshl_b32 s60, s4, 6")
    e("s_add_u32 s60, s60, s8")
    e("s_mul_i32 s60, s60, 14")
    e("s_add_u32 s60, s60, s9")
    e("s_lshl_b32 s60, s60, 11")
    e(f"s_add_u32 s60, s60, {PB}")
    if IL & 1:
        e("s_lshl_b32 s60, s9, 11")
        e("s_add_u32 s60, s60, s11")
        e("s_add_u32 s60, s60, 114688")
    e("s_add_u32 s61, s60, 4096")
    e(f"v_bfe_u32 v{t0}, v{lane}, 2, 2")
    e(f"v_lshrrev_b32 v{t1}, 5, v{lane}")
    e(f"v_lshl_add_u32 v{t0}, v{t1}, 2, v{t0}")
    e(f"v_lshlrev_b32 v{t0}, 7, v{t0}")
    e(f"v_bfe_u32 v{t1}, v{lane}, 3, 1")
    e(f"v_lshl_add_u32 v{t0}, v{t1}, 6, v{t0}")
    e(f"v_bfe_u32 v{t1}, v{lane}, 4, 1")
    e(f"v_lshl_add_u32 v{t0}, v{t1}, 5, v{t0}")
    e(f"v_and_b32 v{t1}, 3, v{lane}")
    e(f"v_lshl_add_u32 v{ta[0]}, v{t1}, 3, v{t0}")
    e(f"v_xor_b32 v{ta[1]}, 64, v{ta[0]}")
    e(f"v_add_u32 v{ta[2]}, 65536, v{ta[0]}")
    e(f"v_add_u32 v{ta[3]}, 65536, v{ta[1]}")
    if bar_c: e("s_barrier")
    rt = {}
    pend = []
    def rd(n):
        if n >= 112: return
        c, ks, b = n // 16, (n // 4) % 4, n % 4
        if n % 16 == 0:
            A.wait_vm(dt[c]); e("s_barrier"); A.ts()
            pend.extend(issue(c + PC))
        o = (c % 4) * 16384 + ks * 4096 + (b >> 1) * 2048
        f = LF[n % 8]; a = ta[(b & 1) + 2 * (c // 4)]
        e(f"ds_read_b64_tr_b16 {vr(f,2)}, v{a} offset:{o}")
        rt[n] = e(f"ds_read_b64_tr_b16 {vr(f+2,2)}, v{a} offset:{o+1024}")
    for n in range(PF): rd(n)
    for n in range(112):
        c, ks, b = n // 16, (n // 4) % 4, n % 4
        rd(n + PF)
        if n % 2 == 0: A.wait_ld(rt[n + 1])
        if b == 0: A.wait_vm(ht[c, ks])
        e(f"v_mfma_f32_32x32x16_bf16 {vr(acc[b],16)}, {vr(LF[n%8],4)}, {vr(GF[c][ks],4)}, {'0' if n < 4 else vr(acc[b],16)}")
        if pend: pend.pop(0)()
    A.ts()
    e("s_cmp_eq_u32 s7, 3")
    e("s_cbranch_scc1 g4_skip")
    for b in range(4):
        if b == 2: A.label("g4_skip"); e("s_nop 7"); e("s_nop 7")
        for qq in range(2):
            O = GF[b >> 1][2 * (b & 1) + qq]
            for j in range(4):
                e(f"v_cvt_pk_bf16_f32 v{O+j}, v{acc[b]+8*qq+2*j}, v{acc[b]+8*qq+2*j+1}")
            e(f"buffer_store_dwordx4 {vr(O,4)}, v{l16}, s[44:47], s{60 + (b >> 1)} offen offset:{(b&1)*2048 + qq*1024}{ST}")
    A.ts_flush(kidx)
    e("s_endpgm")
    return R.n

def k3_block(A, lane, LD="", kidx=2, NG0=6, SLP=2, EB=0, D2=0, ST3=""):
    e = A.e
    R = Regs(lane + 1)
    t0, t1, t2, t3, l16, vy, vx, vb, hh, dl, vk, xw = [R.alloc() for _ in range(12)]
    ta = [R.alloc(), R.alloc()]
    bs = R.alloc(4); cs = R.alloc(4); sn = R.alloc(4)
    acc = [R.alloc(16) for u in range(2)]
    Rs = R.n
    LF = [[R.alloc(4) for u in range(2)] for p in range(3)]
    G = [R.alloc(4) for _ in range(14)]
    nv = R.n; R.n = Rs
    P = [R.alloc(8) for kq in range(4)]
    X = R.alloc(8); B2 = R.alloc(8); S = R.alloc(16); T = R.alloc(16)
    nv = max(nv, R.n)
    e("s_and_b32 s4, s2, 7")
    e("s_lshr_b32 s5, s2, 3")
    e("s_and_b32 s6, s5, 3")
    e("s_lshr_b32 s7, s5, 2")
    e("s_lshl_b32 s8, s4, 2")
    e("s_add_u32 s8, s8, s6")
    e("s_and_b32 s4, s3, 1")
    e("s_bfe_u32 s5, s3, 0x10001")
    e("s_lshl_b32 s9, s7, 1")
    e("s_add_u32 s9, s9, s4")
    e(f"v_and_b32 v{t0}, 31, v{lane}")
    e(f"v_lshrrev_b32 v{hh}, 5, v{lane}")
    e(f"v_lshlrev_b32 v{l16}, 4, v{lane}")
    e("s_cmp_ge_u32 s3, 4")
    e("s_cbranch_scc1 k3_epi")
    e(f"s_mov_b32 s15, {f32(1.0/448)}")
    e(f"s_mov_b32 s60, {f32(-448.0)}")
    e("s_lshl_b32 s10, s9, 5")
    e("s_mul_i32 s11, s5, 112")
    e(f"v_add_u32 v{t2}, s10, v{t0}")
    e(f"v_cvt_f32_u32 v{t2}, v{t2}")
    e(f"v_lshl_add_u32 v{t3}, v{hh}, 1, s11")
    e(f"v_cmp_eq_u32 vcc, 0, v{t3}")
    e(f"v_cvt_f32_u32 v{t3}, v{t3}")
    for z, off in enumerate((0.0, 1.0, 4.0, 5.0)):
        e(f"v_add_f32 v{bs+z}, {f32(off)}, v{t3}")
    for z in range(4): e(f"v_mul_f32 v{bs+z}, v{bs+z}, v{t2}")
    e(f"v_mul_f32 v{dl}, {f32(8.0)}, v{t2}")
    Z = [(bs + z, cs + z) for z in range(4)] + [(dl, t1)]
    for r, t in Z: e(f"v_mul_f32 v{t}, s15, v{r}")
    for r, t in Z: e(f"v_floor_f32 v{t}, v{t}")
    for r, t in Z: e(f"v_fma_f32 v{r}, v{t}, s60, v{r}")
    for r, t in Z: e(f"v_mul_f32 v{r}, s15, v{r}")
    e(f"v_lshlrev_b32 v{vk}, 31, v{lane}")
    e(f"v_or_b32 v{vk}, 0x3f003f00, v{vk}")
    def gen(n):
        for z in range(4):
            if n: e(f"v_fmamk_f32 v{cs+z}, v{dl}, {f32(float(n))}, v{bs+z}")
        for z in range(4):
            e(f"v_sin_f32 v{sn+z}, v{(cs if n else bs)+z}")
            e(f"v_cos_f32 v{cs+z}, v{(cs if n else bs)+z}")
        for z in range(4): e(f"v_cvt_pk_bf16_f32 v{G[n]+z}, v{cs+z}, -v{sn+z}")
        if n == 0: e(f"v_cndmask_b32 v{G[0]}, v{G[0]}, v{vk}, vcc")
    e(f"v_lshrrev_b32 v{t0}, 3, v{lane}")
    e(f"v_and_b32 v{t1}, 7, v{lane}")
    e(f"v_lshlrev_b32 v{t2}, 1, v{t0}")
    e(f"v_and_b32 v{t2}, 4, v{t2}")
    e(f"v_xor_b32 v{t2}, v{t2}, v{t1}")
    e(f"v_lshlrev_b32 v{t2}, 4, v{t2}")
    e(f"v_lshl_add_u32 v{vy}, v{t0}, 12, v{t2}")
    e(f"s_mul_i32 s13, s3, {7*16*4096}")
    e("s_lshl_b32 s14, s8, 7")
    e("s_add_u32 s13, s13, s14")
    e(f"s_add_u32 s13, s13, {Y1T}")
    e(f"s_mul_i32 s57, s3, {7*2048}")
    for n in range(NG0): gen(n)
    e("s_waitcnt lgkmcnt(0)")
    mk_srd(A, 44, 34, WS_BYTES)
    for i in range(14):
        e(f"s_add_u32 m0, s57, {i*1024}")
        if i: e(f"s_add_u32 s13, s13, {8*4096}")
        ty = e(f"buffer_load_dwordx4 v{vy}, s[44:47], s13 offen lds{LD}")
    A.nts = 2; A.ts()
    for n in range(NG0, 14): gen(n)
    e(f"v_bfe_u32 v{t0}, v{lane}, 2, 2")
    e(f"v_lshl_add_u32 v{t0}, v{hh}, 2, v{t0}")
    e(f"v_lshlrev_b32 v{t0}, 7, v{t0}")
    e(f"v_bfe_u32 v{t1}, v{lane}, 3, 1")
    e(f"v_lshl_add_u32 v{t0}, v{t1}, 6, v{t0}")
    e(f"v_bfe_u32 v{t1}, v{lane}, 4, 1")
    e(f"v_lshl_add_u32 v{t0}, v{t1}, 5, v{t0}")
    e(f"v_and_b32 v{t1}, 3, v{lane}")
    e(f"v_lshl_add_u32 v{t0}, v{t1}, 3, v{t0}")
    e("s_mul_i32 s12, s5, 28672")
    e(f"v_add_u32 v{ta[0]}, s12, v{t0}")
    e(f"v_xor_b32 v{ta[1]}, 64, v{ta[0]}")
    e("s_lshl_b32 s12, s3, 13")
    e("s_add_u32 s12, s12, 57344")
    e(f"v_add_u32 v{xw}, s12, v{l16}")
    A.ts()
    A.wait_vm(ty)
    e("s_barrier")
    A.ts()
    rt = {}
    def rd(n):
        if n >= 14: return
        for u in range(2):
            f = LF[n % 3][u]
            e(f"ds_read_b64_tr_b16 {vr(f,2)}, v{ta[u]} offset:{n*2048}")
            rt[n] = e(f"ds_read_b64_tr_b16 {vr(f+2,2)}, v{ta[u]} offset:{n*2048+1024}")
    rd(0); rd(1)
    for n in range(14):
        rd(n + 2)
        A.wait_ld(rt[n])
        for u in range(2):
            e(f"v_mfma_f32_32x32x16_bf16 {vr(acc[u],16)}, {vr(G[n],4)}, {vr(LF[n%3][u],4)}, {'0' if n == 0 else vr(acc[u],16)}")
    A.ts()
    for u in range(2):
        for q in range(4): e(f"ds_write_b128 v{xw}, {vr(acc[u]+4*q,4)} offset:{u*4096+q*1024}")
    A.wait_all_ld()
    e("s_barrier")
    A.ts_flush(kidx)
    e("s_endpgm")
    A.label("k3_epi"); A.reset_counts()
    e(f"v_mul_u32_u24 v{vx}, 28672, v{t0}")
    e(f"v_lshlrev_b32 v{vb}, 4, v{hh}")
    e(f"v_add_u32 v{vx}, v{vx}, v{vb}")
    e("s_lshl_b32 s61, s8, 1")
    e("s_add_u32 s61, s61, s5")
    e("s_mul_i32 s61, s61, 14")
    e("s_add_u32 s61, s61, s9")
    e("s_lshl_b32 s61, s61, 11")
    e(f"s_add_u32 s61, s61, {PB}")
    e("s_lshl_b32 s10, s9, 6")
    e("s_lshl_b32 s59, s5, 10")
    e("s_add_u32 s59, s59, s8")
    e("s_mul_i32 s59, s59, 896")
    e("s_add_u32 s59, s59, s10")
    e("s_lshl_b32 s12, s4, 13")
    e("s_lshl_b32 s13, s5, 12")
    e("s_add_u32 s12, s12, s13")
    e("s_add_u32 s12, s12, 57344")
    e(f"v_add_u32 v{xw}, s12, v{l16}")
    e(f"s_mov_b32 s14, {f32(2.0 / (2048 * 448))}")
    e("s_mov_b32 s15, 0xffff0000")
    e("s_waitcnt lgkmcnt(0)")
    mk_srd(A, 44, 34, WS_BYTES)
    mk_srd(A, 36, 16, 1835008)
    mk_srd(A, 48, 30, 896)
    mk_srd(A, 52, 32, 1835008)
    if SLP: e(f"s_sleep {SLP}")
    tok = {}
    for qq in range(2):
        e(f"buffer_load_dwordx4 {vr(B2+4*qq,4)}, v{vb}, s[48:51], s10 offen offset:{qq*32}")
        tok['x'] = e(f"buffer_load_dwordx4 {vr(X+4*qq,4)}, v{vx}, s[36:39], s59 offen offset:{qq*32}")
    for kq in range(4):
        if kq: e(f"s_add_u32 s61, s61, {64*28672}")
        for qq in range(2):
            tok[kq] = e(f"buffer_load_dwordx4 {vr(P[kq]+4*qq,4)}, v{l16}, s[44:47], s61 offen offset:{qq*1024}{LD}")
    A.nts = 2; A.ts()
    e("s_mov_b32 s62, 0x3f80")
    e("s_mov_b32 s63, 0x3f800000")
    if EB == 0: e("s_barrier"); A.ts()
    A.wait_vm(tok['x'])
    for r in (X, B2):
        for qq in range(2):
            for j in range(2): e(f"v_permlane32_swap_b32 v{r+4*qq+j}, v{r+4*qq+2+j}")
    def unp(src, first):
        if D2 and not first:
            for j in range(8):
                e(f"v_dot2c_f32_bf16 v{S+2*j}, s62, v{src+j}")
                e(f"v_dot2c_f32_bf16 v{S+2*j+1}, s63, v{src+j}")
            return
        for j in range(8):
            d = S if first else T
            e(f"v_lshlrev_b32 v{d+2*j}, 16, v{src+j}")
            e(f"v_and_b32 v{d+2*j+1}, s15, v{src+j}")
        if not first:
            for j in range(16): e(f"v_add_f32 v{S+j}, v{S+j}, v{T+j}")
    unp(X, True)
    unp(B2, False)
    for kq in range(4):
        if EB == kq + 1: e("s_barrier"); A.ts()
        A.wait_vm(tok[kq])
        unp(P[kq], False)
    if EB == 5: e("s_barrier"); A.ts()
    A.ts()
    e("s_barrier")
    A.ts()
    rk = {}
    for q in range(4):
        for k in range(2): rk[q] = e(f"ds_read_b128 {vr(acc[k]+4*q,4)}, v{xw} offset:{k*16384+q*1024}")
    for qq in range(2):
        for q in (2 * qq, 2 * qq + 1):
            A.wait_ld(rk[q])
            for k in range(2):
                for j in range(4 * q, 4 * q + 4): e(f"v_fma_f32 v{S+j}, v{acc[k]+j}, s14, v{S+j}")
        for j in range(4 * qq, 4 * qq + 4): e(f"v_cvt_pk_bf16_f32 v{X+j}, v{S+2*j}, v{S+2*j+1}")
        for j in range(2): e(f"v_permlane32_swap_b32 v{X+4*qq+j}, v{X+4*qq+2+j}")
        e(f"buffer_store_dwordx4 {vr(X+4*qq,4)}, v{vx}, s[52:55], s59 offen offset:{qq*32}{ST3}")
    A.ts_flush(kidx)
    e("s_endpgm")
    return nv

def prolog(A, name, nwg, vd):
    header(A, name)
    A.e(f"s_cmp_ge_u32 s2, {nwg}")
    A.e(f"s_cbranch_scc1 {name}_end")
    load_args(A)
    code_pf(A, name, vd)
    A.nts = 0; A.ts(True); A.ts()
    A.e("v_lshrrev_b32 v2, 6, v0")
    A.e("v_and_b32 v1, 63, v0")
    A.e("v_readfirstlane_b32 s3, v2")
    A.e("s_nop 3")

def epilog(A, name):
    A.label(f"{name}_end")
    A.e("s_endpgm")

def k2_warm(A, WM):
    e = A.e
    A.label("k2_warm")
    e("s_cmp_lt_u32 s2, 232")
    e("s_cbranch_scc1 k2_kernel_end")
    e("s_and_b32 s4, s2, 7")
    e("s_mul_i32 s4, s4, 3584")
    e("s_sub_u32 s5, s2, 232")
    e("s_lshr_b32 s5, s5, 3")
    e("s_lshl_b32 s5, s5, 2")
    e("s_add_u32 s5, s5, s3")
    e("s_sub_u32 s5, s5, 4")
    e(f"s_mul_i32 s5, s5, {6*28672}")
    e("s_add_u32 s5, s5, s4")
    e("v_and_b32 v2, 31, v1")
    e("v_min_u32 v2, 27, v2")
    e("v_lshlrev_b32 v2, 7, v2")
    e("v_lshrrev_b32 v3, 5, v1")
    e("v_mul_u32_u24 v3, 28672, v3")
    e("v_add3_u32 v2, v2, v3, s5")
    e(f"v_add_u32 v3, {2*28672}, v2")
    e(f"v_add_u32 v4, {4*28672}, v2")
    e("v_mul_u32_u24 v5, 28672, v1")
    e("v_add_u32 v5, s4, v5")
    e("v_lshlrev_b32 v6, 7, v1")
    e("s_waitcnt lgkmcnt(0)")
    mk_srd(A, 36, 16, 1835008)
    mk_srd(A, 48, 30, 896)
    mk_srd(A, 52, 32, 1835008)
    if WM & 1:
        e("buffer_load_dword v5, v5, s[52:55], 0 offen")
        e("buffer_load_dword v6, v6, s[48:51], 0 offen")
    if WM & 4:
        mk_srd(A, 44, 34, WS_BYTES)
        e("s_sub_u32 s5, s2, 232")
        e("s_lshr_b32 s5, s5, 3")
        e("s_lshl_b32 s5, s5, 2")
        e("s_add_u32 s5, s5, s3")
        e("s_sub_u32 s5, s5, 4")
        e("s_lshl_b32 s6, s5, 20")
        e(f"s_add_u32 s6, s6, {PB}")
        e("s_lshl_b32 s7, s5, 20")
        e(f"s_add_u32 s7, s7, {(Y1T - (7 << 20)) & 0xffffffff}")
        e("s_cmp_lt_u32 s5, 7")
        e("s_cselect_b32 s6, s6, s7")
        e("s_cmp_lt_u32 s5, 9")
        e(f"s_cselect_b32 s6, s6, {PB}")
        e("v_lshlrev_b32 v7, 14, v1")
        e("v_add_u32 v7, s6, v7")
        e("buffer_load_dword v7, v7, s[44:47], 0 offen")
    if WM & 2:
        for r in (2, 3, 4): e(f"buffer_load_dword v{r}, v{r}, s[36:39], 0 offen")
    e("s_endpgm")

def k3b_block(A, lane, LD="", kidx=2, NG0=6, SLP=2, D2=1, SP=4, ST3="", SB=0, CH=0, CPY=0):
    e = A.e
    R = Regs(lane + 1)
    t0, t1, t2, t3, l16, vy, vx, vb, hh, vk, xw, ta = [R.alloc() for _ in range(12)]
    dl = R.alloc(2); bs = R.alloc(4); tm = R.alloc(4)
    CM = R.alloc(8); TT = R.alloc(8)
    acc = R.alloc(16)
    Rs = R.n
    LF = [R.alloc(4) for p in range(4)]
    G = [R.alloc(4) for _ in range(28)]
    nv = R.n; R.n = Rs
    P = [R.alloc(8) for kq in range(4)]
    X = R.alloc(8); B2 = R.alloc(8); S = R.alloc(16); T = R.alloc(16)
    nv = max(nv, R.n)
    assert dl % 2 == 0 and CM % 2 == 0 and TT % 2 == 0
    XO = 28672
    e("s_and_b32 s4, s2, 7")
    e("s_bfe_u32 s6, s2, 0x20003")
    e("s_lshl_b32 s8, s4, 2")
    e("s_add_u32 s8, s8, s6")
    e("s_bfe_u32 s5, s2, 0x10005")
    e("s_lshr_b32 s7, s2, 6")
    e("s_lshl_b32 s9, s7, 2")
    e("s_min_u32 s9, s9, 10")
    e("s_and_b32 s4, s3, 3")
    e("s_add_u32 s9, s9, s4")
    e("s_lshl_b32 s61, s8, 1")
    e("s_add_u32 s61, s61, s5")
    e("s_lshl_b32 s12, s4, 12")
    e(f"s_add_u32 s12, s12, {XO}")
    e(f"v_and_b32 v{t0}, 31, v{lane}")
    e(f"v_lshrrev_b32 v{hh}, 5, v{lane}")
    e(f"v_lshlrev_b32 v{l16}, 4, v{lane}")
    e(f"v_add_u32 v{xw}, s12, v{l16}")
    e("s_cmp_ge_u32 s3, 4")
    e("s_cbranch_scc1 k3_epi")
    e(f"v_lshrrev_b32 v{t2}, 2, v{lane}")
    e(f"v_and_b32 v{t1}, 3, v{lane}")
    e(f"v_lshlrev_b32 v{t1}, 4, v{t1}")
    e(f"v_lshl_add_u32 v{vy}, v{t2}, 12, v{t1}")
    e("s_lshl_b32 s13, s3, 16")
    e("s_lshl_b32 s14, s61, 6")
    e("s_add_u32 s13, s13, s14")
    e(f"s_add_u32 s13, s13, {Y1T}")
    e("s_lshl_b32 s57, s3, 10")
    e(f"s_mov_b32 s15, {f32(1.0/448)}")
    e(f"s_mov_b32 s60, {f32(-448.0)}")
    e("s_lshl_b32 s10, s9, 5")
    e(f"v_add_u32 v{t2}, s10, v{t0}")
    e(f"v_cvt_f32_u32 v{t2}, v{t2}")
    e(f"v_lshlrev_b32 v{t3}, 1, v{hh}")
    e(f"v_cmp_eq_u32 vcc, 0, v{t3}")
    e(f"v_cvt_f32_u32 v{t3}, v{t3}")
    for z, off in enumerate((0.0, 1.0, 4.0, 5.0)):
        e(f"v_add_f32 v{bs+z}, {f32(off)}, v{t3}")
    for z in range(4): e(f"v_mul_f32 v{bs+z}, v{bs+z}, v{t2}")
    e(f"v_mul_f32 v{t3}, {f32(8.0)}, v{t2}")
    Z = [(bs + z, tm + z) for z in range(4)] + [(t3, t1)]
    for r, t in Z: e(f"v_mul_f32 v{t}, s15, v{r}")
    for r, t in Z: e(f"v_floor_f32 v{t}, v{t}")
    for r, t in Z: e(f"v_fma_f32 v{r}, v{t}, s60, v{r}")
    for r, t in Z: e(f"v_mul_f32 v{r}, s15, v{r}")
    e(f"v_lshlrev_b32 v{vk}, 31, v{lane}")
    e(f"v_or_b32 v{vk}, 0x3f003f00, v{vk}")
    e(f"v_cos_f32 v{dl}, v{t3}")
    e(f"v_sin_f32 v{dl+1}, v{t3}")
    def gen(n):
        if CH:
            W = (CM, TT)[n & 1]; O = (CM, TT)[1 - (n & 1)]
            if n < 2:
                if n:
                    e(f"v_add_f32 v{dl}, v{dl}, v{dl}")
                    for z in range(4): e(f"v_add_f32 v{bs+z}, v{t3}, v{bs+z}")
                for z in range(4):
                    e(f"v_cos_f32 v{W+2*z}, v{bs+z}")
                    e(f"v_sin_f32 v{W+2*z+1}, -v{bs+z}")
            elif CH == 1:
                for z in range(4): e(f"v_pk_fma_f32 {vr(W+2*z,2)}, {vr(O+2*z,2)}, {vr(dl,2)}, {vr(W+2*z,2)} op_sel:[0,0,0] op_sel_hi:[1,0,1] neg_lo:[0,0,1] neg_hi:[0,0,1]")
            else:
                for z in range(8): e(f"v_fma_f32 v{W+z}, v{O+z}, v{dl}, -v{W+z}")
            for z in range(4): e(f"v_cvt_pk_bf16_f32 v{G[n]+z}, v{W+2*z}, v{W+2*z+1}")
            if n == 0: e(f"v_cndmask_b32 v{G[0]}, v{G[0]}, v{vk}, vcc")
            return
        if n % 14 == 0:
            for z in range(4):
                if n: e(f"v_fmamk_f32 v{bs+z}, v{t3}, {f32(float(n))}, v{bs+z}")
            for z in range(4):
                e(f"v_cos_f32 v{CM+2*z}, v{bs+z}")
                e(f"v_sin_f32 v{CM+2*z+1}, -v{bs+z}")
        else:
            for z in range(4): e(f"v_pk_mul_f32 {vr(TT+2*z,2)}, {vr(CM+2*z,2)}, {vr(dl,2)} op_sel:[0,0] op_sel_hi:[1,0]")
            for z in range(4): e(f"v_pk_fma_f32 {vr(CM+2*z,2)}, {vr(CM+2*z,2)}, {vr(dl,2)}, {vr(TT+2*z,2)} op_sel:[1,1,0] op_sel_hi:[0,1,1] neg_hi:[0,1,0]")
        for z in range(4): e(f"v_cvt_pk_bf16_f32 v{G[n]+z}, v{CM+2*z}, v{CM+2*z+1}")
        if n == 0: e(f"v_cndmask_b32 v{G[0]}, v{G[0]}, v{vk}, vcc")
    for n in range(NG0): gen(n)
    e("s_waitcnt lgkmcnt(0)")
    mk_srd(A, 44, 34, WS_BYTES)
    ty = {}
    for i in range(7):
        e(f"s_add_u32 m0, s57, {i*4096}")
        if i: e(f"s_add_u32 s13, s13, {64*4096}")
        ty[i] = e(f"buffer_load_dwordx4 v{vy}, s[44:47], s13 offen lds{LD}")
    A.nts = 2; A.ts()
    for n in range(NG0, 28): gen(n)
    e(f"v_bfe_u32 v{t0}, v{lane}, 2, 2")
    e(f"v_lshl_add_u32 v{t0}, v{hh}, 2, v{t0}")
    e(f"v_lshlrev_b32 v{t0}, 6, v{t0}")
    e(f"v_bfe_u32 v{t1}, v{lane}, 4, 1")
    e(f"v_lshl_add_u32 v{t0}, v{t1}, 5, v{t0}")
    e(f"v_and_b32 v{t1}, 3, v{lane}")
    e(f"v_lshl_add_u32 v{ta}, v{t1}, 3, v{t0}")
    A.ts()
    rt = {}
    def rd(n):
        if n >= 28: return
        if n == 0 and SP: A.wait_vm(ty[SP - 1]); e("s_barrier"); A.ts()
        if n == 4 * SP: A.wait_vm(ty[6]); e("s_barrier"); A.ts()
        f = LF[n % 4]
        e(f"ds_read_b64_tr_b16 {vr(f,2)}, v{ta} offset:{n*1024}")
        rt[n] = e(f"ds_read_b64_tr_b16 {vr(f+2,2)}, v{ta} offset:{n*1024+512}")
    rd(0); rd(1); rd(2)
    for n in range(28):
        A.wait_ld(rt[n])
        e(f"v_mfma_f32_32x32x16_bf16 {vr(acc,16)}, {vr(G[n],4)}, {vr(LF[n%4],4)}, {'0' if n == 0 else vr(acc,16)}")
        rd(n + 3)
    A.ts()
    for q in range(4): e(f"ds_write_b128 v{xw}, {vr(acc+4*q,4)} offset:{q*1024}")
    A.wait_all_ld()
    e("s_barrier")
    A.ts_flush(kidx)
    e("s_endpgm")
    A.label("k3_epi"); A.reset_counts()
    e(f"v_mul_u32_u24 v{vx}, 28672, v{t0}")
    e(f"v_lshlrev_b32 v{vb}, 4, v{hh}")
    e(f"v_add_u32 v{vx}, v{vx}, v{vb}")
    e(f"s_mul_i32 s61, s61, {112 if IL & 1 else 14}")
    e("s_add_u32 s61, s61, s9")
    e("s_lshl_b32 s61, s61, 11")
    e(f"s_add_u32 s61, s61, {114688 if IL & 1 else PB}")
    e("s_lshl_b32 s10, s9, 6")
    e("s_lshl_b32 s59, s5, 10")
    e("s_add_u32 s59, s59, s8")
    e("s_mul_i32 s59, s59, 896")
    e("s_add_u32 s59, s59, s10")
    e(f"s_mov_b32 s14, {f32(2.0 / (2048 * 448))}")
    e("s_mov_b32 s15, 0xffff0000")
    e(f"s_add_u32 s58, s59, {XC}")
    e("s_mov_b32 s62, 0x3f80")
    e("s_mov_b32 s63, 0x3f800000")
    e("s_waitcnt lgkmcnt(0)")
    mk_srd(A, 44, 34, WS_BYTES)
    mk_srd(A, 36, 16, 1835008)
    if SB: e("s_load_dwordx16 s[16:31], s[30:31], s10")
    else: mk_srd(A, 48, 30, 896)
    if SLP: e(f"s_sleep {SLP}")
    tok = {}
    for qq in range(2):
        if not SB: e(f"buffer_load_dwordx4 {vr(B2+4*qq,4)}, v{vb}, s[48:51], s10 offen offset:{qq*32}")
        tok['x'] = e(f"buffer_load_dwordx4 {vr(X+4*qq,4)}, v{vx}, s[{'44:47' if CPY & 2 else '36:39'}], s{58 if CPY & 2 else 59} offen offset:{qq*32}")
    for kq in range(4):
        if kq: e(f"s_add_u32 s61, s61, {28672 if IL & 1 else 64*28672}")
        for qq in range(2):
            tok[kq] = e(f"buffer_load_dwordx4 {vr(P[kq]+4*qq,4)}, v{l16}, s[44:47], s61 offen offset:{qq*1024}{LD}")
    A.nts = 2; A.ts()
    mk_srd(A, 52, 32, 1835008)
    if SB:
        e("s_waitcnt lgkmcnt(0)")
        for hf in range(2):
            if hf: e("s_mov_b32 exec_lo, 0")
            for r in range(8): e(f"v_mov_b32 v{B2+r}, s{16 + 4*(r>>1) + 2*hf + (r&1)}")
        e("s_mov_b32 exec_lo, -1")
    if SP: e("s_barrier")
    e("s_barrier"); A.ts()
    A.wait_vm(tok['x'])
    for r in ((X,) if SB else (X, B2)):
        for qq in range(2):
            for j in range(2): e(f"v_permlane32_swap_b32 v{r+4*qq+j}, v{r+4*qq+2+j}")
    def unp(src, first):
        if D2 and not first:
            for j in range(8):
                e(f"v_dot2c_f32_bf16 v{S+2*j}, s62, v{src+j}")
                e(f"v_dot2c_f32_bf16 v{S+2*j+1}, s63, v{src+j}")
            return
        for j in range(8):
            d = S if first else T
            e(f"v_lshlrev_b32 v{d+2*j}, 16, v{src+j}")
            e(f"v_and_b32 v{d+2*j+1}, s15, v{src+j}")
        if not first:
            for j in range(16): e(f"v_add_f32 v{S+j}, v{S+j}, v{T+j}")
    unp(X, True)
    unp(B2, False)
    for kq in range(4):
        A.wait_vm(tok[kq])
        unp(P[kq], False)
    A.ts()
    e("s_barrier")
    A.ts()
    rk = {}
    for q in range(4): rk[q] = e(f"ds_read_b128 {vr(acc+4*q,4)}, v{xw} offset:{q*1024}")
    for qq in range(2):
        for q in (2 * qq, 2 * qq + 1):
            A.wait_ld(rk[q])
            for j in range(4 * q, 4 * q + 4): e(f"v_fma_f32 v{S+j}, v{acc+j}, s14, v{S+j}")
        for j in range(4 * qq, 4 * qq + 4): e(f"v_cvt_pk_bf16_f32 v{X+j}, v{S+2*j}, v{S+2*j+1}")
        for j in range(2): e(f"v_permlane32_swap_b32 v{X+4*qq+j}, v{X+4*qq+2+j}")
        e(f"buffer_store_dwordx4 {vr(X+4*qq,4)}, v{vx}, s[52:55], s59 offen offset:{qq*32}{ST3}")
    A.ts_flush(kidx)
    e("s_endpgm")
    return nv
```

```python
import sys
from asmlib import *
from k1 import *
from k2 import *

def build(mode="v3", PD=12, bar_at=17, LD="", ST=" sc0 sc1", dbg=0, ra=7, rd=4, ST1=None, NX0=7, NQ1=1, PFW2=240, prio=1, PRIO=3, HPK=0, cpf=1, GS=0, XD=2, PC=2, PF=6, r1=0, r2=0, fb=1010130, STF=None, b0=0, NG0=3, SLP=4, MS=24, HS=0, NH1=14, HP2=3, BP=14, EB=0, D2=0, ST3="", WM=0, K3B=1, SP=5, SB=1, CH=1, CPY=0):
    fb = [int(c) for c in str(fb)[1:]]
    A = Asm()
    A.dbg = bool(dbg); A.cpf = cpf
    L = []
    K = []
    A.raw('.amdgcn_target "amdgcn-amd-amdhsa--gfx950"\n.text')
    nv = gen_k1(A, "k1_kernel", ST if ST1 is None else ST1, NX0, NQ1, PFW2, PRIO, HPK, GS, XD, MS, HS, NH1, HP2, BP, CPY)
    assert nv <= 251; nv = 252
    L.append(("k1_kernel", 256, 512, K1_LDS)); K.append(kd("k1_kernel", nv, 102))
    if mode == "v3":
        gl = 114688
        prolog(A, "k2_kernel", 256, 231)
        A.e("s_cmp_ge_u32 s3, 4")
        A.e("s_cbranch_scc1 k2_fft")
        nv = gemm4(A, 1, PC, PF, LD, ST, 1, (r1, r2), b0, CPY)
        A.label("k2_fft"); A.reset_counts()
        A.e("s_cmp_ge_u32 s2, 225")
        A.e("s_cbranch_scc1 k2_warm" if WM else "s_cbranch_scc1 k2_kernel_end")
        A.e("s_sub_u32 s3, s3, 4")
        if prio: A.e("s_setprio 3")
        nv = max(nv, fft_block(A, 1, gl, lambda: A.e("s_barrier"), LD, ST if STF is None else STF, 1, 4, False, 6 + b0 - sum(fb), fb))
        if WM: A.e("s_endpgm"); k2_warm(A, WM)
        epilog(A, "k2_kernel"); assert nv <= 231; nv = 232
        L.append(("k2_kernel", 256, 512, gl + 16384)); K.append(kd("k2_kernel", nv, 102))
        if K3B:
            prolog(A, "k3_kernel", 256, 191)
            nv = k3b_block(A, 1, LD, 2, NG0, SLP, 1, SP, ST3, SB, CH, CPY)
            epilog(A, "k3_kernel"); assert nv <= 191; nv = 192
            A.raw("code_end:")
            L.append(("k3_kernel", 256, 512, 28672 + 16384)); K.append(kd("k3_kernel", nv, 102))
        else:
            prolog(A, "k3_kernel", 224, 143)
            nv = k3_block(A, 1, LD, 2, NG0, SLP, EB, D2, ST3)
            epilog(A, "k3_kernel"); assert nv <= 143; nv = 144
            A.raw("code_end:")
            L.append(("k3_kernel", 224, 512, 57344 + 32768)); K.append(kd("k3_kernel", nv, 102))
    else:
        gl = max(PD*8192, 69632)
        prolog(A, "k2_kernel", 225, 207)
        A.e("s_cmp_ge_u32 s3, 4")
        A.e("s_cbranch_scc1 k2_fft")
        A.e("s_cmp_ge_u32 s2, 224")
        A.e("s_cbranch_scc1 k2_kernel_end")
        nv = gemm_block(A, 1, 28, 0, 'part', PD, bar_at, LD, ST, 1, (ra, rd), not prio)
        A.label("k2_fft"); A.reset_counts()
        A.e("s_sub_u32 s3, s3, 4")
        if prio: A.e("s_setprio 3")
        nv = max(nv, fft_block(A, 1, gl, lambda: A.e("s_barrier"), LD, ST, 1, 4, not prio))
        epilog(A, "k2_kernel"); assert nv <= 207; nv = 208
        L.append(("k2_kernel", 225, 512, gl + 8192)); K.append(kd("k2_kernel", nv, 102))
        prolog(A, "k3_kernel", 224, 167)
        nv = gemm_block(A, 1, 0, 7, 'final', 7, None, LD, ST)
        epilog(A, "k3_kernel"); assert nv <= 167; nv = 168
        A.raw("code_end:")
        L.append(("k3_kernel", 224, 256, 69632)); K.append(kd("k3_kernel", nv, 102))
    hdr = "".join(f"; @launch kernel={n} grid=({g},1,1) block=({b},1,1) lds={l}\n" for n, g, b, l in L)
    return hdr + A.text() + '.section .rodata,"a"\n' + "".join(K)

if __name__ == "__main__":
    out = sys.argv[1]
    kw = {}
    for a in sys.argv[2:]:
        k, v = a.split("=")
        kw[k] = int(v) if v.lstrip("-").isdigit() else v.replace("_", " ")
    open(out, "w").write(build(**kw))
```

```python
from asmlib import *
import struct
def f32(x): return "0x%08x" % struct.unpack("<I", struct.pack("<f", x))[0]

HF = 0
import os
PRE = int(os.environ.get("PRE", "0"))
IL = int(os.environ.get("IL", "3"))
HS_ = 229376 if IL & 1 else 114688
X1F = HF + 64 * HS_
Y1T = X1F + (0 if IL & 2 else 448 * 4096)
WT = Y1T + 448 * 4096
IDF = WT + 225 * 8192
F1T = IDF + 14 * 28 * 1024
F2T = F1T + 16384
WS_END = F2T + 4096
WS_BYTES = 268435456
OOB = 0x10000000
W2C = 24 << 20
XC = 26 << 20

def mk_srd(A, d, src, nbytes):
    A.e(f"s_mov_b32 s{d}, s{src}")
    A.e(f"s_and_b32 s{d+1}, s{src+1}, 0xffff")
    A.e(f"s_mov_b32 s{d+2}, {nbytes}")
    A.e(f"s_mov_b32 s{d+3}, 0x00020000")

def header(A, name):
    A.raw(f".globl {name}\n.p2align 8\n.type {name},@function\n{name}:")
    A.reset_counts()

def load_args(A):
    A.e("s_load_dwordx16 s[16:31], s[0:1], 0")
    A.e("s_load_dwordx2 s[32:33], s[0:1], 64")
    A.e("s_load_dwordx2 s[34:35], s[0:1], 80")

def code_pf(A, name, vd):
    if not A.cpf: return
    A.e("s_getpc_b64 s[36:37]")
    A.raw(f"{name}_pc:")
    A.e(f"v_lshlrev_b32 v{vd}, 7, v0")
    A.e(f"v_min_u32 v{vd}, code_end-{name}_pc-4, v{vd}")
    A.e(f"global_load_dword v{vd}, v{vd}, s[36:37]")

GC0 = -2.0 * 0.7978845608028654 * 1.4426950408889634
GC1 = GC0 * 0.044715

L_W1 = 0
L_DF = 114688
L_XT = L_DF + 28 * 1024
L_CS = L_XT + 16384
L_RS = L_CS + 2048
K1_LDS = L_RS + 1024

def gen_k1(A, name, ST="", NX0=4, NQ1=1, PFW2=1, PRIO=0, HPK=0, GS=8, XD=0, MSL=0, HS=0, NH1=8, HP2=0, BP=14, CPY=0):
    header(A, name)
    e = A.e
    e("s_cmp_ge_u32 s2, 256")
    e(f"s_cbranch_scc1 {name}_end")
    load_args(A)
    code_pf(A, name, 251)
    A.nts = 0; A.ts(True); A.ts()
    R = Regs(1)
    lane = R.alloc()
    t0, t1, t2, t3 = [R.alloc() for _ in range(4)]
    e(f"v_lshrrev_b32 v{t0}, 6, v0")
    e(f"v_and_b32 v{lane}, 63, v0")
    e(f"v_readfirstlane_b32 s3, v{t0}")
    e("s_cmp_ge_u32 s2, 224")
    e(f"s_cbranch_scc1 {name}_misc")
    MF = "v_mfma_f32_32x32x16_bf16"
    MS = "v_mfma_f32_16x16x32_bf16"
    def mix(x, y):
        o = []
        nx, ny = len(x), len(y)
        i = j_ = 0
        while i < nx or j_ < ny:
            if j_ >= ny or (i < nx and i * ny <= j_ * nx): o.append(x[i]); i += 1
            else: o.append(y[j_]); j_ += 1
        return o
    l16, hh, t31 = [R.alloc() for _ in range(3)]
    SEL = R.alloc(4); HP = R.alloc(8); g8 = R.alloc(8); PC = R.alloc(2); PS = R.alloc(2)
    g = [g8 + i for i in range(8)]
    ta = [R.alloc() for _ in range(4)]
    e("s_and_b32 s69, s3, 3")
    e("s_and_b32 s4, s2, 7")
    e("s_lshr_b32 s5, s2, 3")
    e("s_and_b32 s6, s5, 1")
    e("s_bfe_u32 s12, s5, 0x10001")
    e("s_lshr_b32 s13, s5, 2")
    e("s_and_b32 s7, s4, 1")
    e("s_mul_i32 s7, s7, 7")
    e("s_add_u32 s7, s7, s13")
    e("s_lshr_b32 s8, s4, 1")
    e("s_lshl_b32 s8, s8, 1")
    e("s_add_u32 s8, s8, s12")
    e("s_lshl_b32 s8, s8, 2")
    e("s_add_u32 s8, s8, s69")
    def r8pc():
        e(f"v_lshrrev_b32 v{t0}, 3, v{lane}")
        e(f"v_and_b32 v{t1}, 7, v{lane}")
    def common2():
        e(f"v_lshlrev_b32 v{l16}, 4, v{lane}")
        e(f"v_and_b32 v{t31}, 31, v{lane}")
        e(f"v_lshrrev_b32 v{hh}, 5, v{lane}")
        e(f"s_mov_b32 s15, {f32(1.0/448)}")
        e("s_lshl_b32 s9, s69, 12")
        e(f"s_add_u32 s9, s9, {L_XT}")
        e("s_lshl_b32 s63, s8, 1")
        e("s_add_u32 s63, s63, s6")
        e(f"s_mul_i32 s63, s63, {HS_}")
        e("s_lshl_b32 s64, s7, 13")
        e("s_add_u32 s63, s63, s64")
        e("s_lshl_b32 s64, s6, 12")
        e("s_add_u32 s63, s63, s64")
        e("s_xor_b32 s64, s63, 4096")
        e("s_lshl_b32 s62, s69, 8")
        e(f"s_add_u32 s62, s62, {L_RS}")
    def common3():
        e(f"v_bfe_u32 v{t0}, v{lane}, 2, 2")
        e(f"v_lshl_add_u32 v{t1}, v{hh}, 3, v{t0}")
        e(f"v_lshlrev_b32 v{t1}, 7, v{t1}")
        e(f"v_bfe_u32 v{t2}, v{lane}, 3, 1")
        e(f"v_lshl_add_u32 v{t1}, v{t2}, 6, v{t1}")
        e(f"v_bfe_u32 v{t2}, v{lane}, 4, 1")
        e(f"v_lshl_add_u32 v{t1}, v{t2}, 5, v{t1}")
        e(f"v_and_b32 v{t2}, 3, v{lane}")
        e(f"v_lshl_add_u32 v{ta[0]}, v{t2}, 3, v{t1}")
        e(f"v_lshrrev_b32 v{t0}, 2, v{lane}")
        e(f"v_xor_b32 v{t0}, v{t0}, v{lane}")
        e(f"v_and_b32 v{t0}, 4, v{t0}")
        e(f"v_cmp_eq_u32 vcc, 0, v{t0}")
        e(f"v_mov_b32 v{t0}, 0x3f803f80")
        for i in range(4):
            e(f"v_cndmask_b32 v{SEL+i}, 0, v{t0}, vcc")
    def gelu(b, a, pk, qs):
        S = []
        for q in qs:
            if pk:
                ix = [a + 4 * q, a + 4 * q + 2]
                tm = [g[(q & 1) * 4], g[(q & 1) * 4 + 2]]
                S += [f"v_pk_mul_f32 {vr(t,2)}, {vr(x,2)}, {vr(x,2)}" for x, t in zip(ix, tm)]
                S += [f"v_pk_fma_f32 {vr(t,2)}, {vr(t,2)}, {vr(PC,2)}, {vr(PC,2)} op_sel:[0,0,1] op_sel_hi:[1,0,1]" for t in tm]
                S += [f"v_pk_mul_f32 {vr(t,2)}, {vr(t,2)}, {vr(x,2)}" for x, t in zip(ix, tm)]
                for t in tm: S += [f"v_exp_f32 v{t}, v{t}", f"v_exp_f32 v{t+1}, v{t+1}"]
                S += [f"v_pk_fma_f32 {vr(t,2)}, {vr(t,2)}, {vr(PS,2)}, {vr(PS,2)} op_sel_hi:[1,0,0]" for t in tm]
                for t in tm: S += [f"v_rcp_f32 v{t}, v{t}", f"v_rcp_f32 v{t+1}, v{t+1}"]
                S += [f"v_pk_mul_f32 {vr(t,2)}, {vr(t,2)}, {vr(x,2)}" for x, t in zip(ix, tm)]
            else:
                ix = [a + 4 * q + i for i in range(4)]
                tt = g[(q & 1) * 4:(q & 1) * 4 + 4]
                tm = [tt[0], tt[2]]
                Z = list(zip(ix, tt))
                S += [f"v_mul_f32 v{t}, v{x}, v{x}" for x, t in Z]
                S += [f"v_fma_f32 v{t}, v{t}, v{PC}, v{PC+1}" for x, t in Z]
                S += [f"v_mul_f32 v{t}, v{t}, v{x}" for x, t in Z]
                S += [f"v_exp_f32 v{t}, v{t}" for x, t in Z]
                S += [f"v_fma_f32 v{t}, v{t}, v{PS}, v{PS}" for x, t in Z]
                S += [f"v_rcp_f32 v{t}, v{t}" for x, t in Z]
                S += [f"v_mul_f32 v{t}, v{t}, v{x}" for x, t in Z]
            S += [f"v_cvt_pk_bf16_f32 v{HP+2*q+i}, v{tm[i]}, v{tm[i]+1}" for i in range(2)]
            if q & 1:
                o = (2 * b + (q >> 1)) * 1024
                S.append(f"buffer_store_dwordx4 {vr(HP+4*(q>>1),4)}, v{l16}, s[44:47], s{63 if o < 4096 else 64} offen offset:{o % 4096}{ST}")
        return S
    def gelu8(b, a, h_):
        Z = [(a + 8 * h_ + i, g[i]) for i in range(8)]
        S = [f"v_mul_f32 v{t}, v{x}, v{x}" for x, t in Z]
        S += [f"v_fma_f32 v{t}, v{t}, v{PC}, v{PC+1}" for x, t in Z]
        for x, t in Z: S += [f"v_mul_f32 v{t}, v{t}, v{x}"]
        S2 = []
        for x, t in Z: S2 += [f"v_exp_f32 v{t}, v{t}"]
        S3 = [f"v_fma_f32 v{t}, v{t}, v{PS}, v{PS}" for x, t in Z]
        S4 = [f"v_rcp_f32 v{t}, v{t}" for x, t in Z]
        S5 = [f"v_mul_f32 v{t}, v{t}, v{x}" for x, t in Z]
        S = S[:18] + mix(S2[:6], S[18:]) + S2[6:] if False else S + S2
        S += S3[:2] + mix(S4[:6], S3[2:]) + mix(S4[6:], S5[:2]) + S5[2:]
        S += [f"v_cvt_pk_bf16_f32 v{HP+4*h_+i}, v{g[2*i]}, v{g[2*i+1]}" for i in range(4)]
        o = (2 * b + h_) * 1024
        S.append(f"buffer_store_dwordx4 {vr(HP+4*h_,4)}, v{l16}, s[44:47], s{63 if o < 4096 else 64} offen offset:{o % 4096}{ST}")
        return S
    pcs = [f"v_mul_f32 v{PC+1}, {f32(GC0)}, v{PS+1}", f"v_mul_f32 v{PC}, v{PS+1}, v{PS+1}",
           f"v_mul_f32 v{PC}, v{PC}, v{PC+1}", f"v_mul_f32 v{PC}, {f32(0.044715)}, v{PC}"]
    XOFF = [0, L_DF - L_XT]
    Rsave = R.n
    CFg = [(Rsave + 3) // 4 * 4 + 4 * i for i in range(4)]
    jk = [CFg[3] + 4 + i for i in range(8)]
    common2()
    e("s_lshl_b32 s14, s7, 5")
    e(f"v_add_u32 v{t0}, s14, v{t31}")
    e(f"v_lshrrev_b32 v{t1}, 1, v{t0}")
    e(f"v_and_b32 v{t2}, 1, v{t0}")
    e(f"v_cmp_eq_u32 vcc, 1, v{t0}")
    e(f"v_mov_b32 v{t3}, 224")
    e(f"v_cndmask_b32 v{t1}, v{t1}, v{t3}, vcc")
    e(f"v_cndmask_b32 v{t2}, v{t2}, 0, vcc")
    e(f"v_cvt_f32_u32 v{t1}, v{t1}")
    e(f"v_cvt_f32_u32 v{t2}, v{t2}")
    e(f"v_mul_f32 v{t2}, 0x3e800000, v{t2}")
    for j_ in range(1, 8):
        e(f"v_mul_f32 v{jk[j_]}, {f32(j_/448.0)}, v{t1}")
    e("s_mul_i32 s10, s3, 3")
    e("s_sub_u32 s11, s3, 4")
    e("s_max_i32 s11, s11, 0")
    e("s_add_u32 s10, s10, s11")
    e("s_lshl_b32 s66, s10, 10")
    e("s_lshl_b32 s10, s10, 4")
    e("s_lshl_b32 s11, s13, 6")
    e("s_add_u32 s10, s10, s11")
    e(f"v_lshlrev_b32 v{t0}, 3, v{hh}")
    e(f"v_add_u32 v{t0}, s10, v{t0}")
    e(f"v_cvt_f32_u32 v{t0}, v{t0}")
    e(f"v_mul_f32 v{t0}, v{t0}, v{t1}")
    e(f"v_mul_f32 v{t1}, {f32(16.0)}, v{t1}")
    e(f"s_mov_b32 s65, {f32(-448.0)}")
    e(f"s_add_u32 s66, s66, {L_DF}")
    e(f"v_add_u32 v{jk[0]}, s66, v{l16}")
    def dgen(i):
        fr = CFg[i % 4]
        e(f"v_mul_f32 v{t3}, s15, v{t0}")
        e(f"v_floor_f32 v{t3}, v{t3}")
        e(f"v_fma_f32 v{t3}, v{t3}, s65, v{t0}")
        e(f"v_fma_f32 v{g[0]}, v{t3}, s15, v{t2}")
        for j_ in range(1, 8):
            e(f"v_add_f32 v{g[j_]}, v{g[0]}, v{jk[j_]}")
        for j_ in range(8):
            e(f"v_cos_f32 v{g[j_]}, v{g[j_]}")
        e(f"v_add_f32 v{t0}, v{t0}, v{t1}")
        for j_ in range(4):
            e(f"v_cvt_pk_bf16_f32 v{fr+j_}, v{g[2*j_]}, v{g[2*j_+1]}")
        e(f"ds_write_b128 v{jk[0]}, {vr(fr,4)} offset:{i*1024}")
    for i in range(3): dgen(i)
    e("s_cmp_ge_u32 s3, 4")
    e(f"s_cbranch_scc1 {name}_help")
    XF = R.alloc(112)
    acc = [R.alloc(16), R.alloc(16)]
    GR = R.alloc(16); SM = R.alloc(4)
    NB = 8
    AF = [R.alloc(4) for _ in range(NB)]
    AX = R.alloc(4); BX = R.alloc(4)
    xw0, xw1, vdf = HP, HP + 1, HP + 2
    xr = [acc[0] + i for i in range(4)]
    vxo, vxc = HP + 3, HP + 4
    vst, vrs, vgr, vax, vxa, vxb = [R.alloc() for _ in range(6)]
    if PRIO: e(f"s_setprio {PRIO}")
    r8pc()
    e("s_lshl_b32 s10, s6, 10")
    e("s_add_u32 s10, s10, s8")
    e("s_mul_i32 s52, s10, 896")
    for i in range(1, 4):
        e(f"s_add_u32 s{52+i}, s52, {i*(28672 if XD == 2 else 229376)}")
    e("s_lshl_b32 s59, s13, 7")
    if XD == 1:
        e(f"v_mul_u32_u24 v{vxo}, 28672, v{t31}")
        e(f"v_lshl_add_u32 v{vxo}, v{hh}, 4, v{vxo}")
    elif XD == 2:
        e(f"v_bfe_u32 v{t2}, v{lane}, 2, 3")
        e(f"v_mul_u32_u24 v{vxo}, {4*28672}, v{t2}")
        e(f"v_and_b32 v{t2}, 3, v{lane}")
        e(f"v_lshl_add_u32 v{vxo}, v{t2}, 5, v{vxo}")
        e(f"v_lshl_add_u32 v{vxo}, v{hh}, 4, v{vxo}")
        e("s_mov_b32 s48, 0x55555555"); e("s_mov_b32 s49, 0x55555555")
        e("s_mov_b32 s50, 0x33333333"); e("s_mov_b32 s51, 0x33333333")
    else:
        e(f"v_mul_u32_u24 v{vxo}, 28672, v{t0}")
        e(f"v_lshl_add_u32 v{vxo}, v{t1}, 4, v{vxo}")
    A.ts()
    e("s_waitcnt lgkmcnt(0)")
    A.ld_done = A.nld
    mk_srd(A, 36, 16, 1835008)
    xtok = {}
    def xload(c):
        e(f"v_add_u32 v{vxc}, s59, v{vxo}")
        for i in range(4):
            if XD == 1: xtok[c, i] = e(f"buffer_load_dwordx4 {vr(XF+16*c+4*i,4)}, v{vxc}, s[36:39], s52 offen offset:{32*i}")
            else: xtok[c, i] = e(f"buffer_load_dwordx4 {vr(XF+16*c+4*i,4)}, v{vxc}, s[36:39], s{52+i} offen")
        e("s_add_u32 s59, s59, 128")
        e("s_cmp_eq_u32 s59, 896")
        e("s_cselect_b32 s59, 0, s59")
    for c in range(NX0): xload(c)
    A.ts()
    if NX0 == 7: e("s_barrier")
    mk_srd(A, 44, 34, WS_BYTES)
    if not XD:
        e(f"v_lshrrev_b32 v{t2}, 1, v{t0}")
        e(f"v_xor_b32 v{t2}, v{t2}, v{t1}")
        e(f"v_lshlrev_b32 v{t2}, 4, v{t2}")
        e(f"v_lshl_add_u32 v{xw0}, v{t0}, 7, v{t2}")
        e(f"v_add_u32 v{xw0}, s9, v{xw0}")
        e(f"v_xor_b32 v{xw1}, 64, v{xw0}")
        e(f"v_bfe_u32 v{t2}, v{lane}, 1, 3")
        e(f"v_xor_b32 v{t2}, v{t2}, v{hh}")
        e(f"v_lshlrev_b32 v{t2}, 4, v{t2}")
        e(f"v_lshl_add_u32 v{xr[0]}, v{t31}, 7, v{t2}")
        e(f"v_add_u32 v{xr[0]}, s9, v{xr[0]}")
        for q in range(1, 4):
            e(f"v_xor_b32 v{xr[q]}, {q*32}, v{xr[0]}")
    common3()
    e(f"v_xor_b32 v{ta[1]}, 64, v{ta[0]}")
    e(f"v_add_u32 v{ta[2]}, 57344, v{ta[0]}")
    e(f"v_add_u32 v{ta[3]}, 57344, v{ta[1]}")
    e(f"v_lshrrev_b32 v{t0}, 3, v{t31}")
    e(f"v_lshlrev_b32 v{t0}, 10, v{t0}")
    e(f"v_lshl_add_u32 v{t0}, v{t31}, 4, v{t0}")
    e(f"v_bfe_u32 v{t1}, v{t31}, 2, 1")
    e(f"v_lshl_add_u32 v{t0}, v{t1}, 9, v{t0}")
    e(f"v_and_b32 v{t1}, 3, v{t31}")
    e(f"v_lshl_add_u32 v{t0}, v{t1}, 2, v{t0}")
    e(f"v_add_u32 v{vgr}, s9, v{t0}")
    for a_ in (AX, BX):
        e(f"v_mov_b32 v{a_+2}, 0")
        e(f"v_mov_b32 v{a_+3}, 0")
    e("s_lshl_b32 s14, s7, 5")
    e(f"v_add_u32 v{t0}, s14, v{t31}")
    e(f"v_cmp_eq_u32 vcc, 0, v{t0}")
    e(f"v_mov_b32 v{t3}, 0x43e0")
    e(f"v_mov_b32 v{AX+1}, 0")
    e(f"v_cndmask_b32 v{AX}, 0, v{t3}, vcc")
    e(f"v_add_u32 v{vdf}, {L_DF}, v{l16}")
    e(f"v_lshlrev_b32 v{vax}, 3, v{t31}")
    e(f"v_add_u32 v{vax}, {L_CS}, v{vax}")
    e(f"v_add_u32 v{vxa}, s9, v{l16}")
    e(f"v_add_u32 v{vxb}, {XOFF[1]}, v{vxa}")
    e(f"v_lshlrev_b32 v{vst}, 12, v{t31}")
    e(f"v_lshl_add_u32 v{vst}, v{hh}, 9, v{vst}")
    e("s_lshl_b32 s67, s7, 17")
    e("s_lshl_b32 s68, s6, 11")
    e("s_add_u32 s67, s67, s68")
    e("s_lshl_b32 s68, s8, 4")
    e("s_add_u32 s67, s67, s68")
    e(f"s_add_u32 s67, s67, {X1F}")
    e(f"v_lshl_add_u32 v{vrs}, v{hh}, 4, s62")
    D = acc[1]
    xt = {}; ft = {}
    def trw(c, i):
        A.wait_vm(xtok[c, i])
        e(f"ds_write_b128 v{xw1 if i&1 else xw0}, {vr(XF+16*c+4*i,4)} offset:{i*1024}")
    def trr(c, q): xt[4*c+q] = e(f"ds_read_b128 {vr(XF+16*c+4*q,4)}, v{xr[q]}")
    def dfr(c, q): ft[4*c+q] = e(f"ds_read_b128 {vr(AF[(4*c+q)%8],4)}, v{vdf} offset:{(4*c+q)*1024}")
    A.ts()
    if NX0 < 7: e("s_barrier")
    for q in range(4): dfr(0, q)
    def dtr(c):
        X = [XF + 16 * c + 4 * i for i in range(4)]; T = [acc[0] + 4 * i for i in range(4)]
        F = []
        def op(d, s0, s1, qp, pre=None, w=None):
            for j in range(4):
                def f(j=j):
                    if j == 0 and w is not None: A.wait_vm(xtok[c, w])
                    if j == 0 and pre: e(pre)
                    e(f"v_cndmask_b32_dpp v{d+j}, v{s0+j}, v{s1+j}, vcc quad_perm:{qp} row_mask:0xf bank_mask:0xf")
                F.append(f)
        p1, p2 = "[1,0,3,2]", "[2,3,0,1]"
        op(T[0], X[1], X[0], p1, "s_mov_b64 vcc, s[48:49]", 1); op(T[2], X[3], X[2], p1, None, 3)
        op(T[1], X[0], X[1], p1, "s_not_b64 vcc, vcc"); op(T[3], X[2], X[3], p1)
        op(X[0], T[2], T[0], p2, "s_mov_b64 vcc, s[50:51]"); op(X[1], T[3], T[1], p2)
        op(X[2], T[0], T[2], p2, "s_not_b64 vcc, vcc"); op(X[3], T[1], T[3], p2)
        return F
    if not XD:
        for i in range(4): trw(0, i)
        for q in range(4): trr(0, q)
    if XD == 2:
        for f in dtr(0): f()
        A.ts()
        for c in range(7):
            if c + NX0 < 7: xload(c + NX0)
            if c + NX0 == 6: e("s_barrier")
            ops = dtr(c + 1) if c < 6 else []
            def fl(k):
                for _ in range(k):
                    if ops: ops.pop(0)()
            for q in range(4):
                ks = 4 * c + q
                x_ = vr(XF+4*ks, 4)
                e(f"{MF} {vr(GR,16)}, {x_}, {x_}, {'0' if ks == 0 else vr(GR,16)}")
                fl(3)
                e(f"{MS} {vr(SM,4)}, {vr(SEL,4)}, {x_}, {'0' if ks == 0 else vr(SM,4)}")
                fl(1)
                A.wait_ld(ft[ks])
                e(f"{MF} {vr(D,16)}, {x_}, {vr(AF[ks%8],4)}, {'0' if ks == 0 else vr(D,16)}")
                if c < 6: dfr(c + 1, q)
                fl(4)
    if XD != 2: A.ts()
    for c in range(7 if XD != 2 else 0):
        ops = []
        if c < 6:
            ops = [(lambda i=i: trw(c + 1, i)) for i in range(4)] + [(lambda q=q: trr(c + 1, q)) for q in range(4)] + [(lambda q=q: dfr(c + 1, q)) for q in range(4)]
            if XD: ops = [None] * 8 + ops[8:]
        if c + NX0 < 7: xload(c + NX0)
        for q in range(4):
            ks = 4 * c + q
            x_ = vr(XF+4*ks, 4)
            if XD: A.wait_vm(xtok[c, q])
            else: A.wait_ld(xt[ks])
            e(f"{MF} {vr(GR,16)}, {x_}, {x_}, {'0' if ks == 0 else vr(GR,16)}")
            for _ in range(2):
                if ops:
                    o_ = ops.pop(0)
                    if o_: o_()
            e(f"{MS} {vr(SM,4)}, {vr(SEL,4)}, {x_}, {'0' if ks == 0 else vr(SM,4)}")
        for q in range(4):
            ks = 4 * c + q
            A.wait_ld(ft[ks])
            e(f"{MF} {vr(D,16)}, {vr(XF+4*ks,4)}, {vr(AF[ks%8],4)}, {'0' if ks == 0 else vr(D,16)}")
            if ops: ops.pop(0)()
    A.ts()
    e("s_barrier")
    def stats():
        ssum, ssq = g[0], g[1]
        F = [(lambda q=q: e(f"ds_write_b128 v{vxa}, {vr(GR+4*q,4)} offset:{q*1024}")) for q in range(4)]
        tk = {}
        def rd(): tk[0] = e(f"ds_read_b32 v{ssq}, v{vgr}")
        F += [rd, lambda: e(f"v_mul_f32 v{ssum}, s15, v{SM}"),
              lambda: e(f"v_cmp_gt_u32 vcc, 32, v{lane}"), lambda: e(f"v_lshl_add_u32 v{t1}, v{t31}, 2, s62"),
              lambda: e(f"v_cvt_pk_bf16_f32 v{BX}, -v{ssum}, -v{ssum}"), None, None, None, None, None, None,
              lambda: A.wait_ld(tk[0])]
        seq = [f"v_mul_f32 v{ssq}, s15, v{ssq}",
            f"v_fma_f32 v{ssq}, -v{ssum}, v{ssum}, v{ssq}",
            f"v_max_f32 v{ssq}, 0, v{ssq}",
            f"v_cvt_pk_bf16_f32 v{t0}, v{ssq}, v{ssq}",
            f"v_lshlrev_b32 v{t0}, 16, v{t0}",
            f"v_add_f32 v{t0}, {f32(1e-5)}, v{t0}",
            f"v_cvt_pk_bf16_f32 v{t0}, v{t0}, v{t0}",
            f"v_lshlrev_b32 v{t0}, 16, v{t0}",
            f"v_sqrt_f32 v{t0}, v{t0}",
            f"v_cndmask_b32 v{BX}, 0, v{BX}, vcc",
            f"v_cvt_pk_bf16_f32 v{BX+1}, -v{ssum}, v{t0}",
            f"v_and_b32 v{PS}, 0xffff0000, v{BX+1}",
            f"v_rcp_f32 v{PS+1}, v{PS}",
            f"v_cndmask_b32 v{BX+1}, 0, v{BX+1}, vcc",
            f"ds_write_b32 v{t1}, v{PS} offset:128",
            f"ds_write_b32 v{t1}, v{PS+1}",
            f"{MF} {vr(D,16)}, {vr(BX,4)}, {vr(AX,4)}, {vr(D,16)}"]
        return F + [(lambda s=s: e(s)) for s in seq]
    def dft_epi():
        F = []
        tk = {}
        for h_ in range(2):
            def rd(h_=h_):
                e(f"ds_read_b128 {vr(g8,4)}, v{vrs} offset:{h_*64}")
                tk[h_] = e(f"ds_read_b128 {vr(g8+4,4)}, v{vrs} offset:{h_*64+32}")
            F += [rd, None, None, None, None]
            def ml(i, h_=h_):
                def f():
                    A.wait_ld(tk[h_])
                    e(f"v_mul_f32 v{g8+i}, v{g8+i}, v{D+8*h_+i}")
                return f
            F += [ml(i) for i in range(8)]
            F += [(lambda i=i, h_=h_: e(f"v_cvt_pk_bf16_f32 v{HP+4*h_+i}, v{g8+2*i}, v{g8+2*i+1}")) for i in range(4)]
            F.append(lambda h_=h_: e(f"buffer_store_dwordx4 {vr(HP+4*h_,4)}, v{vst}, s[44:47], s67 offen offset:{h_*1024}{ST}"))
        return F
    steps = [(b, ks) for b in range(4) for ks in range(28)]
    rtok = {}
    def issue_read(n):
        if n >= len(steps): return
        b, ks = steps[n]
        f = AF[n % NB]
        e(f"ds_read_b64_tr_b16 {vr(f,2)}, v{ta[b]} offset:{ks*2048}")
        rtok[n] = e(f"ds_read_b64_tr_b16 {vr(f+2,2)}, v{ta[b]} offset:{ks*2048+512}")
    PF = 4
    for n in range(PF):
        issue_read(n)
    n = 0
    axt = {}
    for b in range(4):
        A.ts()
        def axr(b=b): axt[b] = e(f"ds_read_b64 {vr(AX,2)}, v{vax} offset:{b*512}")
        if b == 0:
            fill = stats() + dft_epi() + [(lambda s=s: e(s)) for s in pcs]
            fill.insert(len(fill) - BP, lambda: e("s_barrier"))
            fill += [lambda: e("s_barrier"), axr] + [None] * 5
        else:
            wt = {}
            def aw(q, b=b): wt[0] = e(f"ds_write_b128 v{vxb if (b-1)&1 else vxa}, {vr(acc[(b-1)&1]+4*q,4)} offset:{q*1024}")
            def bar():
                A.wait_ld(wt[0]); e("s_barrier")
            gl = []
            for s_ in gelu8(b - 1, acc[(b-1)&1], 1): gl += [(lambda s_=s_: e(s_))] + ([None] if s_.startswith(TRANS) else [])
            fill = [None] * 5 + [(lambda q=q: aw(q)) for q in range(2)] + gl[:6] + [bar, axr] + gl[6:] + [None] * 4
            if GS == 0: fill = [None] + [(lambda q=q: aw(q)) for q in range(4)] + [None, bar, axr] + [None] * 20
        nf = len(fill)
        fi = 0
        for ks in range(28):
            issue_read(n + PF)
            if n % 2 == 0: A.wait_ld(rtok[n + 1])
            f = AF[n % NB]
            c_ = "0" if ks == 0 else vr(acc[b & 1], 16)
            e(f"{MF} {vr(acc[b&1],16)}, {vr(f,4)}, {vr(XF+4*ks,4)}, {c_}")
            tgt = (nf * (ks + 1) + 27) // 28
            while fi < tgt:
                if fill[fi]: fill[fi]()
                fi += 1
            n += 1
        A.wait_ld(axt[b])
        e(f"{MF} {vr(acc[b&1],16)}, {vr(AX,4)}, {vr(BX,4)}, {vr(acc[b&1],16)}")
    A.ts()
    for q in range(2): wt3 = e(f"ds_write_b128 v{vxb}, {vr(acc[1]+4*q,4)} offset:{q*1024}")
    gl = gelu(3, acc[1], True, (2, 3))
    for s_ in gl[:6]: e(s_)
    A.wait_ld(wt3)
    e("s_barrier")
    for s_ in gl[6:]: e(s_)
    A.ts_flush(0)
    e("s_endpgm")
    nv0 = R.n
    A.label(f"{name}_help")
    A.reset_counts()
    A.nts = 2
    R.n = Rsave
    CF = [R.alloc(4) for _ in range(8)]
    if HPK: e(f"s_setprio {HPK}")
    CA = R.alloc(4); HA = R.alloc(16)
    vwA, vwB, b1r, vxa, vax, vpw, vpr = [R.alloc() for _ in range(7)]
    dgen(3)
    r8pc()
    e(f"v_lshlrev_b32 v{t2}, 1, v{t0}")
    e(f"v_and_b32 v{t2}, 4, v{t2}")
    e(f"v_xor_b32 v{t2}, v{t2}, v{t1}")
    e(f"v_mul_u32_u24 v{vwA}, 3584, v{t0}")
    e(f"v_lshl_add_u32 v{vwA}, v{t2}, 4, v{vwA}")
    e("s_lshl_b32 s14, s6, 7")
    e(f"v_add_u32 v{vwA}, s14, v{vwA}")
    e(f"v_xor_b32 v{vwB}, 128, v{vwA}")
    e("s_mul_i32 s56, s69, 28672")
    e("s_lshl_b32 s10, s7, 8")
    e("s_add_u32 s56, s56, s10")
    e("s_add_u32 s10, s10, s14")
    e("s_lshl_b32 s11, s69, 6")
    e("s_xor_b32 s10, s10, s11")
    e("s_mul_i32 s57, s12, 28672")
    e("s_lshl_b32 s58, s69, 10")
    e("s_add_u32 s57, s57, s58")
    e("s_xor_b32 s58, s57, 28672")
    e("s_mul_i32 s60, s12, 7")
    e("s_lshl_b32 s61, s13, 1")
    e("s_add_u32 s60, s60, s61")
    e("s_cmp_ge_u32 s60, 14")
    e("s_cselect_b32 s61, 14, 0")
    e("s_sub_u32 s60, s60, s61")
    e("s_mul_i32 s60, s60, 114688")
    e("s_add_u32 s60, s60, s56")
    e(f"s_add_u32 s61, s56, {14*114688}")
    common3()
    e(f"v_mul_u32_u24 v{t0}, {28672-1024}, v{hh}")
    e("s_lshl_b32 s12, s69, 10")
    e(f"v_add3_u32 v{ta[0]}, v{ta[0]}, v{t0}, s12")
    e(f"v_xor_b32 v{ta[1]}, 64, v{ta[0]}")
    e(f"v_add_u32 v{ta[2]}, 57344, v{ta[0]}")
    e(f"v_add_u32 v{ta[3]}, 57344, v{ta[1]}")
    e(f"v_add_u32 v{vxa}, s9, v{l16}")
    e("s_lshl_b32 s12, s69, 2")
    e(f"s_add_u32 s12, s12, {L_CS}")
    e(f"v_lshl_add_u32 v{vpw}, v{t31}, 4, s12")
    e("s_lshl_b32 s12, s69, 9")
    e(f"s_add_u32 s12, s12, {L_CS}")
    e(f"v_lshl_add_u32 v{vpr}, v{t31}, 4, s12")
    e(f"v_lshl_add_u32 v{vax}, v{t31}, 3, s12")
    e(f"v_lshl_add_u32 v{t3}, v{t31}, 2, s62")
    e("s_waitcnt lgkmcnt(0)")
    A.ld_done = A.nld
    mk_srd(A, 40, 24, 1605632)
    mk_srd(A, 44, 34, WS_BYTES)
    mk_srd(A, 48, 26, 3584)
    A.ts()
    if NX0 < 7: e("s_barrier")
    e("s_barrier")
    wtok = {}
    def wload(p, i):
        if p == 0:
            if i == 0:
                e("s_mov_b32 s16, s60")
            else:
                e(f"s_add_u32 s{16+i}, s{15+i}, 114688")
                e(f"s_cmp_eq_u32 s{16+i}, s61")
                e(f"s_cselect_b32 s{16+i}, s56, s{16+i}")
        e(f"s_add_u32 m0, s{57 if i < 7 else 58}, {L_W1 + p*57344 + (i%7)*4096}")
        wtok[p] = e(f"buffer_load_dwordx4 v{vwB if p else vwA}, s[40:43], s{16+i} offen lds")
    if HS: e(f"s_sleep {HS}")
    e(f"v_lshlrev_b32 v{t2}, 1, v{t31}")
    e(f"buffer_load_ushort v{b1r}, v{t2}, s[48:51], s10 offen")
    for i in range(14): wload(0, i)
    for i in range(NH1): wload(1, i)
    A.ts()
    tk = {}
    def rdc(n_):
        b_, i = n_ // 7, n_ % 7
        if n_ % 14 == 0:
            A.wait_vm(wtok[n_ // 14]); A.ts()
        c_ = CF[n_ % 8]
        e(f"ds_read_b64_tr_b16 {vr(c_,2)}, v{ta[b_]} offset:{i*4096}")
        tk[n_] = e(f"ds_read_b64_tr_b16 {vr(c_+2,2)}, v{ta[b_]} offset:{i*4096+512}")
    def colsum(hf):
        for i in range(6): rdc(14 * hf + i)
        for i in range(14):
            n_ = 14 * hf + i
            A.wait_ld(tk[n_])
            ca = vr(HA + 4 * (n_ // 7), 4)
            e(f"{MS} {ca}, {vr(SEL,4)}, {vr(CF[n_%8],4)}, {'0' if n_ % 7 == 0 else ca}")
            if i + 6 < 14: rdc(n_ + 6)
        if hf:
            for b_ in range(4): e(f"ds_write_b32 v{vpw}, v{HA+4*b_} offset:{b_*512}")
            A.wait_all_ld()
    def axbuild():
        e(f"ds_read_b128 {vr(CA,4)}, v{vpr}")
        A.wait_all_ld()
        for s_ in [f"v_add_f32 v{CA}, v{CA}, v{CA+1}", f"v_add_f32 v{CA+2}, v{CA+2}, v{CA+3}", f"v_add_f32 v{CA}, v{CA}, v{CA+2}",
                   f"v_cvt_pk_bf16_f32 v{CA+1}, v{CA}, v{CA}",
                   f"v_lshlrev_b32 v{CA+2}, 16, v{CA+1}",
                   f"v_sub_f32 v{CA+3}, v{CA}, v{CA+2}",
                   f"v_cvt_pk_bf16_f32 v{g8}, v{CA}, v{CA+3}",
                   f"v_and_b32 v{CA+2}, 0xffff0000, v{g8}",
                   f"v_sub_f32 v{CA+3}, v{CA+3}, v{CA+2}",
                   f"v_cvt_pk_bf16_f32 v{g8+1}, v{CA+3}, 0",
                   f"v_lshl_or_b32 v{g8+1}, v{b1r}, 16, v{g8+1}",
                   f"ds_write_b64 v{vax}, {vr(g8,2)}"]: e(s_)
        A.wait_all_ld()
    A.wait_vm(wtok[0])
    e("s_barrier")
    for i in range(NH1, 14): wload(1, i)
    if HP2: e(f"s_setprio {HP2}")
    colsum(0)
    colsum(1)
    A.ts()
    e("s_barrier")
    axbuild()
    e("s_barrier")
    if HP2: e(f"s_setprio {HPK}")
    e(f"ds_read_b32 v{PS}, v{t3} offset:128")
    e(f"ds_read_b32 v{PS+1}, v{t3}")
    e(f"v_add_u32 v{t0}, {XOFF[1]}, v{vxa}")
    A.wait_all_ld()
    for s_ in pcs: e(s_)
    for b in range(4):
        e("s_barrier")
        A.ts()
        full = GS == 0 and b < 3
        tks = [e(f"ds_read_b128 {vr(HA+4*q,4)}, v{t0 if b&1 else vxa} offset:{q*1024}") for q in range(4 if full else 2)]
        A.wait_ld(tks[1])
        for s_ in (gelu(b, HA, True, (0, 1)) if b == 3 else gelu8(b, HA, 0)): e(s_)
        if full:
            A.wait_ld(tks[3])
            for s_ in gelu8(b, HA, 1): e(s_)
    A.ts_flush(0)
    e("s_endpgm")
    A.nts = 2
    R.n = nv0
    nv = R.n
    A.label(f"{name}_misc")
    A.reset_counts()
    e("s_nop 4")
    R = Regs(6)
    l16, i15, kk, va, vo, vk = [R.alloc() for _ in range(6)]
    P = R.alloc(4)
    ra = [R.alloc() for _ in range(16)]
    q_ = [R.alloc() for _ in range(12)]
    e("s_cmp_ge_u32 s3, 4")
    e(f"s_cbranch_scc1 {name}_{'pf' if PFW2 >= 2 else 'end'}")
    e("s_sub_u32 s4, s2, 224")
    e("s_and_b32 s5, s4, 3")
    e("s_lshr_b32 s6, s4, 2")
    e(f"v_lshlrev_b32 v{l16}, 4, v{lane}")
    e("s_waitcnt lgkmcnt(0)")
    mk_srd(A, 36, 18, 921600)
    mk_srd(A, 40, 20, 921600)
    mk_srd(A, 44, 34, WS_BYTES)
    e("s_lshl_b32 s7, s6, 2")
    e("s_add_u32 s7, s7, s3")
    e("s_lshl_b32 s7, s7, 2")
    e("s_add_u32 s7, s7, s5")
    e("s_mul_i32 s7, s7, 7200")
    e("s_lshl_b32 s8, s3, 13")
    if MSL: e(f"s_sleep {MSL}")
    for arr in range(2):
        for it in range(8):
            e(f"s_add_u32 m0, s8, {arr*32768 + it*1024}")
            e(f"s_add_u32 s9, s7, {it*1024}")
            e(f"buffer_load_dwordx4 v{l16}, s[{36+4*arr}:{39+4*arr}], s9 offen lds")
    e("s_lshl_b32 s10, s4, 2")
    e("s_add_u32 s10, s10, s3")
    A.ts()
    e(f"v_and_b32 v{i15}, 15, v{lane}")
    e(f"v_lshrrev_b32 v{kk}, 4, v{lane}")
    e(f"v_mul_u32_u24 v{va}, 450, v{i15}")
    e("s_lshl_b32 s11, s3, 2")
    e(f"v_add_u32 v{t0}, s11, v{kk}")
    e(f"v_lshl_add_u32 v{va}, v{t0}, 1, v{va}")
    e(f"v_lshlrev_b32 v{vo}, 13, v{t0}")
    e(f"v_lshl_add_u32 v{vo}, v{i15}, 4, v{vo}")
    e("s_lshl_b32 s12, s5, 11")
    e("s_lshl_b32 s13, s6, 8")
    e("s_add_u32 s12, s12, s13")
    e(f"s_add_u32 s12, s12, {WT}")
    e(f"v_cmp_eq_u32 vcc, 0, v{t0}")
    e(f"v_mov_b32 v{t1}, {OOB}")
    A.ts()
    e("s_waitcnt vmcnt(0)")
    e("s_barrier")
    A.ts()
    A.reset_counts()
    P2 = [P, R.alloc(4)]
    toks = {}
    def rdw(n_):
        o = (n_ & 1) * 8
        for r_ in range(4):
            e(f"ds_read_u16 v{ra[o+r_]}, v{va} offset:{r_*8192 + n_*32}")
            toks[n_] = e(f"ds_read_u16 v{ra[o+4+r_]}, v{va} offset:{32768 + r_*8192 + n_*32}")
    rdw(0)
    for n_ in range(15):
        A.wait_ld(toks[n_])
        if n_ + 1 < 15: rdw(n_ + 1)
        o = (n_ & 1) * 8
        for r_ in range(4):
            e(f"v_lshl_or_b32 v{P2[n_&1]+r_}, v{ra[o+4+r_]}, 16, v{ra[o+r_]}")
        if n_ == 14:
            e(f"v_cndmask_b32 v{vo}, v{t1}, v{vo}, vcc")
        e(f"buffer_store_dwordx4 {vr(P2[n_&1],4)}, v{vo}, s[44:47], s12 offen")
        e(f"s_add_u32 s12, s12, {16*8192}")
    if CPY:
        CB = [R.alloc(4) for _ in range(14)]
        for bit, ptr, nb, nl, dst in ((1, 28, 1605632, 13, W2C), (2, 16, 1835008, 14, XC)):
            mk_srd(A, 36, ptr, nb)
            e(f"s_mul_i32 s11, s10, {nl*1024}")
            e(f"v_add_u32 v{va}, s11, v{l16}")
            e(f"s_mov_b32 s12, {dst}")
            tk = []
            for it in range(nl if (CPY | 1) & bit else 0):
                if it % 4 == 0 and it: e(f"v_add_u32 v{va}, 4096, v{va}")
                tk.append(e(f"buffer_load_dwordx4 {vr(CB[it],4)}, v{va}, s[36:39], 0 offen offset:{(it%4)*1024}"))
            if CPY & bit:
                e(f"v_add_u32 v{vo}, s11, v{l16}")
                for it in range(nl):
                    if it % 4 == 0 and it: e(f"v_add_u32 v{vo}, 4096, v{vo}")
                    A.wait_vm(tk[it])
                    e(f"buffer_store_dwordx4 {vr(CB[it],4)}, v{vo}, s[44:47], s12 offen offset:{(it%4)*1024}{ST}")
                e("s_waitcnt vmcnt(0)")
                A.reset_counts()
        e("s_waitcnt vmcnt(0)")
    elif PFW2 == 1:
        mk_srd(A, 36, 28, 1605632)
        e("s_mul_i32 s11, s10, 13312")
        for it in range(13):
            e(f"buffer_load_dwordx4 {vr(P2[it&1],4)}, v{l16}, s[36:39], s11 offen")
            e("s_add_u32 s11, s11, 1024")
        e("s_waitcnt vmcnt(0)")
    A.ts_flush(0)
    if PFW2 >= 2:
        e("s_endpgm")
        A.label(f"{name}_pf"); A.reset_counts()
        e("s_sub_u32 s4, s2, 224")
        e("s_lshl_b32 s4, s4, 2")
        e("s_add_u32 s4, s4, s3")
        e("s_sub_u32 s4, s4, 4")
        e("s_mul_i32 s11, s4, 13312")
        e(f"v_lshlrev_b32 v{l16}, 4, v{lane}")
        e(f"v_add_u32 v{l16}, s11, v{l16}")
        e("s_waitcnt lgkmcnt(0)")
        mk_srd(A, 36, 28, 1605632)
        mk_srd(A, 44, 34, WS_BYTES)
        e("s_lshr_b32 s5, s4, 1")
        e("s_mul_i32 s5, s5, 229376")
        e("s_and_b32 s6, s4, 1")
        e("s_mul_i32 s6, s6, 57344")
        e("s_add_u32 s5, s5, s6")
        e(f"v_lshlrev_b32 v{va}, 7, v{lane}")
        def pre(off):
            for it in range(7):
                e(f"s_add_u32 s6, s5, {off + it*8192}")
                e(f"buffer_load_dword v{vo}, v{va}, s[44:47], s6 offen sc0 sc1")
        if PRE & 4: e(f"s_sleep {PRE >> 3}")
        if PRE & 2: pre(0)
        if PFW2 >= 200:
            e("s_barrier")
            if PFW2 > 200: e(f"s_sleep {PFW2 - 200}")
        elif PFW2 > 2: e(f"s_sleep {PFW2 - 2}")
        for it in range(13):
            if it % 4 == 0 and it: e(f"v_add_u32 v{l16}, 4096, v{l16}")
            e(f"buffer_load_dwordx4 {vr(P,4)}, v{l16}, s[36:39], 0 offen offset:{(it%4)*1024}")
        if PRE & 1: pre(114688)
    A.label(f"{name}_end")
    e("s_endpgm")
    return max(nv, R.n)
```

```python
from asmlib import *
import struct
def f32(x): return "0x%08x" % struct.unpack("<I", struct.pack("<f", x))[0]

HF = 0
import os
PRE = int(os.environ.get("PRE", "1024"))
IL = int(os.environ.get("IL", "3"))
HS_ = 229376 if IL & 1 else 114688
X1F = HF + 64 * HS_
Y1T = X1F + (0 if IL & 2 else 448 * 4096)
WT = Y1T + 448 * 4096
IDF = WT + 225 * 8192
F1T = IDF + 14 * 28 * 1024
F2T = F1T + 16384
WS_END = F2T + 4096
WS_BYTES = 268435456
OOB = 0x10000000
W2C = 24 << 20
XC = 26 << 20

def mk_srd(A, d, src, nbytes):
    A.e(f"s_mov_b32 s{d}, s{src}")
    A.e(f"s_and_b32 s{d+1}, s{src+1}, 0xffff")
    A.e(f"s_mov_b32 s{d+2}, {nbytes}")
    A.e(f"s_mov_b32 s{d+3}, 0x00020000")

def header(A, name):
    A.raw(f".globl {name}\n.p2align 8\n.type {name},@function\n{name}:")
    A.reset_counts()

def load_args(A):
    A.e("s_load_dwordx16 s[16:31], s[0:1], 0")
    A.e("s_load_dwordx2 s[32:33], s[0:1], 64")
    A.e("s_load_dwordx2 s[34:35], s[0:1], 80")

def code_pf(A, name, vd):
    if not A.cpf: return
    A.e("s_getpc_b64 s[36:37]")
    A.raw(f"{name}_pc:")
    A.e(f"v_lshlrev_b32 v{vd}, 7, v0")
    A.e(f"v_min_u32 v{vd}, code_end-{name}_pc-4, v{vd}")
    A.e(f"global_load_dword v{vd}, v{vd}, s[36:37]")

GC0 = -2.0 * 0.7978845608028654 * 1.4426950408889634
GC1 = GC0 * 0.044715

L_W1 = 0
L_DF = 114688
L_XT = L_DF + 28 * 1024
L_CS = L_XT + 16384
L_RS = L_CS + 2048
K1_LDS = L_RS + 1024

def gen_k1(A, name, ST="", NX0=4, NQ1=1, PFW2=1, PRIO=0, HPK=0, GS=8, XD=0, MSL=0, HS=0, NH1=8, HP2=0, BP=14, CPY=0):
    header(A, name)
    e = A.e
    e("s_cmp_ge_u32 s2, 256")
    e(f"s_cbranch_scc1 {name}_end")
    load_args(A)
    code_pf(A, name, 251)
    A.nts = 0; A.ts(True); A.ts()
    R = Regs(1)
    lane = R.alloc()
    t0, t1, t2, t3 = [R.alloc() for _ in range(4)]
    e(f"v_lshrrev_b32 v{t0}, 6, v0")
    e(f"v_and_b32 v{lane}, 63, v0")
    e(f"v_readfirstlane_b32 s3, v{t0}")
    e("s_cmp_ge_u32 s2, 224")
    e(f"s_cbranch_scc1 {name}_misc")
    MF = "v_mfma_f32_32x32x16_bf16"
    MS = "v_mfma_f32_16x16x32_bf16"
    def mix(x, y):
        o = []
        nx, ny = len(x), len(y)
        i = j_ = 0
        while i < nx or j_ < ny:
            if j_ >= ny or (i < nx and i * ny <= j_ * nx): o.append(x[i]); i += 1
            else: o.append(y[j_]); j_ += 1
        return o
    l16, hh, t31 = [R.alloc() for _ in range(3)]
    SEL = R.alloc(4); HP = R.alloc(8); g8 = R.alloc(8); PC = R.alloc(2); PS = R.alloc(2)
    g = [g8 + i for i in range(8)]
    ta = [R.alloc() for _ in range(4)]
    e("s_and_b32 s69, s3, 3")
    e("s_and_b32 s4, s2, 7")
    e("s_lshr_b32 s5, s2, 3")
    e("s_and_b32 s6, s5, 1")
    e("s_bfe_u32 s12, s5, 0x10001")
    e("s_lshr_b32 s13, s5, 2")
    e("s_and_b32 s7, s4, 1")
    e("s_mul_i32 s7, s7, 7")
    e("s_add_u32 s7, s7, s13")
    e("s_lshr_b32 s8, s4, 1")
    e("s_lshl_b32 s8, s8, 1")
    e("s_add_u32 s8, s8, s12")
    e("s_lshl_b32 s8, s8, 2")
    e("s_add_u32 s8, s8, s69")
    def r8pc():
        e(f"v_lshrrev_b32 v{t0}, 3, v{lane}")
        e(f"v_and_b32 v{t1}, 7, v{lane}")
    def common2():
        e(f"v_lshlrev_b32 v{l16}, 4, v{lane}")
        e(f"v_and_b32 v{t31}, 31, v{lane}")
        e(f"v_lshrrev_b32 v{hh}, 5, v{lane}")
        e(f"s_mov_b32 s15, {f32(1.0/448)}")
        e("s_lshl_b32 s9, s69, 12")
        e(f"s_add_u32 s9, s9, {L_XT}")
        e("s_lshl_b32 s63, s8, 1")
        e("s_add_u32 s63, s63, s6")
        e(f"s_mul_i32 s63, s63, {HS_}")
        e("s_lshl_b32 s64, s7, 13")
        e("s_add_u32 s63, s63, s64")
        e("s_lshl_b32 s64, s6, 12")
        e("s_add_u32 s63, s63, s64")
        e("s_xor_b32 s64, s63, 4096")
        e("s_lshl_b32 s62, s69, 8")
        e(f"s_add_u32 s62, s62, {L_RS}")
    def common3():
        e(f"v_bfe_u32 v{t0}, v{lane}, 2, 2")
        e(f"v_lshl_add_u32 v{t1}, v{hh}, 3, v{t0}")
        e(f"v_lshlrev_b32 v{t1}, 7, v{t1}")
        e(f"v_bfe_u32 v{t2}, v{lane}, 3, 1")
        e(f"v_lshl_add_u32 v{t1}, v{t2}, 6, v{t1}")
        e(f"v_bfe_u32 v{t2}, v{lane}, 4, 1")
        e(f"v_lshl_add_u32 v{t1}, v{t2}, 5, v{t1}")
        e(f"v_and_b32 v{t2}, 3, v{lane}")
        e(f"v_lshl_add_u32 v{ta[0]}, v{t2}, 3, v{t1}")
        e(f"v_lshrrev_b32 v{t0}, 2, v{lane}")
        e(f"v_xor_b32 v{t0}, v{t0}, v{lane}")
        e(f"v_and_b32 v{t0}, 4, v{t0}")
        e(f"v_cmp_eq_u32 vcc, 0, v{t0}")
        e(f"v_mov_b32 v{t0}, 0x3f803f80")
        for i in range(4):
            e(f"v_cndmask_b32 v{SEL+i}, 0, v{t0}, vcc")
    def gelu(b, a, pk, qs):
        S = []
        for q in qs:
            if pk:
                ix = [a + 4 * q, a + 4 * q + 2]
                tm = [g[(q & 1) * 4], g[(q & 1) * 4 + 2]]
                S += [f"v_pk_mul_f32 {vr(t,2)}, {vr(x,2)}, {vr(x,2)}" for x, t in zip(ix, tm)]
                S += [f"v_pk_fma_f32 {vr(t,2)}, {vr(t,2)}, {vr(PC,2)}, {vr(PC,2)} op_sel:[0,0,1] op_sel_hi:[1,0,1]" for t in tm]
                S += [f"v_pk_mul_f32 {vr(t,2)}, {vr(t,2)}, {vr(x,2)}" for x, t in zip(ix, tm)]
                for t in tm: S += [f"v_exp_f32 v{t}, v{t}", f"v_exp_f32 v{t+1}, v{t+1}"]
                S += [f"v_pk_fma_f32 {vr(t,2)}, {vr(t,2)}, {vr(PS,2)}, {vr(PS,2)} op_sel_hi:[1,0,0]" for t in tm]
                for t in tm: S += [f"v_rcp_f32 v{t}, v{t}", f"v_rcp_f32 v{t+1}, v{t+1}"]
                S += [f"v_pk_mul_f32 {vr(t,2)}, {vr(t,2)}, {vr(x,2)}" for x, t in zip(ix, tm)]
            else:
                ix = [a + 4 * q + i for i in range(4)]
                tt = g[(q & 1) * 4:(q & 1) * 4 + 4]
                tm = [tt[0], tt[2]]
                Z = list(zip(ix, tt))
                S += [f"v_mul_f32 v{t}, v{x}, v{x}" for x, t in Z]
                S += [f"v_fma_f32 v{t}, v{t}, v{PC}, v{PC+1}" for x, t in Z]
                S += [f"v_mul_f32 v{t}, v{t}, v{x}" for x, t in Z]
                S += [f"v_exp_f32 v{t}, v{t}" for x, t in Z]
                S += [f"v_fma_f32 v{t}, v{t}, v{PS}, v{PS}" for x, t in Z]
                S += [f"v_rcp_f32 v{t}, v{t}" for x, t in Z]
                S += [f"v_mul_f32 v{t}, v{t}, v{x}" for x, t in Z]
            S += [f"v_cvt_pk_bf16_f32 v{HP+2*q+i}, v{tm[i]}, v{tm[i]+1}" for i in range(2)]
            if q & 1:
                o = (2 * b + (q >> 1)) * 1024
                S.append(f"buffer_store_dwordx4 {vr(HP+4*(q>>1),4)}, v{l16}, s[44:47], s{63 if o < 4096 else 64} offen offset:{o % 4096}{ST}")
        return S
    def gelu8(b, a, h_):
        Z = [(a + 8 * h_ + i, g[i]) for i in range(8)]
        S = [f"v_mul_f32 v{t}, v{x}, v{x}" for x, t in Z]
        S += [f"v_fma_f32 v{t}, v{t}, v{PC}, v{PC+1}" for x, t in Z]
        for x, t in Z: S += [f"v_mul_f32 v{t}, v{t}, v{x}"]
        S2 = []
        for x, t in Z: S2 += [f"v_exp_f32 v{t}, v{t}"]
        S3 = [f"v_fma_f32 v{t}, v{t}, v{PS}, v{PS}" for x, t in Z]
        S4 = [f"v_rcp_f32 v{t}, v{t}" for x, t in Z]
        S5 = [f"v_mul_f32 v{t}, v{t}, v{x}" for x, t in Z]
        S = S[:18] + mix(S2[:6], S[18:]) + S2[6:] if False else S + S2
        S += S3[:2] + mix(S4[:6], S3[2:]) + mix(S4[6:], S5[:2]) + S5[2:]
        S += [f"v_cvt_pk_bf16_f32 v{HP+4*h_+i}, v{g[2*i]}, v{g[2*i+1]}" for i in range(4)]
        o = (2 * b + h_) * 1024
        S.append(f"buffer_store_dwordx4 {vr(HP+4*h_,4)}, v{l16}, s[44:47], s{63 if o < 4096 else 64} offen offset:{o % 4096}{ST}")
        return S
    pcs = [f"v_mul_f32 v{PC+1}, {f32(GC0)}, v{PS+1}", f"v_mul_f32 v{PC}, v{PS+1}, v{PS+1}",
           f"v_mul_f32 v{PC}, v{PC}, v{PC+1}", f"v_mul_f32 v{PC}, {f32(0.044715)}, v{PC}"]
    XOFF = [0, L_DF - L_XT]
    Rsave = R.n
    CFg = [(Rsave + 3) // 4 * 4 + 4 * i for i in range(4)]
    jk = [CFg[3] + 4 + i for i in range(8)]
    common2()
    e("s_lshl_b32 s14, s7, 5")
    e(f"v_add_u32 v{t0}, s14, v{t31}")
    e(f"v_lshrrev_b32 v{t1}, 1, v{t0}")
    e(f"v_and_b32 v{t2}, 1, v{t0}")
    e(f"v_cmp_eq_u32 vcc, 1, v{t0}")
    e(f"v_mov_b32 v{t3}, 224")
    e(f"v_cndmask_b32 v{t1}, v{t1}, v{t3}, vcc")
    e(f"v_cndmask_b32 v{t2}, v{t2}, 0, vcc")
    e(f"v_cvt_f32_u32 v{t1}, v{t1}")
    e(f"v_cvt_f32_u32 v{t2}, v{t2}")
    e(f"v_mul_f32 v{t2}, 0x3e800000, v{t2}")
    for j_ in range(1, 8):
        e(f"v_mul_f32 v{jk[j_]}, {f32(j_/448.0)}, v{t1}")
    e("s_mul_i32 s10, s3, 3")
    e("s_sub_u32 s11, s3, 4")
    e("s_max_i32 s11, s11, 0")
    e("s_add_u32 s10, s10, s11")
    e("s_lshl_b32 s66, s10, 10")
    e("s_lshl_b32 s10, s10, 4")
    e("s_lshl_b32 s11, s13, 6")
    e("s_add_u32 s10, s10, s11")
    e(f"v_lshlrev_b32 v{t0}, 3, v{hh}")
    e(f"v_add_u32 v{t0}, s10, v{t0}")
    e(f"v_cvt_f32_u32 v{t0}, v{t0}")
    e(f"v_mul_f32 v{t0}, v{t0}, v{t1}")
    e(f"v_mul_f32 v{t1}, {f32(16.0)}, v{t1}")
    e(f"s_mov_b32 s65, {f32(-448.0)}")
    e(f"s_add_u32 s66, s66, {L_DF}")
    e(f"v_add_u32 v{jk[0]}, s66, v{l16}")
    def dgen(i):
        fr = CFg[i % 4]
        e(f"v_mul_f32 v{t3}, s15, v{t0}")
        e(f"v_floor_f32 v{t3}, v{t3}")
        e(f"v_fma_f32 v{t3}, v{t3}, s65, v{t0}")
        e(f"v_fma_f32 v{g[0]}, v{t3}, s15, v{t2}")
        for j_ in range(1, 8):
            e(f"v_add_f32 v{g[j_]}, v{g[0]}, v{jk[j_]}")
        for j_ in range(8):
            e(f"v_cos_f32 v{g[j_]}, v{g[j_]}")
        e(f"v_add_f32 v{t0}, v{t0}, v{t1}")
        for j_ in range(4):
            e(f"v_cvt_pk_bf16_f32 v{fr+j_}, v{g[2*j_]}, v{g[2*j_+1]}")
        e(f"ds_write_b128 v{jk[0]}, {vr(fr,4)} offset:{i*1024}")
    for i in range(3): dgen(i)
    e("s_cmp_ge_u32 s3, 4")
    e(f"s_cbranch_scc1 {name}_help")
    XF = R.alloc(112)
    acc = [R.alloc(16), R.alloc(16)]
    GR = R.alloc(16); SM = R.alloc(4)
    NB = 8
    AF = [R.alloc(4) for _ in range(NB)]
    AX = R.alloc(4); BX = R.alloc(4)
    xw0, xw1, vdf = HP, HP + 1, HP + 2
    xr = [acc[0] + i for i in range(4)]
    vxo, vxc = HP + 3, HP + 4
    vst, vrs, vgr, vax, vxa, vxb = [R.alloc() for _ in range(6)]
    if PRIO: e(f"s_setprio {PRIO}")
    r8pc()
    e("s_lshl_b32 s10, s6, 10")
    e("s_add_u32 s10, s10, s8")
    e("s_mul_i32 s52, s10, 896")
    for i in range(1, 4):
        e(f"s_add_u32 s{52+i}, s52, {i*(28672 if XD == 2 else 229376)}")
    e("s_lshl_b32 s59, s13, 7")
    if XD == 1:
        e(f"v_mul_u32_u24 v{vxo}, 28672, v{t31}")
        e(f"v_lshl_add_u32 v{vxo}, v{hh}, 4, v{vxo}")
    elif XD == 2:
        e(f"v_bfe_u32 v{t2}, v{lane}, 2, 3")
        e(f"v_mul_u32_u24 v{vxo}, {4*28672}, v{t2}")
        e(f"v_and_b32 v{t2}, 3, v{lane}")
        e(f"v_lshl_add_u32 v{vxo}, v{t2}, 5, v{vxo}")
        e(f"v_lshl_add_u32 v{vxo}, v{hh}, 4, v{vxo}")
        e("s_mov_b32 s48, 0x55555555"); e("s_mov_b32 s49, 0x55555555")
        e("s_mov_b32 s50, 0x33333333"); e("s_mov_b32 s51, 0x33333333")
    else:
        e(f"v_mul_u32_u24 v{vxo}, 28672, v{t0}")
        e(f"v_lshl_add_u32 v{vxo}, v{t1}, 4, v{vxo}")
    A.ts()
    e("s_waitcnt lgkmcnt(0)")
    A.ld_done = A.nld
    mk_srd(A, 36, 16, 1835008)
    xtok = {}
    def xload(c):
        e(f"v_add_u32 v{vxc}, s59, v{vxo}")
        for i in range(4):
            if XD == 1: xtok[c, i] = e(f"buffer_load_dwordx4 {vr(XF+16*c+4*i,4)}, v{vxc}, s[36:39], s52 offen offset:{32*i}")
            else: xtok[c, i] = e(f"buffer_load_dwordx4 {vr(XF+16*c+4*i,4)}, v{vxc}, s[36:39], s{52+i} offen")
        e("s_add_u32 s59, s59, 128")
        e("s_cmp_eq_u32 s59, 896")
        e("s_cselect_b32 s59, 0, s59")
    for c in range(NX0): xload(c)
    A.ts()
    if NX0 == 7: e("s_barrier")
    mk_srd(A, 44, 34, WS_BYTES)
    if not XD:
        e(f"v_lshrrev_b32 v{t2}, 1, v{t0}")
        e(f"v_xor_b32 v{t2}, v{t2}, v{t1}")
        e(f"v_lshlrev_b32 v{t2}, 4, v{t2}")
        e(f"v_lshl_add_u32 v{xw0}, v{t0}, 7, v{t2}")
        e(f"v_add_u32 v{xw0}, s9, v{xw0}")
        e(f"v_xor_b32 v{xw1}, 64, v{xw0}")
        e(f"v_bfe_u32 v{t2}, v{lane}, 1, 3")
        e(f"v_xor_b32 v{t2}, v{t2}, v{hh}")
        e(f"v_lshlrev_b32 v{t2}, 4, v{t2}")
        e(f"v_lshl_add_u32 v{xr[0]}, v{t31}, 7, v{t2}")
        e(f"v_add_u32 v{xr[0]}, s9, v{xr[0]}")
        for q in range(1, 4):
            e(f"v_xor_b32 v{xr[q]}, {q*32}, v{xr[0]}")
    common3()
    e(f"v_xor_b32 v{ta[1]}, 64, v{ta[0]}")
    e(f"v_add_u32 v{ta[2]}, 57344, v{ta[0]}")
    e(f"v_add_u32 v{ta[3]}, 57344, v{ta[1]}")
    e(f"v_lshrrev_b32 v{t0}, 3, v{t31}")
    e(f"v_lshlrev_b32 v{t0}, 10, v{t0}")
    e(f"v_lshl_add_u32 v{t0}, v{t31}, 4, v{t0}")
    e(f"v_bfe_u32 v{t1}, v{t31}, 2, 1")
    e(f"v_lshl_add_u32 v{t0}, v{t1}, 9, v{t0}")
    e(f"v_and_b32 v{t1}, 3, v{t31}")
    e(f"v_lshl_add_u32 v{t0}, v{t1}, 2, v{t0}")
    e(f"v_add_u32 v{vgr}, s9, v{t0}")
    for a_ in (AX, BX):
        e(f"v_mov_b32 v{a_+2}, 0")
        e(f"v_mov_b32 v{a_+3}, 0")
    e("s_lshl_b32 s14, s7, 5")
    e(f"v_add_u32 v{t0}, s14, v{t31}")
    e(f"v_cmp_eq_u32 vcc, 0, v{t0}")
    e(f"v_mov_b32 v{t3}, 0x43e0")
    e(f"v_mov_b32 v{AX+1}, 0")
    e(f"v_cndmask_b32 v{AX}, 0, v{t3}, vcc")
    e(f"v_add_u32 v{vdf}, {L_DF}, v{l16}")
    e(f"v_lshlrev_b32 v{vax}, 3, v{t31}")
    e(f"v_add_u32 v{vax}, {L_CS}, v{vax}")
    e(f"v_add_u32 v{vxa}, s9, v{l16}")
    e(f"v_add_u32 v{vxb}, {XOFF[1]}, v{vxa}")
    e(f"v_lshlrev_b32 v{vst}, 12, v{t31}")
    e(f"v_lshl_add_u32 v{vst}, v{hh}, 9, v{vst}")
    e("s_lshl_b32 s67, s7, 17")
    e("s_lshl_b32 s68, s6, 11")
    e("s_add_u32 s67, s67, s68")
    e("s_lshl_b32 s68, s8, 4")
    e("s_add_u32 s67, s67, s68")
    e(f"s_add_u32 s67, s67, {X1F}")
    e(f"v_lshl_add_u32 v{vrs}, v{hh}, 4, s62")
    D = acc[1]
    xt = {}; ft = {}
    def trw(c, i):
        A.wait_vm(xtok[c, i])
        e(f"ds_write_b128 v{xw1 if i&1 else xw0}, {vr(XF+16*c+4*i,4)} offset:{i*1024}")
    def trr(c, q): xt[4*c+q] = e(f"ds_read_b128 {vr(XF+16*c+4*q,4)}, v{xr[q]}")
    def dfr(c, q): ft[4*c+q] = e(f"ds_read_b128 {vr(AF[(4*c+q)%8],4)}, v{vdf} offset:{(4*c+q)*1024}")
    A.ts()
    if NX0 < 7: e("s_barrier")
    for q in range(4): dfr(0, q)
    def dtr(c):
        X = [XF + 16 * c + 4 * i for i in range(4)]; T = [acc[0] + 4 * i for i in range(4)]
        F = []
        def op(d, s0, s1, qp, pre=None, w=None):
            for j in range(4):
                def f(j=j):
                    if j == 0 and w is not None: A.wait_vm(xtok[c, w])
                    if j == 0 and pre: e(pre)
                    e(f"v_cndmask_b32_dpp v{d+j}, v{s0+j}, v{s1+j}, vcc quad_perm:{qp} row_mask:0xf bank_mask:0xf")
                F.append(f)
        p1, p2 = "[1,0,3,2]", "[2,3,0,1]"
        op(T[0], X[1], X[0], p1, "s_mov_b64 vcc, s[48:49]", 1); op(T[2], X[3], X[2], p1, None, 3)
        op(T[1], X[0], X[1], p1, "s_not_b64 vcc, vcc"); op(T[3], X[2], X[3], p1)
        op(X[0], T[2], T[0], p2, "s_mov_b64 vcc, s[50:51]"); op(X[1], T[3], T[1], p2)
        op(X[2], T[0], T[2], p2, "s_not_b64 vcc, vcc"); op(X[3], T[1], T[3], p2)
        return F
    if not XD:
        for i in range(4): trw(0, i)
        for q in range(4): trr(0, q)
    if XD == 2:
        for f in dtr(0): f()
        A.ts()
        for c in range(7):
            if c + NX0 < 7: xload(c + NX0)
            if c + NX0 == 6: e("s_barrier")
            ops = dtr(c + 1) if c < 6 else []
            def fl(k):
                for _ in range(k):
                    if ops: ops.pop(0)()
            for q in range(4):
                ks = 4 * c + q
                x_ = vr(XF+4*ks, 4)
                e(f"{MF} {vr(GR,16)}, {x_}, {x_}, {'0' if ks == 0 else vr(GR,16)}")
                fl(3)
                e(f"{MS} {vr(SM,4)}, {vr(SEL,4)}, {x_}, {'0' if ks == 0 else vr(SM,4)}")
                fl(1)
                A.wait_ld(ft[ks])
                e(f"{MF} {vr(D,16)}, {x_}, {vr(AF[ks%8],4)}, {'0' if ks == 0 else vr(D,16)}")
                if c < 6: dfr(c + 1, q)
                fl(4)
    if XD != 2: A.ts()
    for c in range(7 if XD != 2 else 0):
        ops = []
        if c < 6:
            ops = [(lambda i=i: trw(c + 1, i)) for i in range(4)] + [(lambda q=q: trr(c + 1, q)) for q in range(4)] + [(lambda q=q: dfr(c + 1, q)) for q in range(4)]
            if XD: ops = [None] * 8 + ops[8:]
        if c + NX0 < 7: xload(c + NX0)
        for q in range(4):
            ks = 4 * c + q
            x_ = vr(XF+4*ks, 4)
            if XD: A.wait_vm(xtok[c, q])
            else: A.wait_ld(xt[ks])
            e(f"{MF} {vr(GR,16)}, {x_}, {x_}, {'0' if ks == 0 else vr(GR,16)}")
            for _ in range(2):
                if ops:
                    o_ = ops.pop(0)
                    if o_: o_()
            e(f"{MS} {vr(SM,4)}, {vr(SEL,4)}, {x_}, {'0' if ks == 0 else vr(SM,4)}")
        for q in range(4):
            ks = 4 * c + q
            A.wait_ld(ft[ks])
            e(f"{MF} {vr(D,16)}, {vr(XF+4*ks,4)}, {vr(AF[ks%8],4)}, {'0' if ks == 0 else vr(D,16)}")
            if ops: ops.pop(0)()
    A.ts()
    e("s_barrier")
    def stats():
        ssum, ssq = g[0], g[1]
        F = [(lambda q=q: e(f"ds_write_b128 v{vxa}, {vr(GR+4*q,4)} offset:{q*1024}")) for q in range(4)]
        tk = {}
        def rd(): tk[0] = e(f"ds_read_b32 v{ssq}, v{vgr}")
        F += [rd, lambda: e(f"v_mul_f32 v{ssum}, s15, v{SM}"),
              lambda: e(f"v_cmp_gt_u32 vcc, 32, v{lane}"), lambda: e(f"v_lshl_add_u32 v{t1}, v{t31}, 2, s62"),
              lambda: e(f"v_cvt_pk_bf16_f32 v{BX}, -v{ssum}, -v{ssum}"), None, None, None, None, None, None,
              lambda: A.wait_ld(tk[0])]
        seq = [f"v_mul_f32 v{ssq}, s15, v{ssq}",
            f"v_fma_f32 v{ssq}, -v{ssum}, v{ssum}, v{ssq}",
            f"v_max_f32 v{ssq}, 0, v{ssq}",
            f"v_cvt_pk_bf16_f32 v{t0}, v{ssq}, v{ssq}",
            f"v_lshlrev_b32 v{t0}, 16, v{t0}",
            f"v_add_f32 v{t0}, {f32(1e-5)}, v{t0}",
            f"v_cvt_pk_bf16_f32 v{t0}, v{t0}, v{t0}",
            f"v_lshlrev_b32 v{t0}, 16, v{t0}",
            f"v_sqrt_f32 v{t0}, v{t0}",
            f"v_cndmask_b32 v{BX}, 0, v{BX}, vcc",
            f"v_cvt_pk_bf16_f32 v{BX+1}, -v{ssum}, v{t0}",
            f"v_and_b32 v{PS}, 0xffff0000, v{BX+1}",
            f"v_rcp_f32 v{PS+1}, v{PS}",
            f"v_cndmask_b32 v{BX+1}, 0, v{BX+1}, vcc",
            f"ds_write_b32 v{t1}, v{PS} offset:128",
            f"ds_write_b32 v{t1}, v{PS+1}",
            f"{MF} {vr(D,16)}, {vr(BX,4)}, {vr(AX,4)}, {vr(D,16)}"]
        return F + [(lambda s=s: e(s)) for s in seq]
    def dft_epi():
        F = []
        tk = {}
        for h_ in range(2):
            def rd(h_=h_):
                e(f"ds_read_b128 {vr(g8,4)}, v{vrs} offset:{h_*64}")
                tk[h_] = e(f"ds_read_b128 {vr(g8+4,4)}, v{vrs} offset:{h_*64+32}")
            F += [rd, None, None, None, None]
            def ml(i, h_=h_):
                def f():
                    A.wait_ld(tk[h_])
                    e(f"v_mul_f32 v{g8+i}, v{g8+i}, v{D+8*h_+i}")
                return f
            F += [ml(i) for i in range(8)]
            F += [(lambda i=i, h_=h_: e(f"v_cvt_pk_bf16_f32 v{HP+4*h_+i}, v{g8+2*i}, v{g8+2*i+1}")) for i in range(4)]
            F.append(lambda h_=h_: e(f"buffer_store_dwordx4 {vr(HP+4*h_,4)}, v{vst}, s[44:47], s67 offen offset:{h_*1024}{ST}"))
        return F
    steps = [(b, ks) for b in range(4) for ks in range(28)]
    rtok = {}
    def issue_read(n):
        if n >= len(steps): return
        b, ks = steps[n]
        f = AF[n % NB]
        e(f"ds_read_b64_tr_b16 {vr(f,2)}, v{ta[b]} offset:{ks*2048}")
        rtok[n] = e(f"ds_read_b64_tr_b16 {vr(f+2,2)}, v{ta[b]} offset:{ks*2048+512}")
    PF = 4
    for n in range(PF):
        issue_read(n)
    n = 0
    axt = {}
    for b in range(4):
        A.ts()
        def axr(b=b): axt[b] = e(f"ds_read_b64 {vr(AX,2)}, v{vax} offset:{b*512}")
        if b == 0:
            fill = stats() + dft_epi() + [(lambda s=s: e(s)) for s in pcs]
            fill.insert(len(fill) - BP, lambda: e("s_barrier"))
            fill += [lambda: e("s_barrier"), axr] + [None] * 5
        else:
            wt = {}
            def aw(q, b=b): wt[0] = e(f"ds_write_b128 v{vxb if (b-1)&1 else vxa}, {vr(acc[(b-1)&1]+4*q,4)} offset:{q*1024}")
            def bar():
                A.wait_ld(wt[0]); e("s_barrier")
            gl = []
            for s_ in gelu8(b - 1, acc[(b-1)&1], 1): gl += [(lambda s_=s_: e(s_))] + ([None] if s_.startswith(TRANS) else [])
            fill = [None] * 5 + [(lambda q=q: aw(q)) for q in range(2)] + gl[:6] + [bar, axr] + gl[6:] + [None] * 4
            if GS == 0: fill = [None] + [(lambda q=q: aw(q)) for q in range(4)] + [None, bar, axr] + [None] * 20
        nf = len(fill)
        fi = 0
        for ks in range(28):
            issue_read(n + PF)
            if n % 2 == 0: A.wait_ld(rtok[n + 1])
            f = AF[n % NB]
            c_ = "0" if ks == 0 else vr(acc[b & 1], 16)
            e(f"{MF} {vr(acc[b&1],16)}, {vr(f,4)}, {vr(XF+4*ks,4)}, {c_}")
            tgt = (nf * (ks + 1) + 27) // 28
            while fi < tgt:
                if fill[fi]: fill[fi]()
                fi += 1
            n += 1
        A.wait_ld(axt[b])
        e(f"{MF} {vr(acc[b&1],16)}, {vr(AX,4)}, {vr(BX,4)}, {vr(acc[b&1],16)}")
    A.ts()
    for q in range(2): wt3 = e(f"ds_write_b128 v{vxb}, {vr(acc[1]+4*q,4)} offset:{q*1024}")
    gl = gelu(3, acc[1], True, (2, 3))
    for s_ in gl[:6]: e(s_)
    A.wait_ld(wt3)
    e("s_barrier")
    for s_ in gl[6:]: e(s_)
    A.ts_flush(0)
    e("s_endpgm")
    nv0 = R.n
    A.label(f"{name}_help")
    A.reset_counts()
    A.nts = 2
    R.n = Rsave
    CF = [R.alloc(4) for _ in range(8)]
    if HPK: e(f"s_setprio {HPK}")
    CA = R.alloc(4); HA = R.alloc(16)
    vwA, vwB, b1r, vxa, vax, vpw, vpr = [R.alloc() for _ in range(7)]
    dgen(3)
    r8pc()
    e(f"v_lshlrev_b32 v{t2}, 1, v{t0}")
    e(f"v_and_b32 v{t2}, 4, v{t2}")
    e(f"v_xor_b32 v{t2}, v{t2}, v{t1}")
    e(f"v_mul_u32_u24 v{vwA}, 3584, v{t0}")
    e(f"v_lshl_add_u32 v{vwA}, v{t2}, 4, v{vwA}")
    e("s_lshl_b32 s14, s6, 7")
    e(f"v_add_u32 v{vwA}, s14, v{vwA}")
    e(f"v_xor_b32 v{vwB}, 128, v{vwA}")
    e("s_mul_i32 s56, s69, 28672")
    e("s_lshl_b32 s10, s7, 8")
    e("s_add_u32 s56, s56, s10")
    e("s_add_u32 s10, s10, s14")
    e("s_lshl_b32 s11, s69, 6")
    e("s_xor_b32 s10, s10, s11")
    e("s_mul_i32 s57, s12, 28672")
    e("s_lshl_b32 s58, s69, 10")
    e("s_add_u32 s57, s57, s58")
    e("s_xor_b32 s58, s57, 28672")
    e("s_mul_i32 s60, s12, 7")
    e("s_lshl_b32 s61, s13, 1")
    e("s_add_u32 s60, s60, s61")
    e("s_cmp_ge_u32 s60, 14")
    e("s_cselect_b32 s61, 14, 0")
    e("s_sub_u32 s60, s60, s61")
    e("s_mul_i32 s60, s60, 114688")
    e("s_add_u32 s60, s60, s56")
    e(f"s_add_u32 s61, s56, {14*114688}")
    common3()
    e(f"v_mul_u32_u24 v{t0}, {28672-1024}, v{hh}")
    e("s_lshl_b32 s12, s69, 10")
    e(f"v_add3_u32 v{ta[0]}, v{ta[0]}, v{t0}, s12")
    e(f"v_xor_b32 v{ta[1]}, 64, v{ta[0]}")
    e(f"v_add_u32 v{ta[2]}, 57344, v{ta[0]}")
    e(f"v_add_u32 v{ta[3]}, 57344, v{ta[1]}")
    e(f"v_add_u32 v{vxa}, s9, v{l16}")
    e("s_lshl_b32 s12, s69, 2")
    e(f"s_add_u32 s12, s12, {L_CS}")
    e(f"v_lshl_add_u32 v{vpw}, v{t31}, 4, s12")
    e("s_lshl_b32 s12, s69, 9")
    e(f"s_add_u32 s12, s12, {L_CS}")
    e(f"v_lshl_add_u32 v{vpr}, v{t31}, 4, s12")
    e(f"v_lshl_add_u32 v{vax}, v{t31}, 3, s12")
    e(f"v_lshl_add_u32 v{t3}, v{t31}, 2, s62")
    e("s_waitcnt lgkmcnt(0)")
    A.ld_done = A.nld
    mk_srd(A, 40, 24, 1605632)
    mk_srd(A, 44, 34, WS_BYTES)
    mk_srd(A, 48, 26, 3584)
    A.ts()
    if NX0 < 7: e("s_barrier")
    e("s_barrier")
    wtok = {}
    def wload(p, i):
        if p == 0:
            if i == 0:
                e("s_mov_b32 s16, s60")
            else:
                e(f"s_add_u32 s{16+i}, s{15+i}, 114688")
                e(f"s_cmp_eq_u32 s{16+i}, s61")
                e(f"s_cselect_b32 s{16+i}, s56, s{16+i}")
        e(f"s_add_u32 m0, s{57 if i < 7 else 58}, {L_W1 + p*57344 + (i%7)*4096}")
        wtok[p] = e(f"buffer_load_dwordx4 v{vwB if p else vwA}, s[40:43], s{16+i} offen lds")
    if HS: e(f"s_sleep {HS}")
    e(f"v_lshlrev_b32 v{t2}, 1, v{t31}")
    e(f"buffer_load_ushort v{b1r}, v{t2}, s[48:51], s10 offen")
    for i in range(14): wload(0, i)
    for i in range(NH1): wload(1, i)
    A.ts()
    tk = {}
    def rdc(n_):
        b_, i = n_ // 7, n_ % 7
        if n_ % 14 == 0:
            A.wait_vm(wtok[n_ // 14]); A.ts()
        c_ = CF[n_ % 8]
        e(f"ds_read_b64_tr_b16 {vr(c_,2)}, v{ta[b_]} offset:{i*4096}")
        tk[n_] = e(f"ds_read_b64_tr_b16 {vr(c_+2,2)}, v{ta[b_]} offset:{i*4096+512}")
    def colsum(hf):
        for i in range(6): rdc(14 * hf + i)
        for i in range(14):
            n_ = 14 * hf + i
            A.wait_ld(tk[n_])
            ca = vr(HA + 4 * (n_ // 7), 4)
            e(f"{MS} {ca}, {vr(SEL,4)}, {vr(CF[n_%8],4)}, {'0' if n_ % 7 == 0 else ca}")
            if i + 6 < 14: rdc(n_ + 6)
        if hf:
            for b_ in range(4): e(f"ds_write_b32 v{vpw}, v{HA+4*b_} offset:{b_*512}")
            A.wait_all_ld()
    def axbuild():
        e(f"ds_read_b128 {vr(CA,4)}, v{vpr}")
        A.wait_all_ld()
        for s_ in [f"v_add_f32 v{CA}, v{CA}, v{CA+1}", f"v_add_f32 v{CA+2}, v{CA+2}, v{CA+3}", f"v_add_f32 v{CA}, v{CA}, v{CA+2}",
                   f"v_cvt_pk_bf16_f32 v{CA+1}, v{CA}, v{CA}",
                   f"v_lshlrev_b32 v{CA+2}, 16, v{CA+1}",
                   f"v_sub_f32 v{CA+3}, v{CA}, v{CA+2}",
                   f"v_cvt_pk_bf16_f32 v{g8}, v{CA}, v{CA+3}",
                   f"v_and_b32 v{CA+2}, 0xffff0000, v{g8}",
                   f"v_sub_f32 v{CA+3}, v{CA+3}, v{CA+2}",
                   f"v_cvt_pk_bf16_f32 v{g8+1}, v{CA+3}, 0",
                   f"v_lshl_or_b32 v{g8+1}, v{b1r}, 16, v{g8+1}",
                   f"ds_write_b64 v{vax}, {vr(g8,2)}"]: e(s_)
        A.wait_all_ld()
    A.wait_vm(wtok[0])
    e("s_barrier")
    for i in range(NH1, 14): wload(1, i)
    if HP2: e(f"s_setprio {HP2}")
    colsum(0)
    colsum(1)
    A.ts()
    e("s_barrier")
    axbuild()
    e("s_barrier")
    if HP2: e(f"s_setprio {HPK}")
    e(f"ds_read_b32 v{PS}, v{t3} offset:128")
    e(f"ds_read_b32 v{PS+1}, v{t3}")
    e(f"v_add_u32 v{t0}, {XOFF[1]}, v{vxa}")
    A.wait_all_ld()
    for s_ in pcs: e(s_)
    for b in range(4):
        e("s_barrier")
        A.ts()
        full = GS == 0 and b < 3
        tks = [e(f"ds_read_b128 {vr(HA+4*q,4)}, v{t0 if b&1 else vxa} offset:{q*1024}") for q in range(4 if full else 2)]
        A.wait_ld(tks[1])
        for s_ in (gelu(b, HA, True, (0, 1)) if b == 3 else gelu8(b, HA, 0)): e(s_)
        if full:
            A.wait_ld(tks[3])
            for s_ in gelu8(b, HA, 1): e(s_)
    A.ts_flush(0)
    e("s_endpgm")
    A.nts = 2
    R.n = nv0
    nv = R.n
    A.label(f"{name}_misc")
    A.reset_counts()
    e("s_nop 4")
    R = Regs(6)
    l16, i15, kk, va, vo, vk = [R.alloc() for _ in range(6)]
    P = R.alloc(4)
    ra = [R.alloc() for _ in range(16)]
    q_ = [R.alloc() for _ in range(12)]
    e("s_cmp_ge_u32 s3, 4")
    e(f"s_cbranch_scc1 {name}_{'pf' if PFW2 >= 2 else 'end'}")
    e("s_sub_u32 s4, s2, 224")
    e("s_and_b32 s5, s4, 3")
    e("s_lshr_b32 s6, s4, 2")
    e(f"v_lshlrev_b32 v{l16}, 4, v{lane}")
    e("s_waitcnt lgkmcnt(0)")
    mk_srd(A, 36, 18, 921600)
    mk_srd(A, 40, 20, 921600)
    mk_srd(A, 44, 34, WS_BYTES)
    e("s_lshl_b32 s7, s6, 2")
    e("s_add_u32 s7, s7, s3")
    e("s_lshl_b32 s7, s7, 2")
    e("s_add_u32 s7, s7, s5")
    e("s_mul_i32 s7, s7, 7200")
    e("s_lshl_b32 s8, s3, 13")
    if MSL: e(f"s_sleep {MSL}")
    for arr in range(2):
        for it in range(8):
            e(f"s_add_u32 m0, s8, {arr*32768 + it*1024}")
            e(f"s_add_u32 s9, s7, {it*1024}")
            e(f"buffer_load_dwordx4 v{l16}, s[{36+4*arr}:{39+4*arr}], s9 offen lds")
    e("s_lshl_b32 s10, s4, 2")
    e("s_add_u32 s10, s10, s3")
    A.ts()
    e(f"v_and_b32 v{i15}, 15, v{lane}")
    e(f"v_lshrrev_b32 v{kk}, 4, v{lane}")
    e(f"v_mul_u32_u24 v{va}, 450, v{i15}")
    e("s_lshl_b32 s11, s3, 2")
    e(f"v_add_u32 v{t0}, s11, v{kk}")
    e(f"v_lshl_add_u32 v{va}, v{t0}, 1, v{va}")
    e(f"v_lshlrev_b32 v{vo}, 13, v{t0}")
    e(f"v_lshl_add_u32 v{vo}, v{i15}, 4, v{vo}")
    e("s_lshl_b32 s12, s5, 11")
    e("s_lshl_b32 s13, s6, 8")
    e("s_add_u32 s12, s12, s13")
    e(f"s_add_u32 s12, s12, {WT}")
    e(f"v_cmp_eq_u32 vcc, 0, v{t0}")
    e(f"v_mov_b32 v{t1}, {OOB}")
    A.ts()
    e("s_waitcnt vmcnt(0)")
    e("s_barrier")
    A.ts()
    A.reset_counts()
    P2 = [P, R.alloc(4)]
    toks = {}
    def rdw(n_):
        o = (n_ & 1) * 8
        for r_ in range(4):
            e(f"ds_read_u16 v{ra[o+r_]}, v{va} offset:{r_*8192 + n_*32}")
            toks[n_] = e(f"ds_read_u16 v{ra[o+4+r_]}, v{va} offset:{32768 + r_*8192 + n_*32}")
    rdw(0)
    for n_ in range(15):
        A.wait_ld(toks[n_])
        if n_ + 1 < 15: rdw(n_ + 1)
        o = (n_ & 1) * 8
        for r_ in range(4):
            e(f"v_lshl_or_b32 v{P2[n_&1]+r_}, v{ra[o+4+r_]}, 16, v{ra[o+r_]}")
        if n_ == 14:
            e(f"v_cndmask_b32 v{vo}, v{t1}, v{vo}, vcc")
        e(f"buffer_store_dwordx4 {vr(P2[n_&1],4)}, v{vo}, s[44:47], s12 offen")
        e(f"s_add_u32 s12, s12, {16*8192}")
    if CPY:
        CB = [R.alloc(4) for _ in range(14)]
        for bit, ptr, nb, nl, dst in ((1, 28, 1605632, 13, W2C), (2, 16, 1835008, 14, XC)):
            mk_srd(A, 36, ptr, nb)
            e(f"s_mul_i32 s11, s10, {nl*1024}")
            e(f"v_add_u32 v{va}, s11, v{l16}")
            e(f"s_mov_b32 s12, {dst}")
            tk = []
            for it in range(nl if (CPY | 1) & bit else 0):
                if it % 4 == 0 and it: e(f"v_add_u32 v{va}, 4096, v{va}")
                tk.append(e(f"buffer_load_dwordx4 {vr(CB[it],4)}, v{va}, s[36:39], 0 offen offset:{(it%4)*1024}"))
            if CPY & bit:
                e(f"v_add_u32 v{vo}, s11, v{l16}")
                for it in range(nl):
                    if it % 4 == 0 and it: e(f"v_add_u32 v{vo}, 4096, v{vo}")
                    A.wait_vm(tk[it])
                    e(f"buffer_store_dwordx4 {vr(CB[it],4)}, v{vo}, s[44:47], s12 offen offset:{(it%4)*1024}{ST}")
                e("s_waitcnt vmcnt(0)")
                A.reset_counts()
        e("s_waitcnt vmcnt(0)")
    elif PFW2 == 1:
        mk_srd(A, 36, 28, 1605632)
        e("s_mul_i32 s11, s10, 13312")
        for it in range(13):
            e(f"buffer_load_dwordx4 {vr(P2[it&1],4)}, v{l16}, s[36:39], s11 offen")
            e("s_add_u32 s11, s11, 1024")
        e("s_waitcnt vmcnt(0)")
    A.ts_flush(0)
    if PFW2 >= 2:
        e("s_endpgm")
        A.label(f"{name}_pf"); A.reset_counts()
        e("s_sub_u32 s4, s2, 224")
        e("s_lshl_b32 s4, s4, 2")
        e("s_add_u32 s4, s4, s3")
        e("s_sub_u32 s4, s4, 4")
        e("s_mul_i32 s11, s4, 13312")
        e(f"v_lshlrev_b32 v{l16}, 4, v{lane}")
        e(f"v_add_u32 v{l16}, s11, v{l16}")
        e("s_waitcnt lgkmcnt(0)")
        mk_srd(A, 36, 28, 1605632)
        mk_srd(A, 44, 34, WS_BYTES)
        e("s_lshr_b32 s5, s4, 1")
        e("s_mul_i32 s5, s5, 229376")
        e("s_and_b32 s6, s4, 1")
        e("s_mul_i32 s6, s6, 57344")
        e("s_add_u32 s5, s5, s6")
        e(f"v_lshlrev_b32 v{va}, 7, v{lane}")
        def pre(off):
            for it in range(7):
                e(f"s_add_u32 s6, s5, {off + it*8192}")
                e(f"buffer_load_dword v{vo}, v{va}, s[44:47], s6 offen sc0 sc1")
        if PRE & 4: e(f"s_sleep {PRE >> 3}")
        if PRE & 2: pre(0)
        if PFW2 >= 200:
            e("s_barrier")
            if PFW2 > 200: e(f"s_sleep {PFW2 - 200}")
        elif PFW2 > 2: e(f"s_sleep {PFW2 - 2}")
        for it in range(13):
            if it % 4 == 0 and it: e(f"v_add_u32 v{l16}, 4096, v{l16}")
            e(f"buffer_load_dwordx4 {vr(P,4)}, v{l16}, s[36:39], 0 offen offset:{(it%4)*1024}")
        if PRE & 1: pre(114688)
        if PRE & 1024:
            mk_srd(A, 48, 30, 896)
            mk_srd(A, 52, 32, 1835008)
            e("s_and_b32 s6, s2, 7")
            e("s_mul_i32 s6, s6, 3584")
            e(f"v_mul_u32_u24 v{vk}, 28672, v{lane}")
            e(f"v_add_u32 v{vk}, s6, v{vk}")
            e(f"buffer_load_dword v{vo}, v{vk}, s[52:55], 0 offen")
            e(f"buffer_load_dword v{kk}, v{va}, s[48:51], 0 offen")
    A.label(f"{name}_end")
    e("s_endpgm")
    return max(nv, R.n)
```
